```python
import torch

def _softmax(x, axis=-1):
    return torch.softmax(x, dim=axis)

def _gelu(x):
    return torch.nn.functional.gelu(x, approximate='tanh')

def _silu(x):
    return torch.nn.functional.silu(x)

def _sigmoid(x):
    return torch.sigmoid(x)

def _layernorm(x, axis=-1, eps=1e-05):
    m = x.mean(dim=axis, keepdim=True)
    v = x.var(dim=axis, keepdim=True, unbiased=False)
    return (x - m) / torch.sqrt(v + eps)

def _scatter_add(tgt, idx, src, axis=0):
    return tgt.clone().index_add_(axis, idx, src)

def _segment_sum(src, seg, n):
    out = torch.zeros((n,) + src.shape[1:], dtype=src.dtype)
    return out.index_add_(0, seg, src)

def _pad(x, pw):
    flat = tuple((v for pair in reversed(pw) for v in pair))
    return torch.nn.functional.pad(x, flat)
kernel_name = 'sequential_preLN__memory_aug_recurrent_mem_tr__glu_gated_reglu__prompt'

def setup_inputs():

    _w = lambda a: (lambda t: t.to(torch.bfloat16) if t.is_floating_point() else t)(torch.as_tensor(a))

    def _A_setup():
        B, S, Dm = (1, 2048, 448)
        H, Dh = (16, 256)
        M, seg = (8, 32)
        seg = min(seg, S)
        S = S // seg * seg
        return {'x': _w((lambda *s: torch.randn(*s, dtype=torch.bfloat16) * 0.05)(B, S, Dm)), 'mem0': _w((lambda *s: torch.randn(*s, dtype=torch.bfloat16) * 0.2)(B, M, Dm)), 'Wq': _w((lambda *s: torch.randn(*s, dtype=torch.bfloat16) * 1.6)(Dm, H, Dh) * Dm ** (-0.5)), 'Wk': _w((lambda *s: torch.randn(*s, dtype=torch.bfloat16) * 1.6)(Dm, H, Dh) * Dm ** (-0.5)), 'Wv': _w((lambda *s: torch.randn(*s, dtype=torch.bfloat16) * 0.2)(Dm, H, Dh) * Dm ** (-0.5)), 'Wo': _w((lambda *s: torch.randn(*s, dtype=torch.bfloat16) * 0.2)(H, Dh, Dm) * (H * Dh) ** (-0.5)), 'seg_len': seg}
    _A_in = _A_setup()

    def _B_setup():
        B, S, D, F = (1, 2048, 448, 1792)
        return {'x': _w((lambda *s: torch.randn(*s, dtype=torch.bfloat16) * 0.05)(B, S, D)), 'W_gate': _w((lambda *s: torch.randn(*s, dtype=torch.bfloat16) * 0.2)(D, F) * (2.0 / D) ** 0.5), 'W_up': _w((lambda *s: torch.randn(*s, dtype=torch.bfloat16) * 0.2)(D, F) * (2.0 / D) ** 0.5), 'W_down': _w((lambda *s: torch.randn(*s, dtype=torch.bfloat16) * 0.2)(F, D) * (1.0 / F) ** 0.5)}
    _B_in = _B_setup()
    return {'A_x': _A_in['x'], 'A_mem0': _A_in['mem0'], 'A_Wq': _A_in['Wq'], 'A_Wk': _A_in['Wk'], 'A_Wv': _A_in['Wv'], 'A_Wo': _A_in['Wo'], 'A_seg_len': _A_in['seg_len'], 'B_x': _B_in['x'], 'B_W_gate': _B_in['W_gate'], 'B_W_up': _B_in['W_up'], 'B_W_down': _B_in['W_down']}

def reference(A_x, A_mem0, A_Wq, A_Wk, A_Wv, A_Wo, A_seg_len, B_x, B_W_gate, B_W_up, B_W_down):

    def _A_ref(x, mem0, Wq, Wk, Wv, Wo, seg_len):
        B, S, Dm = x.shape
        H, Dh = (Wq.shape[1], Wq.shape[2])
        M = mem0.shape[1]
        scale = Dh ** (-0.5)
        n_seg = S // seg_len
        L = M + seg_len
        idx = torch.arange(L)
        mask = (idx[:, None] < M) | (idx[:, None] >= idx[None, :])
        mem = mem0
        outs = []
        for s in range(n_seg):
            xs = x[:, s * seg_len:(s + 1) * seg_len, :].clone()
            h = torch.concatenate([mem, xs], axis=1)
            q = torch.einsum('btd,dhe->bhte', h, Wq)
            k = torch.einsum('btd,dhe->bhte', h, Wk)
            v = torch.einsum('btd,dhe->bhte', h, Wv)
            scores = torch.einsum('bhqe,bhke->bhqk', q, k) * scale
            scores = torch.where(mask[None, None], scores, -1000000000.0)
            p = _softmax(scores, axis=-1)
            o = torch.einsum('bhqk,bhke->bhqe', p, v)
            o = torch.einsum('bhte,hed->btd', o, Wo)
            mem = o[:, :M, :].clone()
            outs.append(o[:, M:, :])
        return torch.concatenate(outs, axis=1)

    def _B_ref(x, W_gate, W_up, W_down):
        gate = torch.einsum('bsd,df->bsf', x, W_gate)
        up = torch.einsum('bsd,df->bsf', x, W_up)
        gate = gate * (lambda x, dt: x.to(dt))(gate > 0, gate.dtype)
        h = gate * up
        return torch.einsum('bsf,fd->bsd', h, W_down)
    x = A_x
    h = x + _A_ref(_layernorm(x, axis=-1), A_mem0, A_Wq, A_Wk, A_Wv, A_Wo, A_seg_len)
    h2 = h + _B_ref(_layernorm(h, axis=-1), B_W_gate, B_W_up, B_W_down)
    return h2
```

```python
from gen import *
import os
NSTEPS=int(os.environ.get("NSTEPS","63"))

def spin_guard(a):
    a("s_sub_u32 s99, s99, 1")
    a("s_cbranch_scc1 K2_ABORT")

def poll_mem(a, tag, soff, va, vb, d0, d1, tmp):
    a.label(tag)
    spin_guard(a)
    a(f"buffer_load_dwordx4 {vr(d0,4)}, v{va}, s[36:39], {soff} offen sc1")
    a(f"buffer_load_dwordx4 {vr(d1,4)}, v{vb}, s[36:39], {soff} offen sc1")
    a("s_waitcnt vmcnt(0)")
    a(f"v_max3_u32 v{tmp}, v{d0}, v{d0+1}, v{d0+2}")
    a(f"v_max3_u32 v{tmp}, v{tmp}, v{d0+3}, v{d1}")
    a(f"v_max3_u32 v{tmp}, v{tmp}, v{d1+1}, v{d1+2}")
    a(f"v_max_u32 v{tmp}, v{tmp}, v{d1+3}")
    a(f"v_cmp_eq_u32 vcc, -1, v{tmp}")
    a(f"s_cbranch_vccnz {tag}")

PROF=int(os.environ.get("PROF","0"))
STAMPS=0x1720000
def stamp(a,k):
    if not PROF: return
    a(f"""s_memtime s[70:71]
    s_waitcnt lgkmcnt(0)
    s_sub_u32 s72, s70, s73
    s_add_u32 s{80+k}, s{80+k}, s72
    s_mov_b32 s73, s70""")
def stamp_init(a):
    if not PROF: return
    for k in range(16): a(f"s_mov_b32 s{80+k}, 0")
    a("s_memtime s[70:71]"); a("s_waitcnt lgkmcnt(0)"); a("s_mov_b32 s73, s70")
def stamp_dump(a, base_add):
    if not PROF: return
    a(f"""s_add_u32 s74, s42, {base_add}
    s_lshl_b32 s74, s74, 2
    s_add_u32 s74, s74, s40
    s_lshl_b32 s74, s74, 6
    s_add_u32 s74, s74, {STAMPS}
    s_mov_b64 exec, 1
    v_mov_b32 v2, 0""")
    for k in range(16):
        a(f"v_mov_b32 v3, s{80+k}")
        a(f"buffer_store_dword v3, v2, s[36:39], s74 offen offset:{4*k}")
    a("s_mov_b64 exec, -1")

AOP=16; IDX=44; ACC=48
def wfrag(i):
    return ar(8*i,8) if i<32 else vr(176+8*(i-32),8)
def wfrag_half(i,h):
    return ar(8*i+4*h,4) if i<32 else vr(176+8*(i-32)+4*h,4)

class LdsQ:
    def __init__(self,a): self.a=a; self.n=0; self.done=0
    def issue(self, s): self.a(s); self.n+=1; return self.n
    def wait(self, op):
        if op<=self.done: return
        k=self.n-op
        self.a(f"s_waitcnt lgkmcnt({min(k,15)})") if k<=15 else None
        assert k<=15
        self.done=op
    def wait_all(self):
        self.a("s_waitcnt lgkmcnt(0)"); self.done=self.n

def chain_common_setup(a):
    a("""v_and_b32 v2, 15, v1
    v_lshrrev_b32 v3, 4, v1
    v_lshlrev_b32 v4, 4, v1                 ; lane*16
    v_lshlrev_b32 v5, 4, v0                 ; chunk t
    v_add_u32 v6, 4096, v5
    v_cmp_gt_u32 vcc, 192, v0
    s_nop 1
    v_cndmask_b32 v6, v5, v6, vcc           ; chunk t+256 (or t)
    v_mov_b32 v%d, 0x4444
    v_mov_b32 v9, 0xeeee
    v_cmp_gt_u32 vcc, 8, v2
    s_nop 1
    v_cndmask_b32 v%d, v9, v%d, vcc""" % (IDX,IDX,IDX))

def poll_mem2(a, tag, soff, A, B, tmp, lds_base):
    def issue(R):
        a(f"buffer_load_dwordx4 {vr(R,4)}, v5, s[36:39], {soff} offen sc1")
        a(f"buffer_load_dwordx4 {vr(R+4,4)}, v6, s[36:39], {soff} offen sc1")
    def check(R):
        a(f"v_max3_u32 v{tmp}, v{R}, v{R+1}, v{R+2}")
        a(f"v_max3_u32 v{tmp}, v{tmp}, v{R+3}, v{R+4}")
        a(f"v_max3_u32 v{tmp}, v{tmp}, v{R+5}, v{R+6}")
        a(f"v_max_u32 v{tmp}, v{tmp}, v{R+7}")
        a(f"v_cmp_eq_u32 vcc, -1, v{tmp}")
    issue(A)
    a("s_nop 15"); a("s_nop 15")
    issue(B)
    a.label(tag)
    spin_guard(a)
    if PROF: a("s_add_u32 s89, s89, 63")
    a("s_waitcnt vmcnt(2)")
    check(A)
    a(f"s_cbranch_vccz {tag}_DA")
    issue(A)
    a("s_waitcnt vmcnt(2)")
    check(B)
    a(f"s_cbranch_vccz {tag}_DB")
    issue(B)
    a(f"s_branch {tag}")
    for nm,R in (("DA",A),("DB",B)):
        a.label(f"{tag}_{nm}")
        a(f"ds_write_b128 v5, {vr(R,4)} offset:{lds_base}")
        a(f"ds_write_b128 v6, {vr(R+4,4)} offset:{lds_base}")
        if nm=="DA": a(f"s_branch {tag}_J")
    a.label(f"{tag}_J")
    a("s_waitcnt lgkmcnt(0)")
    a("s_barrier")

def load_wtile(a, soff_sreg, vlane, frags, ldsinfo=None):
    for b in range(7):
        a(f"s_add_u32 s60, {soff_sreg}, {4096*b}")
        if frags is not None:
            a(f"buffer_load_dwordx4 {wfrag_half(frags[b],0)}, v{vlane}, s[36:39], s60 offen")
            a(f"buffer_load_dwordx4 {wfrag_half(frags[b],1)}, v{vlane}, s[36:39], s60 offen offset:2048")
        else:
            va, boff, tmp = ldsinfo
            a(f"buffer_load_dwordx4 {vr(tmp+8*b,4)}, v{vlane}, s[36:39], s60 offen")
            a(f"buffer_load_dwordx4 {vr(tmp+8*b+4,4)}, v{vlane}, s[36:39], s60 offen offset:2048")
    if frags is None:
        va, boff, tmp = ldsinfo
        a("s_waitcnt vmcnt(0)")
        for b in range(7):
            a(f"ds_write_b128 v{va}, {vr(tmp+8*b,4)} offset:{boff+2048*b}")
            a(f"ds_write_b128 v{va}, {vr(tmp+8*b+4,4)} offset:{boff+2048*b+1024}")
        a("s_waitcnt lgkmcnt(0)")

TT_RS=32
S_MEM=0; S_TT=7168; S_RED=S_TT+4*3584; RED_RS=272; RED_W=16*RED_RS; S_WL=S_RED+4*RED_W+64; S_KST=S_WL+4*14336
KX=76; KM=108; TOP=124; SACC=132; WLT=144
def score(a):
    a.label("K2_SCORE")
    chain_common_setup(a)
    a("""s_mul_i32 s48, s40, 112
    s_and_b32 s49, s40, 1
    s_lshl_b32 s50, s49, 4
    s_add_u32 s50, s48, s50              ; qa
    s_cmp_eq_u32 s49, 0
    s_cselect_b32 s51, 96, 0
    s_add_u32 s51, s48, s51              ; qs
    s_mul_i32 s52, s42, 14*28*1024
    s_add_u32 s52, s52, %d               ; head base""" % WTA)
    a("""v_lshrrev_b32 v9, 1, v3
    v_lshlrev_b32 v9, 10, v9
    v_and_b32 v10, 1, v3
    v_lshl_add_u32 v9, v10, 9, v9
    v_lshl_add_u32 v9, v2, 4, v9
    s_mul_i32 s53, s40, 14336
    s_add_u32 s53, s53, %d
    v_add_u32 v12, s53, v4               ; WL lds addr""" % S_WL)
    for u in range(7):
        if u<6: a(f"s_add_u32 s54, s50, {16*u}")
        else: a("s_mov_b32 s54, s51")
        a("""s_lshr_b32 s55, s54, 5
        s_mul_i32 s55, s55, 28*1024
        s_and_b32 s56, s54, 31
        s_lshl_b32 s56, s56, 4
        s_add_u32 s55, s55, s56
        s_add_u32 s55, s55, s52""")
        if u<6: load_wtile(a, "s55", 9, [7*u+b for b in range(7)])
        else: load_wtile(a, "s55", 9, None, (12, 0, 48))
    a("""s_mul_i32 s53, s40, 3584
    s_add_u32 s53, s53, %d
    v_bfe_u32 v10, v2, 1, 2
    v_xor_b32 v10, v10, v3
    v_lshlrev_b32 v13, 5, v2
    v_lshl_add_u32 v13, v10, 3, v13
    v_add_u32 v13, s53, v13               ; TT write addr""" % S_TT)
    a("""v_lshrrev_b32 v10, 2, v2              ; r
    v_and_b32 v11, 3, v2                  ; cc
    v_lshl_add_u32 v14, v3, 3, v10        ; 8g + r
    v_lshlrev_b32 v14, 5, v14
    v_add_u32 v14, s53, v14
    v_lshrrev_b32 v15, 1, v10             ; r>>1
    v_xor_b32 v15, v15, v11               ; cc ^ (r>>1)          (p=0)
    v_xor_b32 v11, 2, v15                 ; cc ^ (2 + (r>>1))    (p=1)
    v_lshl_add_u32 v15, v15, 3, v14       ; addr p=0
    v_lshl_add_u32 v14, v11, 3, v14
    v_add_u32 v14, 128, v14""")
    a("""s_lshl_b32 s53, s49, 9
    v_subrev_u32 v160, s53, v15
    v_subrev_u32 v161, s53, v14
    v_lshrrev_b32 v10, 1, v3
    v_cmp_eq_u32 s[64:65], s49, v10
    s_nop 1
    v_cndmask_b32 v160, v15, v160, s[64:65]
    v_cndmask_b32 v161, v14, v161, s[64:65]
    v_cndmask_b32 v45, 0, -1, s[64:65]    ; and-mask""")
    a("""v_and_b32 v10, 7, v2
    v_lshl_add_u32 v10, v3, 4, v10
    v_lshlrev_b32 v10, 4, v10""")
    for m in range(4):
        if m<3: a(f"s_lshr_b32 s53, s50, 5\ns_add_u32 s53, s53, {m}")
        else: a("s_lshr_b32 s53, s51, 5")
        a(f"""s_lshr_b32 s54, s53, 1
        s_lshl_b32 s54, s54, 10
        s_and_b32 s55, s53, 1
        s_lshl_b32 s55, s55, 7
        s_add_u32 s54, s54, s55
        v_add_u32 v{162+m}, s54, v10""")
    a("""s_lshr_b32 s53, s50, 5
    s_lshl_b32 s53, s53, 10
    v_add_u32 v166, s53, v4
    s_lshr_b32 s53, s51, 5
    s_lshl_b32 s53, s53, 10
    v_add_u32 v167, s53, v4""")
    a("""s_mul_i32 s53, s40, %d
    s_add_u32 s53, s53, %d
    v_mul_u32_u24 v168, %d, v2
    v_lshl_add_u32 v168, v3, 4, v168
    v_add_u32 v168, s53, v168""" % (RED_W,S_RED,RED_RS))
    a("""v_add_u32 v10, 2, v2
    v_cmp_gt_u32 vcc, 2, v2
    s_nop 1
    v_cndmask_b32 v10, v10, v2, vcc
    v_min_u32 v10, 11, v10
    v_and_b32 v11, 1, v3
    s_lshl_b32 s53, s40, 1
    v_add_u32 v11, s53, v11               ; i
    v_mul_u32_u24 v169, %d, v11
    v_lshl_add_u32 v169, v10, 4, v169
    v_add_u32 v169, %d, v169              ; RED read addr
    v_subrev_u32 v10, 2, v2               ; q-2
    v_lshrrev_b32 v170, 1, v10
    v_lshlrev_b32 v170, 7, v170
    v_lshl_add_u32 v170, v11, 4, v170
    v_and_b32 v10, 1, v10
    v_lshl_add_u32 v170, v10, 3, v170     ; x part offset
    v_lshlrev_b32 v10, 6, v2
    v_lshl_add_u32 v10, v11, 3, v10
    v_add_u32 v10, 512, v10               ; mem part offset
    v_cmp_gt_u32 vcc, 2, v2
    s_nop 1
    v_cndmask_b32 v170, v170, v10, vcc
    s_mul_i32 s53, s42, 640
    v_add_u32 v170, s53, v170             ; P store voffset
    v_cmp_gt_u32 s[62:63], 10, v2
    v_cmp_gt_u32 vcc, 32, v1
    s_and_b64 s[62:63], s[62:63], vcc
    v_mov_b32 v46, 0xff7fffff
    s_mov_b32 s68, 0x3fb8aa3b""" % (RED_RS,S_RED))
    a(f"""s_lshl_b32 s76, s40, 13
    s_add_u32 s76, s76, {S_KST}
    v_add_u32 v171, s76, v4""")
    def dma_kx_list():
        out=[]
        for kt in range(2):
            for m in range(4):
                def f(kt=kt,m=m):
                    a(f"s_add_u32 m0, s76, {4096*kt+1024*m - (1024*m if m<3 else 0)}")
                    a(f"s_add_u32 s61, s56, {14*1024*kt}")
                    if m<3: a(f"buffer_load_dwordx4 v166, s[36:39], s61 offen offset:{1024*m} lds")
                    else: a(f"buffer_load_dwordx4 v167, s[36:39], s61 offen lds")
                out.append(f)
        return out
    def rd_kx():
        for kt in range(2):
            for m in range(4):
                a(f"ds_read_b128 {vr(KX+16*kt+4*m,4)}, v171 offset:{4096*kt+1024*m}")
    a(f"s_mov_b32 s56, {XNP}")
    a(f"s_mov_b32 s57, {MEMX}")
    a(f"s_mov_b32 s58, {PX}")
    a("s_mov_b32 s59, 0")
    for f in dma_kx_list(): f()
    a("s_waitcnt vmcnt(0)")
    rd_kx()
    a("s_waitcnt lgkmcnt(0)")
    a(f"s_add_u32 s56, s56, {2*14*1024}")
    a("s_barrier")
    stamp_init(a)
    a.label("SC_LOOP")
    L=LdsQ(a)
    wl={}
    def rd_wl(k):
        buf=WLT+8*(k&1)
        L.issue(f"ds_read_b128 {vr(buf,4)}, v12 offset:{2048*k}")
        wl[k]=L.issue(f"ds_read_b128 {vr(buf+4,4)}, v12 offset:{2048*k+1024}")
    rd_wl(0); rd_wl(1)
    for r in range(28): a(f"v_mov_b32 v{ACC+r}, 0")
    poll_mem2(a, "SC_POLL", "s57", KM, KM+8, 47, S_MEM)
    L.done=L.n
    stamp(a,0)
    aop={}
    for b in range(7): aop[b]=L.issue(f"ds_read_b128 {vr(AOP+4*b,4)}, v4 offset:{S_MEM+1024*b}")
    seq=[]; k=0; nr=0
    for u in range(6):
        for b in range(7):
            seq.append(("r",u,b)); nr+=1
            if nr%3==0 and k<7: seq.append(("l",6,k)); k+=1
    assert k==7 and len(seq)==49
    last={}
    for n,(t,u,b) in enumerate(seq): last[u]=n
    acts={}
    def at(n,f): acts.setdefault(n,[]).append(f)
    trd={}; kmr=[None]; first=[True]
    def km_read():
        a("s_waitcnt vmcnt(0)")
        for m in range(4): kmr[0]=L.issue(f"ds_read_b128 {vr(KM+4*m,4)}, v{162+m} offset:{S_MEM}")
    def cvt_write(u):
        def f():
            a(f"v_cvt_pk_bf16_f32 v{ACC+4*u}, v{ACC+4*u}, v{ACC+4*u+1}")
            a(f"v_cvt_pk_bf16_f32 v{ACC+4*u+1}, v{ACC+4*u+2}, v{ACC+4*u+3}")
            L.issue(f"ds_write_b64 v13, {vr(ACC+4*u,2)} offset:{512*u}")
        return f
    def tr_read(m):
        def f():
            t=TOP+4*(m&1) if m<3 else 172
            if m<3:
                L.issue(f"ds_read_b64_tr_b16 {vr(t,2)}, v15 offset:{1024*m}")
                trd[m]=L.issue(f"ds_read_b64_tr_b16 {vr(t+2,2)}, v14 offset:{1024*m}")
            else:
                L.issue(f"ds_read_b64_tr_b16 {vr(t,2)}, v160 offset:3072")
                trd[m]=L.issue(f"ds_read_b64_tr_b16 {vr(t+2,2)}, v161 offset:3072")
        return f
    def s_mask(m):
        def f():
            t=172
            L.wait(trd[m])
            for r in range(4): a(f"v_and_b32 v{t+r}, v45, v{t+r}")
        return f
    def s_mfma(m):
        def f():
            t=TOP+4*(m&1) if m<3 else 172
            L.wait(kmr[0]); L.wait(trd[m])
            for kt in range(3):
                A = vr(KM+4*m,4) if kt==0 else vr(KX+16*(kt-1)+4*m,4)
                c = "0" if first[0] else vr(SACC+4*kt,4)
                a(f"v_mfma_f32_16x16x32_bf16 {vr(SACC+4*kt,4)}, {A}, {vr(t,4)}, {c}")
            first[0]=False
        return f
    at(10, km_read)
    for i,f in enumerate(dma_kx_list()): at(12+4*i, f)
    for u in range(7):
        if u!=5: at(last[u]+3, cvt_write(u))
    at(last[1]+4, tr_read(0)); at(last[1]+11, s_mfma(0))
    at(last[3]+4, tr_read(1)); at(last[3]+11, s_mfma(1))
    p6=last[6]+4
    at(p6, tr_read(3)); at(p6+6, s_mask(3)); at(p6+8, s_mfma(3))
    assert p6+8 < len(seq), (p6,len(seq))
    for n,(t,u,b) in enumerate(seq):
        if t=="r":
            L.wait(aop[b])
            a(f"v_smfmac_f32_16x16x64_bf16 {vr(ACC+4*u,4)}, {vr(AOP+4*b,4)}, {wfrag(7*u+b)}, v{IDX}")
        else:
            L.wait(wl[b])
            a(f"v_smfmac_f32_16x16x64_bf16 {vr(ACC+24,4)}, {vr(AOP+4*b,4)}, {vr(WLT+8*(b&1),8)}, v{IDX}")
            if b+2<7: rd_wl(b+2)
        for f in acts.get(n,[]): f()
    assert max(acts)<len(seq)
    stamp(a,2)
    a(f"s_add_u32 s56, s56, {2*14*1024}")
    a("s_nop 6")
    cvt_write(5)(); tr_read(2)(); s_mfma(2)()
    a("s_nop 7")
    for kt in range(3): a(f"ds_write_b128 v168, {vr(SACC+4*kt,4)} offset:{64*kt}")
    a("s_waitcnt lgkmcnt(0)")
    stamp(a,4)
    a("s_barrier")
    stamp(a,5)
    T=ACC
    q=lambda k: (T+4*k if k<7 else TOP)
    for w in range(4):
        for hf in range(2):
            a(f"ds_read_b128 {vr(q(2*w+hf),4)}, v169 offset:{RED_W*w+8*RED_RS*hf}")
    def pka(d,x,y):
        for h in (0,2): a(f"v_pk_add_f32 {vr(d+h,2)}, {vr(x+h,2)}, {vr(y+h,2)}")
    a("s_waitcnt lgkmcnt(4)")
    pka(q(0),q(0),q(1)); pka(q(2),q(2),q(3)); pka(q(0),q(0),q(2))
    a("s_waitcnt lgkmcnt(0)")
    pka(q(4),q(4),q(5)); pka(q(6),q(6),q(7)); pka(q(4),q(4),q(6)); pka(q(0),q(0),q(4))
    a(f"v_max3_f32 v{T+4}, v{T}, v{T+1}, v{T+2}")
    a(f"v_max_f32 v{T+4}, v{T+4}, v{T+3}")
    a(f"v_cndmask_b32 v{T+4}, v46, v{T+4}, s[62:63]")
    for rr in (1,2,4,8):
        a("s_nop 1"); a(f"v_max_f32_dpp v{T+4}, v{T+4}, v{T+4} row_ror:{rr} row_mask:0xf bank_mask:0xf")
    a(f"v_mul_f32 v{T+4}, s68, v{T+4}")
    for r in range(4): a(f"v_fma_f32 v{T+r}, v{T+r}, s68, -v{T+4}")
    for r in range(4): a(f"v_exp_f32 v{T+r}, v{T+r}")
    a("s_nop 0")
    a(f"v_add_f32 v{T+5}, v{T}, v{T+1}")
    a(f"v_add_f32 v{T+6}, v{T+2}, v{T+3}")
    a(f"v_add_f32 v{T+5}, v{T+5}, v{T+6}")
    a(f"v_cndmask_b32 v{T+5}, 0, v{T+5}, s[62:63]")
    for rr in (1,2,4,8):
        a("s_nop 1"); a(f"v_add_f32_dpp v{T+5}, v{T+5}, v{T+5} row_ror:{rr} row_mask:0xf bank_mask:0xf")
    a(f"v_rcp_f32 v{T+5}, v{T+5}")
    a("s_nop 0")
    for r in range(4): a(f"v_mul_f32 v{T+r}, v{T+r}, v{T+5}")
    a(f"v_cvt_pk_bf16_f32 v{T+6}, v{T}, v{T+1}")
    a(f"v_cvt_pk_bf16_f32 v{T+7}, v{T+2}, v{T+3}")
    a(f"v_min_u32 v{T+6}, 0xfffffffe, v{T+6}")
    a(f"v_min_u32 v{T+7}, 0xfffffffe, v{T+7}")
    a("s_mov_b64 exec, s[62:63]")
    a(f"buffer_store_dwordx2 {vr(T+6,2)}, v170, s[36:39], s58 offen")
    a("s_mov_b64 exec, -1")
    stamp(a,6)
    a("s_waitcnt vmcnt(1)")
    rd_kx()
    a("""s_add_u32 s57, s57, 7168
    s_add_u32 s58, s58, 10240
    s_add_u32 s59, s59, 1
    s_cmp_lt_u32 s59, %d
    s_cbranch_scc1 SC_LOOP""" % NSTEPS)
    stamp_dump(a,0)
    a("s_endpgm")

V_MEM=0; V_PART=7168; PART_RS=144; PART_W=8*PART_RS; V_WL=V_PART+4*PART_W+64; V_ZST=V_WL+4*28672
ZX=80; PXR=112; PMR=128; OACC=136; VWLT=144; VT=160
def value(a):
    a.label("K2_VALUE")
    chain_common_setup(a)
    a("""v_lshrrev_b32 v9, 1, v3
    v_lshlrev_b32 v9, 10, v9
    v_and_b32 v10, 1, v3
    v_lshl_add_u32 v9, v10, 9, v9
    v_lshl_add_u32 v9, v2, 4, v9
    s_mul_i32 s53, s40, 28672
    s_add_u32 s53, s53, %d
    v_add_u32 v12, s53, v4              ; WL lds addr""" % V_WL)
    for hh in range(4):
        for ct in range(2):
            a(f"""s_lshl_b32 s54, s40, 2
            s_add_u32 s54, s54, {hh}
            s_mul_i32 s54, s54, 14
            s_add_u32 s54, s54, s42
            s_mul_i32 s55, s54, 28*1024
            s_add_u32 s55, s55, {WTB+256*ct}""")
            t=2*hh+ct
            if t<6: load_wtile(a,"s55",9,[7*t+b for b in range(7)])
            else: load_wtile(a,"s55",9,None,(12,14336*(t-6),48))
    a("""v_and_b32 v10, 7, v2
    s_mul_i32 s53, s40, 2560
    v_lshlrev_b32 v13, 7, v3
    v_lshl_add_u32 v13, v10, 4, v13
    v_add_u32 v13, s53, v13              ; P x part: g*128 + i*16
    v_and_b32 v11, 1, v3
    v_lshlrev_b32 v14, 6, v11
    v_lshl_add_u32 v14, v10, 3, v14
    v_add_u32 v14, s53, v14
    v_add_u32 v14, 512, v14""")
    a("""v_and_b32 v10, 7, v2
    v_mul_u32_u24 v%d, %d, v10
    v_lshl_add_u32 v%d, v3, 4, v%d
    s_mul_i32 s53, s40, %d
    s_add_u32 s53, s53, %d
    v_add_u32 v%d, s53, v%d
    v_cmp_gt_u32 s[64:65], 8, v2""" % (VT,PART_RS,VT,VT,PART_W,V_PART,VT,VT))
    a("""v_and_b32 v10, 1, v3
    s_lshl_b32 s53, s40, 1
    v_add_u32 v10, s53, v10              ; i
    v_mul_u32_u24 v%d, %d, v10
    v_lshl_add_u32 v%d, v2, 3, v%d
    v_add_u32 v%d, %d, v%d""" % (VT+1,PART_RS,VT+1,VT+1,VT+1,V_PART,VT+1))
    a("""v_and_b32 v11, 1, v2
    v_lshl_add_u32 v%d, v11, 3, v10
    v_lshrrev_b32 v11, 3, v2
    v_lshl_add_u32 v%d, v11, 4, v%d
    v_lshlrev_b32 v%d, 4, v%d
    v_bfe_u32 v11, v2, 1, 2
    v_lshl_add_u32 v%d, v11, 2, v%d
    s_lshr_b32 s53, s42, 1
    s_lshl_b32 s53, s53, 10
    s_and_b32 s54, s42, 1
    s_lshl_b32 s54, s54, 9
    s_add_u32 s53, s53, s54
    v_add_u32 v%d, s53, v%d
    v_cmp_gt_u32 s[62:63], 32, v1""" % ((VT+2,)*9))
    a("""v_lshlrev_b32 v%d, 4, v2
    v_and_b32 v11, 1, v3
    v_lshl_add_u32 v%d, v11, 3, v%d
    v_lshrrev_b32 v11, 1, v3
    v_lshl_add_u32 v%d, v11, 2, v%d""" % ((VT+3,)*5))
    a(f"""s_mul_i32 s66, s40, 28*1024
    s_lshl_b32 s53, s42, 11
    s_add_u32 s66, s66, s53
    s_add_u32 s66, s66, {MBL}
    s_lshl_b32 s53, s40, 2
    s_mul_i32 s56, s53, 28*1024
    s_lshl_b32 s53, s42, 11
    s_add_u32 s56, s56, s53
    s_add_u32 s56, s56, {VO}
    s_mov_b32 s57, {MEMX}
    s_mov_b32 s58, {PX}
    s_mov_b32 s59, 0
    s_mov_b32 s67, {FLAGS}
    v_mov_b32 v{VT+4}, 0""")
    a(f"""s_lshl_b32 s76, s40, 13
    s_add_u32 s76, s76, {V_ZST}
    v_add_u32 v{VT+6}, s76, v4
    s_mul_i32 s53, s40, {PART_W}
    s_add_u32 s53, s53, {V_PART}
    v_add_u32 v10, s53, v{VT+3}
    v_mov_b32 v15, v10
    v_add_u32 v11, s53, v4
    v_mov_b32 v9, v11""")
    def dma_zx_list():
        out=[]
        for hh in range(4):
            for ct in range(2):
                def f(hh=hh,ct=ct):
                    a(f"s_add_u32 m0, s76, {2048*hh}")
                    a(f"s_add_u32 s61, s56, {28*1024*hh}")
                    a(f"buffer_load_dwordx4 v4, s[36:39], s61 offen offset:{1024*ct} lds")
                out.append(f)
        return out
    def rd_zx():
        for hh in range(4):
            for ct in range(2):
                a(f"ds_read_b128 {vr(ZX+8*hh+4*ct,4)}, v{VT+6} offset:{2048*hh+1024*ct}")
    def wait_vo(tag):
        a.label(tag)
        spin_guard(a)
        a(f"buffer_load_dword v{VT+7}, v{VT+4}, s[36:39], s67 offen sc1")
        a("s_waitcnt vmcnt(0)")
        a(f"v_cmp_gt_u32 vcc, 56, v{VT+7}")
        a(f"s_cbranch_vccnz {tag}")
        a("s_add_u32 s67, s67, 128")
    wait_vo("VA_WVO0")
    for f in dma_zx_list(): f()
    a("s_waitcnt vmcnt(0)")
    rd_zx()
    a("s_waitcnt lgkmcnt(0)")
    a(f"s_add_u32 s56, s56, {16*28*1024}")
    a("s_barrier")
    stamp_init(a)
    SEL=172
    a("""v_and_b32 v10, 7, v2                   ; key
    v_lshrrev_b32 v11, 3, v2               ; hd'
    v_lshrrev_b32 v16, 2, v10              ; key>>2
    v_and_b32 v17, 1, v3
    v_cmp_eq_u32 vcc, v16, v17             ; cond
    v_and_b32 v16, 3, v10
    v_lshl_add_u32 v16, v11, 2, v16
    v_and_b32 v17, 1, v16
    v_lshlrev_b32 v17, 4, v17
    v_mov_b32 v18, 0x3f80
    v_lshlrev_b32 v18, v17, v18
    v_cndmask_b32 v18, 0, v18, vcc
    v_lshrrev_b32 v16, 1, v16""")
    for r in range(4):
        a(f"v_cmp_eq_u32 vcc, {r}, v16")
        a("s_nop 1")
        a(f"v_cndmask_b32 v{SEL+r}, 0, v18, vcc")
    a(f"""v_lshrrev_b32 v10, 1, v3
    v_lshl_add_u32 v10, v10, 4, v2
    v_lshlrev_b32 v10, 4, v10
    v_and_b32 v11, 1, v3
    v_lshl_add_u32 v{VT+3}, v11, 3, v10""")
    a.label("VA_LOOP")
    L=LdsQ(a)
    wl={}
    def rd_wl(k):
        buf=VWLT+8*(k&1)
        off=14336*(k//7)+2048*(k%7)
        L.issue(f"ds_read_b128 {vr(buf,4)}, v12 offset:{off}")
        wl[k]=L.issue(f"ds_read_b128 {vr(buf+4,4)}, v12 offset:{off+1024}")
    rd_wl(0); rd_wl(1)
    for r in range(32): a(f"v_mov_b32 v{ACC+r}, 0")
    poll_mem2(a, "VA_POLL", "s57", PXR, PXR+8, VT+7, V_MEM)
    L.done=L.n
    stamp(a,0)
    aop={}
    for b in range(7): aop[b]=L.issue(f"ds_read_b128 {vr(AOP+4*b,4)}, v4 offset:{V_MEM+1024*b}")
    a("""s_and_b32 s60, s59, 3
    s_cmp_eq_u32 s60, 3
    s_cbranch_scc0 VA_NOW
    s_cmp_ge_u32 s59, 60
    s_cbranch_scc1 VA_NOW""")
    wait_vo("VA_WVO")
    a.label("VA_NOW")
    dz=dma_zx_list()
    k=0; nr=0
    for t in range(6):
        for b in range(7):
            L.wait(aop[b])
            a(f"v_smfmac_f32_16x16x64_bf16 {vr(ACC+4*t,4)}, {vr(AOP+4*b,4)}, {wfrag(7*t+b)}, v{IDX}")
            nr+=1
            if nr%4==2 and dz: dz.pop(0)()
            if nr%3==0:
                L.wait(wl[k])
                a(f"v_smfmac_f32_16x16x64_bf16 {vr(ACC+4*(6+k//7),4)}, {vr(AOP+4*(k%7),4)}, {vr(VWLT+8*(k&1),8)}, v{IDX}")
                if k+2<14: rd_wl(k+2)
                k+=1
    assert k==14
    a("s_nop 7")
    stamp(a,3)
    for pp in range(2):
        for ct in range(2):
            x=ACC+4*(4*pp+ct); y=ACC+4*(4*pp+2+ct)
            a(f"v_cvt_pk_bf16_f32 v{x}, v{x}, v{x+1}")
            a(f"v_cvt_pk_bf16_f32 v{x+1}, v{x+2}, v{x+3}")
            a(f"v_cvt_pk_bf16_f32 v{x+2}, v{y}, v{y+1}")
            a(f"v_cvt_pk_bf16_f32 v{x+3}, v{y+2}, v{y+3}")
    a("s_nop 1")
    for pp in range(2):
        for ct in range(2):
            x=ACC+4*(4*pp+ct); y=ACC+4*(4*pp+2+ct)
            a(f"v_mfma_f32_16x16x32_bf16 {vr(y,4)}, {vr(SEL,4)}, {vr(x,4)}, 0")
    a("s_nop 4")
    for pp in range(2):
        for ct in range(2):
            y=ACC+4*(4*pp+2+ct)
            a(f"v_cvt_pk_bf16_f32 v{y}, v{y}, v{y+1}")
            a(f"v_cvt_pk_bf16_f32 v{y+1}, v{y+2}, v{y+3}")
            a(f"buffer_store_dwordx2 {vr(y,2)}, v{VT+3}, s[36:39], s66 offen offset:{1024*ct+512*pp}")
    a(f"s_add_u32 s66, s66, {4*28*1024}")
    a(f"s_cmp_eq_u32 s59, {NSTEPS}")
    a("s_cbranch_scc1 VA_END")
    stamp(a,4)
    if PROF==2:
        a("s_waitcnt vmcnt(4)")
        stamp(a,11)
        a("s_waitcnt vmcnt(0)")
        stamp(a,12)
    SA=(PXR,PMR); SB=(AOP,AOP+16)
    def issue(S):
        for hh in range(4):
            a(f"buffer_load_dwordx4 {vr(S[0]+4*hh,4)}, v13, s[36:39], s58 offen offset:{640*hh} sc1")
            a(f"buffer_load_dwordx2 {vr(S[1]+2*hh,2)}, v14, s[36:39], s58 offen offset:{640*hh} sc1")
    def check(S):
        t=VT+7
        regs=[S[0]+i for i in range(16)]+[S[1]+i for i in range(8)]
        a(f"v_max3_u32 v{t}, v{regs[0]}, v{regs[1]}, v{regs[2]}")
        for i in range(3,23,2): a(f"v_max3_u32 v{t}, v{t}, v{regs[i]}, v{regs[i+1]}")
        a(f"v_max_u32 v{t}, v{t}, v{regs[23]}")
        a(f"v_cmp_eq_u32 vcc, -1, v{t}")
    a("s_mov_b64 exec, s[64:65]")
    issue(SA)
    a("s_nop 15"); a("s_nop 15")
    issue(SB)
    a.label("VA_POLLP")
    spin_guard(a)
    if PROF: a("s_add_u32 s90, s90, 63")
    a("s_waitcnt vmcnt(8)")
    check(SA)
    a("s_cbranch_vccz VA_PA")
    issue(SA)
    a("s_waitcnt vmcnt(8)")
    check(SB)
    a("s_cbranch_vccz VA_PB")
    issue(SB)
    a("s_branch VA_POLLP")
    for nm,S in (("PA",SA),("PB",SB)):
        a.label("VA_"+nm)
        a("s_mov_b64 exec, -1")
        fst=[True,True]
        for hh in range(4):
            for ct in range(2):
                c="0" if fst[ct] else vr(OACC+4*ct,4); fst[ct]=False
                a(f"v_mfma_f32_16x16x32_bf16 {vr(OACC+4*ct,4)}, {vr(ZX+8*hh+4*ct,4)}, {vr(S[0]+4*hh,4)}, {c}")
        for pp in range(2):
            for ct in range(2):
                a(f"v_mfma_f32_16x16x32_bf16 {vr(OACC+4*ct,4)}, {vr(ACC+4*(4*pp+ct),4)}, {vr(S[1]+4*pp,4)}, {vr(OACC+4*ct,4)}")
        if nm=="PA": a("s_branch VA_PJ")
    a.label("VA_PJ")
    stamp(a,5)
    a(f"""s_add_u32 s57, s57, 7168
    s_add_u32 s56, s56, {16*28*1024}
    s_add_u32 s58, s58, 10240
    s_add_u32 s59, s59, 1
    s_mov_b64 exec, s[64:65]
    s_nop 2""")
    for ct in range(2): a(f"ds_write_b128 v{VT}, {vr(OACC+4*ct,4)} offset:{64*ct}")
    a("s_mov_b64 exec, -1")
    a("s_waitcnt lgkmcnt(0)")
    a("s_barrier")
    stamp(a,6)
    T=ZX
    for w in range(4): a(f"ds_read_b64 {vr(T+2*w,2)}, v{VT+1} offset:{PART_W*w}")
    a("s_waitcnt lgkmcnt(2)")
    a(f"v_pk_add_f32 {vr(T,2)}, {vr(T,2)}, {vr(T+2,2)}")
    a("s_waitcnt lgkmcnt(0)")
    a(f"v_pk_add_f32 {vr(T+4,2)}, {vr(T+4,2)}, {vr(T+6,2)}")
    a(f"v_pk_add_f32 {vr(T,2)}, {vr(T,2)}, {vr(T+4,2)}")
    a(f"v_cvt_pk_bf16_f32 v{VT+5}, v{T}, v{T+1}")
    a(f"v_min_u32 v{VT+5}, 0xfffffffe, v{VT+5}")
    a("s_mov_b64 exec, s[62:63]")
    a(f"buffer_store_dword v{VT+5}, v{VT+2}, s[36:39], s57 offen")
    a("s_mov_b64 exec, -1")
    stamp(a,7)
    a("s_waitcnt vmcnt(1)")
    rd_zx()
    stamp(a,8)
    a("s_branch VA_LOOP")
    a.label("VA_END")
    a("""s_waitcnt vmcnt(0)
    s_barrier
    s_add_u32 s57, s57, 7168
    v_mov_b32 v%d, 0
    s_mov_b64 exec, s[62:63]
    buffer_store_dword v%d, v%d, s[36:39], s57 offen
    s_mov_b64 exec, -1""" % (VT+5,VT+5,VT+2))
    stamp_dump(a,16)
    a("s_endpgm")

def helper(a):
    a.label("K2_HELPER")
    a("""v_lshlrev_b32 v5, 4, v0                 ; chunk t
    v_add_u32 v6, 4096, v5
    v_cmp_gt_u32 vcc, 192, v0
    s_nop 1
    v_cndmask_b32 v6, v5, v6, vcc
    v_lshlrev_b32 v4, 4, v1
    s_lshl_b32 s48, s42, 2
    s_add_u32 s48, s48, s40                 ; copy slot 0..7 : 14 KB each
    s_mul_i32 s48, s48, 14336
    s_add_u32 s56, s48, %d                  ; src
    s_add_u32 s58, s48, %d                  ; dst
    s_mov_b32 s57, %d                       ; MEMX[s+1]
    s_mov_b32 s59, 0
    s_mov_b32 s67, %d                       ; CH flags
    v_mov_b32 v7, 0
    v_mov_b32 v8, 1""" % (MBL, MB, MEMX+7168, FLAGS+128*32))
    a(f"s_mov_b32 s61, {PX}")
    for j in range(8):
        a(f"buffer_load_dwordx4 {vr(96+4*j,4)}, v5, s[36:39], s61 offen sc1"); a("s_add_u32 s61, s61, 4096")
    a(f"s_mov_b32 s61, {MEMX+7168}")
    for j in range(7):
        a(f"buffer_load_dwordx4 {vr(96+4*j,4)}, v5, s[36:39], s61 offen sc1"); a("s_add_u32 s61, s61, 4096")
    a(f"s_mov_b32 s62, {PX+3*10240}")
    a.label("HE_LOOP")
    a("""buffer_load_dwordx4 v[96:99], v5, s[36:39], s62 offen sc1
    buffer_load_dwordx4 v[100:103], v5, s[36:39], s62 offen offset:4080 sc1
    s_add_u32 s61, s62, 8176
    buffer_load_dwordx4 v[104:107], v5, s[36:39], s61 offen sc1
    s_add_u32 s61, s57, 4*7168
    buffer_load_dwordx4 v[108:111], v5, s[36:39], s61 offen sc1
    buffer_load_dwordx4 v[112:115], v5, s[36:39], s61 offen offset:4080 sc1
    s_add_u32 s62, s62, 10240""")
    a.label("HE_POLL")
    spin_guard(a)
    a("""buffer_load_dwordx4 v[16:19], v5, s[36:39], s57 offen sc1
    buffer_load_dwordx4 v[20:23], v6, s[36:39], s57 offen sc1
    s_waitcnt vmcnt(0)
    v_max3_u32 v9, v16, v17, v18
    v_max3_u32 v9, v9, v19, v20
    v_max3_u32 v9, v9, v21, v22
    v_max_u32 v9, v9, v23
    v_cmp_eq_u32 vcc, -1, v9
    s_cbranch_vccnz HE_POLL
    s_barrier""")
    for j in range(14):
        a(f"s_add_u32 s60, s56, {1024*(j&~3)}")
        a(f"buffer_load_dwordx4 {vr(32+4*j,4)}, v4, s[36:39], s60 offen offset:{1024*(j&3)} sc1")
    a("s_cmp_eq_u32 s42, 0")
    a("s_cbranch_scc0 HE_NOMEM")
    a(f"s_add_u32 s60, s57, {MEMN-MEMX}")
    a("buffer_store_dwordx4 v[16:19], v5, s[36:39], s60 offen sc1")
    a("buffer_store_dwordx4 v[20:23], v6, s[36:39], s60 offen sc1")
    a.label("HE_NOMEM")
    a("s_waitcnt vmcnt(0)")
    for j in range(14):
        a(f"s_add_u32 s60, s58, {1024*(j&~3)}")
        a(f"buffer_store_dwordx4 {vr(32+4*j,4)}, v4, s[36:39], s60 offen offset:{1024*(j&3)} sc1")
    a("""s_waitcnt vmcnt(0)
    s_barrier
    s_cmp_eq_u32 s40, 0
    s_cbranch_scc0 HE_NOF
    s_mov_b64 exec, 1
    buffer_atomic_add v8, v7, s[36:39], s67 offen
    s_mov_b64 exec, -1""")
    a.label("HE_NOF")
    a(f"""s_add_u32 s56, s56, {4*28*1024}
    s_add_u32 s58, s58, {4*28*1024}
    s_add_u32 s57, s57, 7168
    s_add_u32 s67, s67, 128
    s_add_u32 s59, s59, 1
    s_cmp_lt_u32 s59, 64
    s_cbranch_scc1 HE_LOOP
    s_endpgm""")

def k2():
    a=Asm()
    a("s_cmp_ge_u32 s2, 256"); a("s_cbranch_scc1 K2_EXIT")
    prologue(a)
    srd(a,44,32,256)
    a("s_mov_b32 s99, 3000000")
    a("""s_getreg_b32 s41, hwreg(HW_REG_XCC_ID)
    s_and_b32 s41, s41, 7
    s_cmp_eq_u32 s40, 0
    s_cbranch_scc0 K2_WAITROLE
    s_mov_b64 exec, 1
    v_mov_b32 v2, s41
    v_lshlrev_b32 v2, 2, v2
    v_mov_b32 v3, 1
    buffer_atomic_add v3, v2, s[44:47], 0 offen sc0
    s_waitcnt vmcnt(0)
    v_cmp_eq_u32 vcc, 31, v3
    s_cbranch_vccz K2_POLLCH
    v_mov_b32 v4, s41
    v_add_u32 v4, 1, v4
    v_mov_b32 v5, 0
    v_mov_b32 v2, 32
    buffer_atomic_cmpswap v[4:5], v2, s[44:47], 0 offen
    s_waitcnt vmcnt(0)""")
    a.label("K2_POLLCH")
    spin_guard(a)
    a("""v_mov_b32 v2, 32
    buffer_load_dword v4, v2, s[44:47], 0 offen sc1
    s_waitcnt vmcnt(0)
    v_cmp_eq_u32 vcc, 0, v4
    s_cbranch_vccnz K2_POLLCH
    v_mov_b32 v2, 0
    v_mov_b32 v6, v3
    v_mov_b32 v7, v4
    ds_write_b64 v2, v[6:7]
    s_waitcnt lgkmcnt(0)
    s_mov_b64 exec, -1""")
    a.label("K2_WAITROLE")
    a("""s_barrier
    v_mov_b32 v2, 0
    ds_read_b64 v[4:5], v2
    s_waitcnt lgkmcnt(0)
    v_readfirstlane_b32 s42, v4
    v_readfirstlane_b32 s43, v5
    s_barrier
    s_sub_u32 s43, s43, 1
    s_cmp_eq_u32 s41, s43
    s_cbranch_scc0 K2_WORKER
    s_cmp_lt_u32 s42, 16
    s_cbranch_scc1 K2_SCORE
    s_cmp_lt_u32 s42, 30
    s_cbranch_scc0 K2_H0
    s_sub_u32 s42, s42, 16
    s_branch K2_VALUE""")
    a.label("K2_H0")
    a("""s_cmp_lt_u32 s42, 32
    s_cbranch_scc0 K2_WORKER
    s_sub_u32 s42, s42, 30
    s_branch K2_HELPER""")
    a.label("K2_EXIT"); a("s_endpgm")
    a.label("K2_ABORT")
    a("""s_mov_b64 exec, 1
    v_mov_b32 v2, 60
    v_mov_b32 v3, 1
    buffer_atomic_add v3, v2, s[44:47], 0 offen
    s_endpgm""")
    score(a); value(a); helper(a)
    a.label("K2_WORKER")
    try:
        import gen3
        gen3.worker(a)
    except ImportError:
        a("s_endpgm")
    return a.text()

def kernels():
    ks=[("k2_kernel",k2(),256,256,V_ZST+32768,512,256)]
    try:
        import gen3
        ks+=gen3.kernels()
    except ImportError: pass
    return ks
```

```python
from gen import *
import os

def gemm_wave(a, MI, NI, KS, sA, strideA, sB, strideB, vlane, bufA, bufB, modsB="", modsA="", CH=4):
    nch=KS//CH
    assert KS%CH==0
    tmp="s60"
    def ldA(mi,c):
        for k in range(CH):
            off=(c*CH+k)*1024
            a(f"s_add_u32 {tmp}, {sA}, {mi*strideA+(off//4096)*4096}")
            a(f"buffer_load_dwordx4 {vr(bufA+(mi*CH+k)*4,4)}, v{vlane}, s[36:39], {tmp} offen offset:{off%4096} {modsA}")
    def ldB(ni,c):
        for k in range(CH):
            off=(c*CH+k)*1024
            a(f"s_add_u32 {tmp}, {sB}, {ni*strideB+(off//4096)*4096}")
            a(f"buffer_load_dwordx4 {vr(bufB+((c&1)*NI*CH+ni*CH+k)*4,4)}, v{vlane}, s[36:39], {tmp} offen offset:{off%4096} {modsB}")
    q=[]
    def issue(tag,n): q.extend([tag]*n)
    def wait(tag):
        idx=max(i for i,t in enumerate(q) if t==tag)
        n=len(q)-1-idx
        a(f"s_waitcnt vmcnt({min(n,63)})")
    for ni in range(NI): ldB(ni,0); issue(("B",0),CH)
    for mi in range(MI): ldA(mi,0); issue(("A",mi,0),CH)
    for c in range(nch):
        if c+1<nch:
            pass
        for mi in range(MI):
            if mi==0: wait(("B",c))
            wait(("A",mi,c))
            for k in range(CH):
                for ni in range(NI):
                    acc=ar(16*(mi*NI+ni),16)
                    cc="0" if (c==0 and k==0) else acc
                    a(f"v_mfma_f32_32x32x16_bf16 {acc}, {vr(bufA+(mi*CH+k)*4,4)}, {vr(bufB+((c&1)*NI*CH+ni*CH+k)*4,4)}, {cc}")
            if c+1<nch:
                per=-(-NI//min(MI,2))
                for ni in range(mi*per, min(NI,(mi+1)*per)):
                    ldB(ni,c+1); issue(("B",c+1),CH)
                ldA(mi,c+1); issue(("A",mi,c+1),CH)

def acc_read(a, dst, mi, ni, NI, n=16):
    for r in range(n): a(f"v_accvgpr_read_b32 v{dst+r}, a{16*(mi*NI+ni)+r}")

NQ=7
def worker(a):
    a("""s_cmp_gt_u32 s41, s43
    s_cselect_b32 s48, 1, 0
    s_sub_u32 s48, s41, s48
    s_min_u32 s48, s48, 6
    s_mov_b32 s49, 0
    v_lshlrev_b32 v4, 4, v1            ; lane*16
    v_and_b32 v2, 31, v1
    v_lshrrev_b32 v3, 5, v1            ; hi""")
    a("""v_lshrrev_b32 v5, 4, v2
    v_and_b32 v6, 15, v2
    v_lshlrev_b32 v6, 4, v6
    v_lshl_add_u32 v6, v3, 3, v6""")
    a.label("W_NEXT")
    a("""s_mov_b64 exec, 1
    s_lshl_b32 s50, s48, 2
    s_add_u32 s50, s50, 64
    v_mov_b32 v8, s50
    v_mov_b32 v9, 1
    buffer_atomic_add v9, v8, s[44:47], 0 offen sc0
    s_waitcnt vmcnt(0)
    v_readfirstlane_b32 s51, v9
    s_mov_b64 exec, -1
    s_cmp_lt_u32 s51, 256
    s_cbranch_scc1 W_GOT
    s_add_u32 s48, s48, 1
    s_cmp_ge_u32 s48, 7
    s_cselect_b32 s48, 0, s48
    s_add_u32 s49, s49, 1
    s_cmp_lt_u32 s49, 7
    s_cbranch_scc1 W_NEXT
    s_endpgm""")
    a.label("W_GOT")
    a("""s_lshr_b32 s52, s51, 7
    s_and_b32 s53, s51, 127
    s_lshr_b32 s54, s53, 3             ; rb
    s_and_b32 s53, s53, 7
    s_lshl_b32 s55, s48, 3
    s_add_u32 s55, s55, s53            ; ct128 (0..55)
    s_mul_i32 s56, s54, 4*28*1024      ; XN offset: rt32 = 4rb
    s_add_u32 s56, s56, %d
    s_mul_i32 s57, s55, 4*28*1024      ; W rows: rt32 = 4*ct128
    s_cmp_eq_u32 s52, 0
    s_cbranch_scc0 W_T""" % XN)
    a(f"s_add_u32 s57, s57, {WTB}")
    gemm_wave(a,4,4,28,"s56",28*1024,"s57",28*1024,4,bufA=16,bufB=80)
    a("v_lshl_add_u32 v7, v5, 10, v6")
    a("s_nop 7"); a("s_nop 7")
    for ni in range(4):
        a(f"""s_lshl_b32 s58, s55, 2
        s_add_u32 s58, s58, {ni}
        s_mul_i32 s59, s58, 4682
        s_lshr_b32 s59, s59, 16            ; h = R/14
        s_mul_i32 s61, s59, 14
        s_sub_u32 s61, s58, s61            ; dt32
        s_mul_i32 s59, s59, 28
        s_lshl_b32 s61, s61, 1
        s_add_u32 s59, s59, s61
        s_lshl_b32 s61, s54, 2
        s_mul_i32 s61, s61, 16*28
        s_add_u32 s59, s59, s61
        s_lshl_b32 s59, s59, 10
        s_add_u32 s59, s59, {VO}""")
        for mi in range(4):
            acc_read(a, 16, mi, ni, 4)
            for j in range(4):
                a(f"v_cvt_pk_bf16_f32 v{32+2*j}, v{16+4*j}, v{17+4*j}")
                a(f"v_cvt_pk_bf16_f32 v{33+2*j}, v{18+4*j}, v{19+4*j}")
            a(f"s_add_u32 s61, s59, {mi*16*28*1024}")
            for j in range(4):
                a(f"buffer_store_dwordx2 {vr(32+2*j,2)}, v7, s[36:39], s61 offen offset:{256*j} sc1")
    a(f"""s_waitcnt vmcnt(0)
    s_lshl_b32 s58, s54, 7
    s_add_u32 s58, s58, {FLAGS}
    s_mov_b64 exec, 1
    v_mov_b32 v8, 0
    v_mov_b32 v9, 1
    buffer_atomic_add v9, v8, s[36:39], s58 offen
    s_mov_b64 exec, -1
    s_branch W_NEXT""")
    a.label("W_T")
    a(f"s_add_u32 s57, s57, {WTA}")
    gemm_wave(a,4,4,28,"s57",28*1024,"s56",28*1024,4,bufA=16,bufB=80)
    a("""v_mul_u32_u24 v7, 16*14*1024, v5
    v_add_u32 v7, v7, v6""")
    a("s_nop 7"); a("s_nop 7")
    for mi in range(4):
        a(f"""s_lshl_b32 s58, s55, 2
        s_add_u32 s58, s58, {mi}
        s_mul_i32 s59, s58, 4682
        s_lshr_b32 s59, s59, 16            ; h
        s_mul_i32 s61, s59, 14
        s_sub_u32 s61, s58, s61            ; ks32
        s_mul_i32 s59, s59, 14
        s_add_u32 s59, s59, s61
        s_lshl_b32 s61, s54, 3
        s_mul_i32 s61, s61, 16*14
        s_add_u32 s59, s59, s61
        s_lshl_b32 s59, s59, 10
        s_add_u32 s59, s59, {TX}""")
        for ni in range(4):
            acc_read(a, 16, mi, ni, 4)
            for j in range(4):
                a(f"v_cvt_pk_bf16_f32 v{32+2*j}, v{16+4*j}, v{17+4*j}")
                a(f"v_cvt_pk_bf16_f32 v{33+2*j}, v{18+4*j}, v{19+4*j}")
            a(f"s_add_u32 s61, s59, {ni*2*16*14*1024}")
            for j in range(4):
                a(f"buffer_store_dwordx2 {vr(32+2*j,2)}, v7, s[36:39], s61 offen offset:{256*j}")
    a("s_branch W_NEXT")

def kernels():
    try:
        import gen4
        return gen4.kernels()
    except ImportError:
        return []
```

```python
from gen import *
from gen3 import gemm_wave, acc_read
import os

def xlane_reduce(a, v, t, op):
    a(f"v_mov_b32 v{t}, v{v}")
    a("s_nop 1")
    a(f"v_permlane16_swap_b32 v{v}, v{t}")
    a("s_nop 1")
    a(f"{op} v{v}, v{v}, v{t}")
    a(f"v_mov_b32 v{t}, v{v}")
    a("s_nop 1")
    a(f"v_permlane32_swap_b32 v{v}, v{t}")
    a("s_nop 1")
    a(f"{op} v{v}, v{v}, v{t}")

def t3s_body(a, sseg, sh, tag):
    a(f"""v_and_b32 v2, 15, v1
    v_lshrrev_b32 v3, 4, v1
    v_lshlrev_b32 v4, 4, v1
    v_and_b32 v5, 7, v2
    v_lshl_add_u32 v5, v3, 4, v5
    v_lshlrev_b32 v5, 4, v5                 ; ((j&7)+16g)*16
    s_mul_i32 s50, {sseg}, 7168
    s_add_u32 s50, s50, {MEMN}
    s_mul_i32 s51, {sseg}, 2*14*1024
    s_add_u32 s51, s51, {XNP}
    s_lshl_b32 s52, {sseg}, 5               ; 2seg*16
    s_add_u32 s52, s52, {sh}
    s_mul_i32 s52, s52, 14*1024
    s_add_u32 s52, s52, {TX}""")
    ACC=8
    B0=32
    for half in range(2):
        for k in range(7):
            ks=7*half+k; b=B0+20*k
            a(f"s_add_u32 s60, s50, {(ks>>1)*1024+(ks&1)*128}")
            a(f"buffer_load_dwordx4 {vr(b,4)}, v5, s[36:39], s60 offen sc1")
            a(f"s_add_u32 s60, s51, {ks*1024}")
            a(f"buffer_load_dwordx4 {vr(b+4,4)}, v4, s[36:39], s60 offen")
            a(f"s_add_u32 s60, s51, {(14+ks)*1024}")
            a(f"buffer_load_dwordx4 {vr(b+8,4)}, v4, s[36:39], s60 offen")
            a(f"s_add_u32 s60, s52, {ks*1024}")
            a(f"buffer_load_dwordx4 {vr(b+12,4)}, v4, s[36:39], s60 offen")
            a(f"s_add_u32 s60, s52, {(16*14+ks)*1024}")
            a(f"buffer_load_dwordx4 {vr(b+16,4)}, v4, s[36:39], s60 offen")
        for k in range(7):
            ks=7*half+k; b=B0+20*k
            a(f"s_waitcnt vmcnt({5*(6-k)})")
            for kt in range(3):
                for tt in range(2):
                    d=ACC+(kt*2+tt)*4
                    c="0" if ks==0 else vr(d,4)
                    a(f"v_mfma_f32_16x16x32_bf16 {vr(d,4)}, {vr(b+4*kt,4)}, {vr(b+12+4*tt,4)}, {c}")
    a("s_nop 7")
    a("v_mov_b32 v6, 0xff7fffff")
    a("s_mov_b32 s53, 0x3fb8aa3b")
    a(f"""v_lshrrev_b32 v7, 1, v3
    v_lshl_add_u32 v7, v7, 4, v2
    v_lshlrev_b32 v7, 4, v7
    v_and_b32 v200, 1, v3
    v_lshl_add_u32 v7, v200, 3, v7
    s_and_b32 s54, {sh}, 3
    s_lshl_b32 s54, s54, 8
    v_lshlrev_b32 v201, 4, v2
    v_lshl_add_u32 v201, v3, 3, v201
    v_add_u32 v201, s54, v201
    s_lshl_b32 s55, {sseg}, 4
    s_add_u32 s55, s55, {sh}
    s_lshl_b32 s55, s55, 11
    s_add_u32 s55, s55, {PTX}
    s_lshl_b32 s56, {sseg}, 2
    s_lshr_b32 s57, {sh}, 2
    s_add_u32 s56, s56, s57
    s_lshl_b32 s56, s56, 11
    s_add_u32 s56, s56, {PTM}
    v_cmp_gt_u32 s[58:59], 2, v3            ; g<2
    v_lshlrev_b32 v33, 2, v3                ; 4g""")
    for tt in range(2):
        vals=[ACC+(kt*2+tt)*4+r for kt in range(3) for r in range(4)]
        for r in range(4): a(f"v_cndmask_b32 v{vals[r]}, v6, v{vals[r]}, s[58:59]")
        a(f"v_add_u32 v32, {16*tt}, v2")
        for kt in (1,2):
            for r in range(4):
                a(f"v_add_u32 v34, {16*(kt-1)+r}, v33")
                a(f"v_cmp_le_u32 vcc, v34, v32")
                a("s_nop 1")
                a(f"v_cndmask_b32 v{vals[4*kt+r]}, v6, v{vals[4*kt+r]}, vcc")
        a(f"v_max3_f32 v35, v{vals[0]}, v{vals[1]}, v{vals[2]}")
        for i in range(3,11,2): a(f"v_max3_f32 v35, v35, v{vals[i]}, v{vals[i+1]}")
        a(f"v_max_f32 v35, v35, v{vals[11]}")
        xlane_reduce(a,35,36,"v_max_f32")
        a("v_mul_f32 v35, s53, v35")
        for v in vals:
            a(f"v_fma_f32 v{v}, v{v}, s53, -v35")
            a(f"v_exp_f32 v{v}, v{v}")
        a("s_nop 0")
        a(f"v_add_f32 v36, v{vals[0]}, v{vals[1]}")
        for v in vals[2:]: a(f"v_add_f32 v36, v36, v{v}")
        xlane_reduce(a,36,37,"v_add_f32")
        a("v_rcp_f32 v36, v36")
        a("s_nop 0")
        for v in vals: a(f"v_mul_f32 v{v}, v{v}, v36")
        for kt in range(3):
            a(f"v_cvt_pk_bf16_f32 v{38+2*kt}, v{vals[4*kt]}, v{vals[4*kt+1]}")
            a(f"v_cvt_pk_bf16_f32 v{39+2*kt}, v{vals[4*kt+2]}, v{vals[4*kt+3]}")
        a(f"buffer_store_dwordx2 v[40:41], v7, s[36:39], s55 offen offset:{1024*tt} sc1")
        a(f"buffer_store_dwordx2 v[42:43], v7, s[36:39], s55 offen offset:{1024*tt+512} sc1")
        a("s_mov_b64 exec, s[58:59]")
        a(f"buffer_store_dwordx2 v[38:39], v201, s[36:39], s56 offen offset:{1024*tt} sc1")
        a("s_mov_b64 exec, -1")
        a("s_nop 1")

def k3():
    a=Asm()
    a("s_cmp_ge_u32 s2, 256"); a("s_cbranch_scc1 K3_EXIT")
    prologue(a)
    a("""s_lshl_b32 s41, s2, 2
    s_add_u32 s41, s41, s40        ; task
    s_lshr_b32 s42, s41, 4         ; seg
    s_and_b32 s43, s41, 15         ; head""")
    t3s_body(a,"s42","s43","K3")
    a.label("K3_EXIT"); a("s_endpgm")
    return a.text()

def t3v_body(a, sseg, scg):
    a(f"""v_and_b32 v2, 15, v1
    v_lshrrev_b32 v3, 4, v1
    v_lshlrev_b32 v4, 4, v1
    s_lshl_b32 s50, {scg}, 2
    s_lshl_b32 s51, {sseg}, 2
    s_mul_i32 s51, s51, 28
    s_add_u32 s51, s51, s50
    s_lshl_b32 s51, s51, 10
    s_add_u32 s51, s51, {MB}
    s_lshl_b32 s52, {sseg}, 4
    s_mul_i32 s52, s52, 28
    s_add_u32 s52, s52, s50
    s_lshl_b32 s52, s52, 10
    s_add_u32 s52, s52, {VO}
    s_lshl_b32 s53, {sseg}, 13
    s_add_u32 s53, s53, {PTM}
    s_lshl_b32 s54, {sseg}, 15
    s_add_u32 s54, s54, {PTX}               ; + h*2K + tt*1K""")
    B0=16
    def ld(hq):
        base=B0+120*(hq&1)
        for st in range(5):
            b=base+24*st
            if st==0:
                a(f"s_add_u32 s60, s51, {hq*28*1024}")
                a(f"s_add_u32 s61, s53, {hq*2048}")
            else:
                h=4*hq+st-1
                a(f"s_add_u32 s60, s52, {h*28*1024}")
                a(f"s_add_u32 s61, s54, {h*2048}")
            for dt in range(4): a(f"buffer_load_dwordx4 {vr(b+4*dt,4)}, v4, s[36:39], s60 offen offset:{1024*dt} sc1")
            for tt in range(2): a(f"buffer_load_dwordx4 {vr(b+16+4*tt,4)}, v4, s[36:39], s61 offen offset:{1024*tt} sc1")
    ld(0)
    for hq in range(4):
        if hq<3: ld(hq+1)
        base=B0+120*(hq&1)
        for st in range(5):
            b=base+24*st
            rem=(30 if hq<3 else 0)+6*(4-st)
            a(f"s_waitcnt vmcnt({rem})")
            for dt in range(4):
                for tt in range(2):
                    acc=ar(4*(dt*2+tt),4)
                    c="0" if (hq==0 and st==0) else acc
                    a(f"v_mfma_f32_16x16x32_bf16 {acc}, {vr(b+4*dt,4)}, {vr(b+16+4*tt,4)}, {c}")
    srd(a,44,8,2048*896)
    a(f"""v_mul_u32_u24 v5, 896, v2
    v_lshl_add_u32 v5, v3, 3, v5
    s_mul_i32 s55, {sseg}, 32*896
    s_lshl_b32 s56, {scg}, 7
    s_add_u32 s55, s55, s56""")
    for tt in range(2):
        for dt in range(4):
            a(f"s_add_u32 s60, s55, {tt*16*896}")
            a(f"buffer_load_dwordx2 {vr(16+2*(tt*4+dt),2)}, v5, s[44:47], s60 offen offset:{32*dt}")
    a(f"""v_lshrrev_b32 v6, 1, v3
    v_lshl_add_u32 v6, v6, 5, v2
    v_lshlrev_b32 v6, 4, v6
    v_and_b32 v7, 1, v3
    v_lshl_add_u32 v6, v7, 3, v6
    s_mul_i32 s56, {sseg}, 28
    s_add_u32 s56, s56, s50
    s_lshl_b32 s56, s56, 10
    s_add_u32 s56, s56, {HB}
    v_mul_u32_u24 v7, 56, v2
    s_mul_i32 s57, {sseg}, 32*56
    s_lshl_b32 s58, {scg}, 3
    s_add_u32 s57, s57, s58
    s_add_u32 s57, s57, {STATS}
    v_cmp_eq_u32 s[58:59], 0, v3
    s_waitcnt vmcnt(0)""")
    for tt in range(2):
        H=40
        for dt in range(4):
            xb=16+2*(tt*4+dt)
            for r in range(4): a(f"v_accvgpr_read_b32 v{H+4*dt+r}, a{4*(dt*2+tt)+r}")
            a(f"v_cvt_pk_bf16_f32 v60, v{H+4*dt}, v{H+4*dt+1}")
            a(f"v_cvt_pk_bf16_f32 v61, v{H+4*dt+2}, v{H+4*dt+3}")
            a(f"v_lshlrev_b32 v62, 16, v60"); a(f"v_and_b32 v63, 0xffff0000, v60")
            a(f"v_lshlrev_b32 v64, 16, v61"); a(f"v_and_b32 v65, 0xffff0000, v61")
            a(f"v_lshlrev_b32 v66, 16, v{xb}"); a(f"v_and_b32 v67, 0xffff0000, v{xb}")
            a(f"v_lshlrev_b32 v68, 16, v{xb+1}"); a(f"v_and_b32 v69, 0xffff0000, v{xb+1}")
            for r in range(4): a(f"v_add_f32 v{62+r}, v{62+r}, v{66+r}")
            a(f"v_cvt_pk_bf16_f32 v60, v62, v63")
            a(f"v_cvt_pk_bf16_f32 v61, v64, v65")
            a(f"buffer_store_dwordx2 v[60:61], v6, s[36:39], s56 offen offset:{1024*dt+256*tt} sc1")
            a(f"v_lshlrev_b32 v{H+4*dt}, 16, v60"); a(f"v_and_b32 v{H+4*dt+1}, 0xffff0000, v60")
            a(f"v_lshlrev_b32 v{H+4*dt+2}, 16, v61"); a(f"v_and_b32 v{H+4*dt+3}, 0xffff0000, v61")
        a(f"v_add_f32 v70, v{H}, v{H+1}")
        for i in range(2,16): a(f"v_add_f32 v70, v70, v{H+i}")
        xlane_reduce(a,70,71,"v_add_f32")
        a("v_mul_f32 v70, 0x3c800000, v70")
        a(f"v_sub_f32 v72, v{H}, v70"); a("v_mul_f32 v71, v72, v72")
        for i in range(1,16):
            a(f"v_sub_f32 v72, v{H+i}, v70"); a("v_fmac_f32 v71, v72, v72")
        a("v_mov_b32 v74, v70")
        xlane_reduce(a,71,72,"v_add_f32")
        a("v_mov_b32 v75, v71")
        a("s_mov_b64 exec, s[58:59]")
        a(f"s_add_u32 s60, s57, {tt*16*56}")
        a(f"buffer_store_dwordx2 v[74:75], v7, s[36:39], s60 offen sc1")
        a("s_mov_b64 exec, -1")

def k4():
    a=Asm()
    a("s_cmp_ge_u32 s2, 112"); a("s_cbranch_scc1 K4_EXIT")
    prologue(a)
    a("""s_lshl_b32 s41, s2, 2
    s_add_u32 s41, s41, s40        ; task 0..447
    s_mul_i32 s42, s41, 9363
    s_lshr_b32 s42, s42, 16
    s_mul_i32 s43, s42, 7
    s_sub_u32 s43, s41, s43        ; cg""")
    t3v_body(a,"s42","s43")
    a.label("K4_EXIT"); a("s_endpgm")
    return a.text()

def f1_body(a, stb, sfb, NI):
    a(f"""v_lshlrev_b32 v4, 4, v1
    v_and_b32 v2, 31, v1
    v_lshrrev_b32 v3, 5, v1
    s_mul_i32 s56, {sfb}, 4*28*1024
    s_add_u32 s56, s56, {WGU}
    s_mul_i32 s57, {stb}, {NI*28*1024}
    s_add_u32 s57, s57, {HB}""")
    gemm_wave(a,4,NI,28,"s56",28*1024,"s57",28*1024,4,bufA=16,bufB=80,modsB="sc1")
    CSR=16
    a(f"""v_lshlrev_b32 v5, 4, v3
    s_lshl_b32 s58, {sfb}, 9               ; 128 fb * 4
    s_add_u32 s58, s58, {CS}""")
    for mi in range(4):
        for j in range(4):
            a(f"buffer_load_dwordx4 {vr(CSR+(mi*4+j)*4,4)}, v5, s[36:39], s58 offen offset:{(32*mi+8*j)*4}")
    ST=80
    a(f"""v_mul_u32_u24 v6, 56, v2
    s_mul_i32 s59, {stb}, {NI*32*56}
    s_add_u32 s59, s59, {STATS}""")
    for ni in range(NI):
        a(f"s_add_u32 s60, s59, {ni*32*56}")
        for k in range(3): a(f"buffer_load_dwordx4 {vr(ST+16*ni+4*k,4)}, v6, s[36:39], s60 offen offset:{16*k} sc1")
        a(f"buffer_load_dwordx2 {vr(ST+16*ni+12,2)}, v6, s[36:39], s60 offen offset:48 sc1")
    a(f"""v_lshlrev_b32 v7, 4, v2
    v_lshl_add_u32 v7, v3, 3, v7
    s_mul_i32 s61, {stb}, {NI*112}
    s_lshl_b32 s62, {sfb}, 2
    s_add_u32 s61, s61, s62
    s_lshl_b32 s61, s61, 10
    s_add_u32 s61, s61, {ACT}
    s_waitcnt vmcnt(0)""")
    for ni in range(NI):
        st=ST+16*ni
        a(f"v_add_f32 v8, v{st}, v{st+2}")
        for k in range(2,7): a(f"v_add_f32 v8, v8, v{st+2*k}")
        a("v_mul_f32 v8, 0x3e124925, v8")
        a(f"v_add_f32 v9, v{st+1}, v{st+3}")
        for k in range(2,7): a(f"v_add_f32 v9, v9, v{st+2*k+1}")
        a("v_mov_b32 v10, 0")
        for k in range(7):
            a(f"v_sub_f32 v11, v{st+2*k}, v8"); a("v_fmac_f32 v10, v11, v11")
        a("v_fmac_f32 v9, 0x42800000, v10")
        a("v_mul_f32 v9, 0x3b124925, v9")
        a("v_add_f32 v9, 0x3727c5ac, v9")
        a("v_rsq_f32 v9, v9")
        a("s_nop 0")
        for mp in range(2):
            G=160; U=176
            acc_read(a,G,mp,ni,NI); acc_read(a,U,2+mp,ni,NI)
            for j in range(4):
                for r in range(4):
                    g=G+4*j+r; u=U+4*j+r
                    a(f"v_fma_f32 v{g}, -v8, v{CSR+(mp*4+j)*4+r}, v{g}")
                    a(f"v_fma_f32 v{u}, -v8, v{CSR+((2+mp)*4+j)*4+r}, v{u}")
                    a(f"v_mul_f32 v{g}, v{g}, v9")
                    a(f"v_mul_f32 v{u}, v{u}, v9")
                for r in (0,2):
                    g=G+4*j+r; u=U+4*j+r
                    a(f"v_cvt_pk_bf16_f32 v12, v{g}, v{g+1}")
                    a(f"v_cvt_pk_bf16_f32 v13, v{u}, v{u+1}")
                    a(f"v_lshlrev_b32 v{g}, 16, v12"); a(f"v_and_b32 v{g+1}, 0xffff0000, v12")
                    a(f"v_lshlrev_b32 v{u}, 16, v13"); a(f"v_and_b32 v{u+1}, 0xffff0000, v13")
                    a(f"v_max_f32 v{g}, 0, v{g}"); a(f"v_max_f32 v{g+1}, 0, v{g+1}")
                    a(f"v_mul_f32 v{g}, v{g}, v{u}"); a(f"v_mul_f32 v{g+1}, v{g+1}, v{u+1}")
                    a(f"v_cvt_pk_bf16_f32 v{14+r//2}, v{g}, v{g+1}")
                a(f"s_add_u32 s62, s61, {(ni*112+2*mp+(j>>1))*1024}")
                a(f"buffer_store_dwordx2 v[14:15], v7, s[36:39], s62 offen offset:{512*(j&1)} sc1")
                a("s_nop 0")

F1NI=4
def k5():
    a=Asm()
    n=28*(64//F1NI)//4
    a(f"s_cmp_ge_u32 s2, {n}"); a("s_cbranch_scc1 K5_EXIT")
    prologue(a)
    a("""s_lshl_b32 s41, s2, 2
    s_add_u32 s41, s41, s40
    s_mul_i32 s42, s41, 2341
    s_lshr_b32 s42, s42, 16
    s_mul_i32 s43, s42, 28
    s_sub_u32 s43, s41, s43        ; fb""")
    f1_body(a,"s42","s43",F1NI)
    a.label("K5_EXIT"); a("s_endpgm")
    return a.text(), n

def f2_body(a, stb, sdb, MI, NI):
    a(f"""v_lshlrev_b32 v4, 4, v1
    v_and_b32 v2, 31, v1
    v_lshrrev_b32 v3, 5, v1
    s_mul_i32 s56, {sdb}, {MI*112*1024}
    s_add_u32 s56, s56, {WDT}
    s_mul_i32 s57, {stb}, {NI*112*1024}
    s_add_u32 s57, s57, {ACT}""")
    gemm_wave(a,MI,NI,112,"s56",112*1024,"s57",112*1024,4,bufA=16,bufB=16+MI*16,modsB="sc1")
    srd(a,44,30,2048*896)
    a(f"""v_lshlrev_b32 v7, 4, v2
    v_lshl_add_u32 v7, v3, 3, v7
    s_mul_i32 s58, {stb}, {NI*28}
    s_mul_i32 s59, {sdb}, {2*MI}
    s_add_u32 s58, s58, s59
    s_lshl_b32 s58, s58, 10
    s_add_u32 s58, s58, {HB}
    v_mul_u32_u24 v6, 896, v2
    v_lshl_add_u32 v6, v3, 3, v6
    s_mul_i32 s59, {stb}, {NI*32*896}
    s_mul_i32 s61, {sdb}, {MI*64}
    s_add_u32 s59, s59, s61""")
    HR=16
    for ni in range(NI):
        for mi in range(MI):
            for j in range(4):
                a(f"s_add_u32 s60, s58, {(ni*28+2*mi+(j>>1))*1024}")
                a(f"buffer_load_dwordx2 {vr(HR+((ni*MI+mi)*4+j)*2,2)}, v7, s[36:39], s60 offen offset:{512*(j&1)} sc1")
    a("s_nop 7"); a("s_waitcnt vmcnt(0)")
    for ni in range(NI):
        for mi in range(MI):
            G=160
            acc_read(a,G,mi,ni,NI)
            for j in range(4):
                hb=HR+((ni*MI+mi)*4+j)*2
                g=G+4*j
                a(f"v_cvt_pk_bf16_f32 v12, v{g}, v{g+1}")
                a(f"v_cvt_pk_bf16_f32 v13, v{g+2}, v{g+3}")
                a("v_lshlrev_b32 v8, 16, v12"); a("v_and_b32 v9, 0xffff0000, v12")
                a("v_lshlrev_b32 v10, 16, v13"); a("v_and_b32 v11, 0xffff0000, v13")
                a(f"v_lshlrev_b32 v{g}, 16, v{hb}"); a(f"v_and_b32 v{g+1}, 0xffff0000, v{hb}")
                a(f"v_lshlrev_b32 v{g+2}, 16, v{hb+1}"); a(f"v_and_b32 v{g+3}, 0xffff0000, v{hb+1}")
                for r in range(4): a(f"v_add_f32 v{8+r}, v{8+r}, v{g+r}")
                a(f"v_cvt_pk_bf16_f32 v14, v8, v9")
                a(f"v_cvt_pk_bf16_f32 v15, v10, v11")
                a(f"s_add_u32 s60, s59, {ni*32*896}")
                a(f"buffer_store_dwordx2 v[14:15], v6, s[44:47], s60 offen offset:{64*mi+16*j}")
                a("s_nop 0")

F2MI=1; F2NI=2
def k6():
    a=Asm()
    nd=14//F2MI; nt=64//F2NI
    n=nd*nt//4
    a(f"s_cmp_ge_u32 s2, {n}"); a("s_cbranch_scc1 K6_EXIT")
    prologue(a)
    a(f"""s_lshl_b32 s41, s2, 2
    s_add_u32 s41, s41, s40
    s_mul_i32 s42, s41, 4682
    s_lshr_b32 s42, s42, 16
    s_mul_i32 s43, s42, 14
    s_sub_u32 s43, s41, s43        ; db""")
    assert nd==14
    f2_body(a,"s42","s43",F2MI,F2NI)
    a.label("K6_EXIT"); a("s_endpgm")
    return a.text(), n

def kernels():
    t5,n5=k5(); t6,n6=k6()
    return [("k3_kernel",k3(),256,256,0,256,256),
            ("k4_kernel",k4(),112,256,0,512,256),
            ("k5_kernel",t5,n5,256,0,512,256),
            ("k6_kernel",t6,n6,256,0,512,256)]
```

```python
S=2048; D=448; H=16; NSEG=64; F=1792
XN   = 0x0000000
XNP  = 0x0200000
WTA  = 0x0400000
WTB  = WTA + 0x620000
WGU  = 0x1100000
WDT  = 0x1500000
CS   = 0x1700000
FLAGS= 0x1710000
MEMX = 0x1800000
MEMN = 0x1880000
PX   = 0x1900000
MB   = 0x1A00000
MBL  = 0x7000000
PTX  = 0x2200000
PTM  = 0x2400000
HB   = 0x2500000
STATS= 0x2700000
ACT  = 0x2800000
TX   = 0x3000000
VO   = 0x5000000
WS_BYTES = 0x10000000
def pi(q):
    b=q>>6; hi=(q>>5)&1; g=(q>>3)&3; c=q&7
    return 64*b+16*g+4*(c>>1)+2*hi+(c&1)
```

```python
import sys
from layout import *
NAME="sequential_preLN__memory_aug_recurrent_mem_tr__glu_gated_reglu__prompt"

class Asm:
    def __init__(self): self.l=[]
    def __call__(self, s):
        for x in s.strip("\n").split("\n"): self.l.append("    "+x.strip())
    def label(self, s): self.l.append(s+":")
    def c(self, s): self.l.append("    ; "+s)
    def text(self): return "\n".join(self.l)+"\n"

def srd(a, r, p, nbytes, add=0):
    a(f"s_mov_b32 s{r}, s{p}")
    a(f"s_and_b32 s{r+1}, s{p+1}, 0xffff")
    a(f"s_mov_b32 s{r+2}, {nbytes:#x}")
    a(f"s_mov_b32 s{r+3}, 0x00020000")

def vr(b,n): return f"v[{b}:{b+n-1}]"
def ar(b,n): return f"a[{b}:{b+n-1}]"

def kernel_header(name):
    return f""".globl {name}
.p2align 8
.type {name},@function
{name}:
"""
def kernel_desc(name, vgpr, accum, sgpr=102):
    return f""".amdhsa_kernel {name}
  .amdhsa_next_free_vgpr {vgpr}
  .amdhsa_next_free_sgpr {sgpr}
  .amdhsa_accum_offset {accum}
  .amdhsa_group_segment_fixed_size 0
  .amdhsa_kernarg_size 112
  .amdhsa_user_sgpr_count 2
  .amdhsa_user_sgpr_kernarg_segment_ptr 1
  .amdhsa_system_sgpr_workgroup_id_x 1
.end_amdhsa_kernel
"""

def wave_sum(a, v):
    for m in ("row_shr:1","row_shr:2","row_shr:4","row_shr:8"):
        a("s_nop 1"); a(f"v_add_f32_dpp v{v}, v{v}, v{v} {m} row_mask:0xf bank_mask:0xf bound_ctrl:0")
    a("s_nop 1"); a(f"v_add_f32_dpp v{v}, v{v}, v{v} row_bcast:15 row_mask:0xa bank_mask:0xf")
    a("s_nop 1"); a(f"v_add_f32_dpp v{v}, v{v}, v{v} row_bcast:31 row_mask:0xc bank_mask:0xf")

def prologue(a):
    a("""s_load_dwordx16 s[8:23], s[0:1], 0
    s_load_dwordx8 s[24:31], s[0:1], 64
    s_load_dwordx4 s[32:35], s[0:1], 96
    v_lshrrev_b32 v2, 6, v0
    v_and_b32 v1, 63, v0
    s_nop 0
    v_readfirstlane_b32 s40, v2
    s_waitcnt lgkmcnt(0)""")
    srd(a, 36, 34, WS_BYTES)

N_AB=224; N_LN=129; N_TR=147; N_CS=28; N_INIT=16
K1_GRID=N_AB+N_LN+N_TR+N_CS+N_INIT
K1_LDS=36864+4*8448

def k1_ab(a):
    a.label("K1_AB")
    a("""s_lshr_b32 s42, s2, 3
    s_mul_i32 s41, s42, 9363
    s_lshr_b32 s41, s41, 16
    s_mul_i32 s43, s41, 7
    s_sub_u32 s42, s42, s43          ; nb
    s_lshl_b32 s41, s41, 3
    s_and_b32 s43, s2, 7
    s_add_u32 s41, s41, s43          ; mat
    s_and_b32 s43, s41, 15           ; h
    s_lshr_b32 s48, s41, 4           ; isB
    v_and_b32 v2, 15, v1             ; l&15
    v_lshrrev_b32 v3, 4, v1          ; g
    s_cmp_eq_u32 s48, 0
    s_cselect_b32 s44, s12, s16
    s_cselect_b32 s45, s13, s17
    s_cselect_b32 s49, 0x3d800000, 1.0
    s_and_b32 s45, s45, 0xffff
    s_mov_b32 s46, 0x380000
    s_mov_b32 s47, 0x00020000""")
    a("""v_lshrrev_b32 v4, 5, v1
    s_lshl_b32 s50, s40, 4
    v_add_u32 v5, s50, v4
    v_lshlrev_b32 v5, 13, v5
    v_and_b32 v10, 31, v1
    v_lshl_add_u32 v5, v10, 4, v5
    s_lshl_b32 s51, s43, 9
    v_add_u32 v5, s51, v5
    s_mul_i32 s50, s40, 8448
    s_add_u32 s50, s50, 36864
    v_mul_u32_u24 v4, 528, v4
    v_lshl_add_u32 v4, v10, 4, v4
    v_add_u32 v4, s50, v4
    v_mul_u32_u24 v11, 528, v2
    v_lshl_add_u32 v11, v3, 4, v11
    v_add_u32 v11, s50, v11""")
    a("""v_lshrrev_b32 v6, 1, v3
    v_lshlrev_b32 v6, 9, v6             ; 32*(g>>1)*16
    v_lshl_add_u32 v6, v2, 4, v6
    v_and_b32 v7, 1, v3
    v_lshl_add_u32 v6, v7, 3, v6
    s_mul_i32 s52, s41, 14              ; mat*14 rt
    s_lshl_b32 s53, s42, 1
    s_add_u32 s52, s52, s53
    s_mul_i32 s52, s52, 28
    s_add_u32 s52, s52, s40             ; + w
    s_lshl_b32 s52, s52, 10
    s_add_u32 s52, s52, %d""" % WTA)
    def ld_stream(j):
        a(f"s_mov_b32 s53, {64*8192*j}")
        for i in range(8):
            a(f"buffer_load_dwordx4 {vr(192+4*i,4)}, v5, s[44:47], s53 offen" + (f" offset:0" if i==0 else ""))
            if i<7: a("s_add_u32 s53, s53, 16384")
    a("s_cmp_eq_u32 s48, 0")
    a("s_cbranch_scc0 K1_AB_RESB")
    srd(a, 56, 14, 0x380000)
    a("""v_lshrrev_b32 v10, 5, v0            ; tid>>5 (0..7)
    v_and_b32 v12, 31, v0
    s_lshl_b32 s53, s42, 6
    v_add_u32 v13, s53, v10
    v_lshlrev_b32 v13, 13, v13
    v_lshl_add_u32 v13, v12, 4, v13
    v_add_u32 v13, s51, v13
    v_mul_u32_u24 v14, 528, v10
    v_lshl_add_u32 v14, v12, 4, v14""")
    for j in range(8):
        a(f"s_mov_b32 s53, {8*8192*j}")
        a(f"buffer_load_dwordx4 {vr(64+4*j,4)}, v13, s[56:59], s53 offen")
    ld_stream(0)
    for j in range(8):
        a(f"s_waitcnt vmcnt({8+7-j})")
        a(f"ds_write_b128 v14, {vr(64+4*j,4)} offset:{8*528*j}")
    a("""s_waitcnt lgkmcnt(0)
    s_barrier""")
    a("""v_lshrrev_b32 v10, 3, v2
    v_lshlrev_b32 v10, 4, v10
    v_bfe_u32 v12, v2, 1, 2
    v_lshl_add_u32 v10, v12, 2, v10
    v_and_b32 v12, 1, v2
    v_add_u32 v10, v10, v12
    v_mul_u32_u24 v10, 528, v10
    v_lshl_add_u32 v10, v3, 4, v10""")
    for nt in range(4):
        for ks in range(8):
            a(f"ds_read_b128 {vr(64+nt*32+ks*4,4)}, v10 offset:{(32*(nt&1)+2*(nt>>1))*528+64*ks}")
        a("s_waitcnt lgkmcnt(0)")
    a("s_branch K1_AB_MAIN")
    a.label("K1_AB_RESB")
    srd(a, 56, 18, 0x380000)
    a("""v_lshrrev_b32 v10, 3, v0       ; e0 = tid>>3 (0..31)
    v_and_b32 v12, 7, v0                ; piece
    s_lshl_b32 s53, s43, 8              ; h*256
    v_add_u32 v13, s53, v10
    v_mul_u32_u24 v13, 896, v13
    v_lshl_add_u32 v13, v12, 4, v13
    s_lshl_b32 s53, s42, 7              ; 128 nb
    v_add_u32 v13, s53, v13
    v_mul_u32_u24 v14, 144, v10
    v_lshl_add_u32 v14, v12, 4, v14""")
    for j in range(8):
        a(f"s_mov_b32 s53, {32*896*j}")
        a(f"buffer_load_dwordx4 {vr(64+4*j,4)}, v13, s[56:59], s53 offen")
    ld_stream(0)
    for j in range(8):
        a(f"s_waitcnt vmcnt({8+7-j})")
        a(f"ds_write_b128 v14, {vr(64+4*j,4)} offset:{32*144*j}")
    a("""s_waitcnt lgkmcnt(0)
    s_barrier""")
    a("""v_lshrrev_b32 v10, 2, v2
    v_lshl_add_u32 v10, v3, 3, v10
    v_mul_u32_u24 v10, 144, v10
    v_and_b32 v12, 3, v2
    v_lshl_add_u32 v10, v12, 3, v10""")
    for nt in range(4):
        for ks in range(8):
            for p in range(2):
                a(f"ds_read_b64_tr_b16 {vr(64+nt*32+ks*4+2*p,2)}, v10 offset:{(32*ks+4*p)*144+32*nt}")
        a("s_waitcnt lgkmcnt(0)")
    a.label("K1_AB_MAIN")
    for j in range(7):
        a(f"s_waitcnt vmcnt({4 if j>0 else 0})")
        for i in range(8): a(f"ds_write_b128 v4, {vr(192+4*i,4)} offset:{2*528*i}")
        if j<6:
            a("s_nop 1")
            ld_stream(j+1)
        for ks in range(8): a(f"ds_read_b128 {vr(224+4*ks,4)}, v11 offset:{64*ks}")
        for ks in range(8):
            a(f"s_waitcnt lgkmcnt({7-ks})")
            for nt in range(4):
                c = "0" if ks==0 else vr(32+4*nt,4)
                a(f"v_mfma_f32_16x16x32_bf16 {vr(32+4*nt,4)}, {vr(224+4*ks,4)}, {vr(64+nt*32+ks*4,4)}, {c}")
        a("s_nop 7")
        for nt in range(4):
            for r in range(4): a(f"v_mul_f32 v{32+4*nt+r}, s49, v{32+4*nt+r}")
            a(f"v_cvt_pk_bf16_f32 v{48+2*nt}, v{32+4*nt}, v{33+4*nt}")
            a(f"v_cvt_pk_bf16_f32 v{49+2*nt}, v{34+4*nt}, v{35+4*nt}")
        for nt in range(4):
            a(f"s_add_u32 s53, s52, {(nt>>1)*28*1024 + 4096*j}")
            a(f"buffer_store_dwordx2 {vr(48+2*nt,2)}, v6, s[36:39], s53 offen offset:{256*(nt&1)}")
    a("s_endpgm")

def ln_rows(a, srd_in, in_off_v, nrows, outs, tag):
    pass

def k1_ln(a):
    a.label("K1_LN")
    a("s_sub_u32 s41, s2, %d" % N_AB)
    a("v_cmp_gt_u32 vcc, 56, v1")
    a("s_and_saveexec_b64 s[60:61], vcc")
    a("""v_lshlrev_b32 v2, 4, v1            ; lane*16
    v_lshrrev_b32 v3, 3, v1
    v_lshlrev_b32 v3, 7, v3
    v_and_b32 v4, 7, v1
    v_lshl_add_u32 v3, v4, 3, v3""")
    a("s_cmp_eq_u32 s41, 128")
    a("s_cbranch_scc1 K1_MEM0")
    srd(a, 44, 8, 2048*896)
    a("""s_lshl_b32 s42, s41, 4
    s_lshl_b32 s43, s40, 2
    s_add_u32 s42, s42, s43              ; row0
    s_mul_i32 s42, s42, 896""")
    R=4
    for r in range(R):
        a(f"buffer_load_dwordx4 {vr(8+4*r,4)}, v2, s[44:47], s42 offen offset:{896*r}")
    for r in range(R):
        a(f"s_waitcnt vmcnt({R-1-r})")
        b=32+8*r
        for j in range(4):
            a(f"v_lshlrev_b32 v{b+2*j}, 16, v{8+4*r+j}")
            a(f"v_and_b32 v{b+2*j+1}, 0xffff0000, v{8+4*r+j}")
        a(f"v_add_f32 v{24+r}, v{b}, v{b+1}")
        for j in range(2,8): a(f"v_add_f32 v{24+r}, v{24+r}, v{b+j}")
    a("s_mov_b64 exec, s[60:61]")
    a("v_cmp_gt_u32 vcc, 56, v1")
    for r in range(R):
        a("s_nop 1"); a(f"v_cndmask_b32 v{24+r}, 0, v{24+r}, vcc")
    for r in range(R): wave_sum(a, 24+r)
    a("s_nop 1")
    for r in range(R): a(f"v_readlane_b32 s{64+r}, v{24+r}, 63")
    a("s_mov_b32 s70, 0x3b124925")
    a("s_nop 1")
    for r in range(R):
        a(f"v_mov_b32 v{28+r}, s{64+r}")
        a(f"v_mul_f32 v{28+r}, s70, v{28+r}")
    for r in range(R):
        b=32+8*r
        a(f"v_sub_f32 v5, v{b}, v{28+r}")
        a(f"v_mul_f32 v{24+r}, v5, v5")
        for j in range(1,8):
            a(f"v_sub_f32 v5, v{b+j}, v{28+r}")
            a(f"v_fmac_f32 v{24+r}, v5, v5")
        a(f"v_cndmask_b32 v{24+r}, 0, v{24+r}, vcc")
    for r in range(R): wave_sum(a, 24+r)
    a("s_nop 1")
    for r in range(R): a(f"v_readlane_b32 s{64+r}, v{24+r}, 63")
    a("s_nop 1")
    for r in range(R):
        a(f"v_mov_b32 v{24+r}, s{64+r}")
        a(f"v_mul_f32 v{24+r}, s70, v{24+r}")
        a(f"v_cvt_pk_bf16_f32 v{28+r}, v{28+r}, v{28+r}")
        a(f"v_and_b32 v{28+r}, 0xffff0000, v{28+r}")
        a(f"v_cvt_pk_bf16_f32 v{24+r}, v{24+r}, v{24+r}")
        a(f"v_and_b32 v{24+r}, 0xffff0000, v{24+r}")
        a(f"v_add_f32 v{24+r}, 0x3727c5ac, v{24+r}")
        a(f"v_cvt_pk_bf16_f32 v{24+r}, v{24+r}, v{24+r}")
        a(f"v_and_b32 v{24+r}, 0xffff0000, v{24+r}")
        a(f"v_sqrt_f32 v{24+r}, v{24+r}")
        a("s_nop 0")
        a(f"v_cvt_pk_bf16_f32 v{24+r}, v{24+r}, v{24+r}")
        a(f"v_and_b32 v{24+r}, 0xffff0000, v{24+r}")
        a(f"v_rcp_f32 v{24+r}, v{24+r}")
        a("s_nop 0")
    a("s_and_saveexec_b64 s[60:61], vcc")
    a("""s_lshr_b32 s43, s41, 1             ; rt32 = wg'>>1  (16 rows per wg)
    s_mul_i32 s43, s43, 28*1024
    s_and_b32 s48, s41, 1
    s_lshl_b32 s48, s48, 4
    s_lshl_b32 s49, s40, 2
    s_add_u32 s48, s48, s49            ; row&31 of row0
    s_lshl_b32 s48, s48, 4
    s_add_u32 s43, s43, s48
    s_add_u32 s43, s43, %d
    v_lshrrev_b32 v6, 1, v1
    v_lshlrev_b32 v6, 10, v6
    v_and_b32 v7, 1, v1
    v_lshl_add_u32 v6, v7, 9, v6        ; XN voffset
    s_mul_i32 s48, s41, 14*1024         ; rt16 = wg'
    s_lshl_b32 s49, s40, 6              ; (4w)*16
    s_add_u32 s48, s48, s49
    s_add_u32 s48, s48, %d
    v_lshrrev_b32 v3, 3, v1             ; b
    v_lshlrev_b32 v3, 11, v3            ; 2 ks32 per b -> 2048
    v_bfe_u32 v4, v1, 1, 2              ; (j&7)>>1 = oq&3
    v_lshl_add_u32 v3, v4, 8, v3
    v_lshl_add_u32 v3, v7, 3, v3""" % (XN, XNP))
    for r in range(R):
        b=32+8*r
        for j in range(0,8,2):
            a(f"v_sub_f32 v{b+j}, v{b+j}, v{28+r}")
            a(f"v_sub_f32 v{b+j+1}, v{b+j+1}, v{28+r}")
            a(f"v_cvt_pk_bf16_f32 v5, v{b+j}, v{b+j+1}")
            a(f"v_lshlrev_b32 v{b+j}, 16, v5")
            a(f"v_and_b32 v{b+j+1}, 0xffff0000, v5")
            a(f"v_mul_f32 v{b+j}, v{b+j}, v{24+r}")
            a(f"v_mul_f32 v{b+j+1}, v{b+j+1}, v{24+r}")
            a(f"v_cvt_pk_bf16_f32 v{8+4*r+j//2}, v{b+j}, v{b+j+1}")
        a(f"buffer_store_dwordx4 {vr(8+4*r,4)}, v6, s[36:39], s43 offen offset:{16*r}")
        a(f"v_mov_b32 v{b}, v{8+4*r}")
        a(f"v_mov_b32 v{b+1}, v{8+4*r+2}")
        a(f"v_mov_b32 v{b+2}, v{8+4*r+1}")
        a(f"v_mov_b32 v{b+3}, v{8+4*r+3}")
        a(f"buffer_store_dwordx2 {vr(b,2)}, v3, s[36:39], s48 offen offset:{16*r}")
        a(f"buffer_store_dwordx2 {vr(b+2,2)}, v3, s[36:39], s48 offen offset:{16*r+1024}")
    a("s_endpgm")
    a.label("K1_MEM0")
    srd(a, 44, 10, 8*896)
    a("s_mul_i32 s42, s40, 1792")
    a("""v_lshrrev_b32 v3, 3, v1
    v_lshlrev_b32 v3, 10, v3             ; b*1024
    v_bfe_u32 v4, v1, 1, 2               ; g
    v_lshl_add_u32 v3, v4, 8, v3
    v_and_b32 v4, 1, v1
    v_lshl_add_u32 v3, v4, 3, v3
    s_lshl_b32 s49, s40, 5               ; i0*16 = 2w*16""")
    a("s_add_u32 s43, s49, %d" % MEMN)
    a("s_add_u32 s48, s49, %d" % MEMX)
    for r in range(2):
        a(f"buffer_load_dwordx4 {vr(8+4*r,4)}, v2, s[44:47], s42 offen offset:{896*r}")
    for r in range(2):
        b=32+8*r
        a(f"s_waitcnt vmcnt({1-r if r==0 else 4})")
        a(f"v_mov_b32 v{b}, v{8+4*r}")
        a(f"v_mov_b32 v{b+1}, v{8+4*r+2}")
        a(f"v_mov_b32 v{b+2}, v{8+4*r+1}")
        a(f"v_mov_b32 v{b+3}, v{8+4*r+3}")
        for so in ("s48","s43"):
            a(f"buffer_store_dwordx2 {vr(b,2)}, v3, s[36:39], {so} offen offset:{16*r}")
            a(f"buffer_store_dwordx2 {vr(b+2,2)}, v3, s[36:39], {so} offen offset:{16*r+128}")
    a("s_endpgm")

def k1_tr(a):
    a.label("K1_TR")
    a("s_sub_u32 s41, s2, %d" % (N_AB+N_LN))
    a("""s_lshl_b32 s41, s41, 2
    s_add_u32 s41, s41, s40
    s_mul_i32 s42, s41, 21400
    s_lshr_b32 s42, s42, 22
    s_mul_i32 s43, s42, 196
    s_sub_u32 s43, s41, s43            ; t in 0..195
    s_cmp_eq_u32 s42, 2
    s_cbranch_scc1 K1_TR_D""")
    a("""s_mul_i32 s48, s43, 2341
    s_lshr_b32 s48, s48, 16            ; kt = t/28
    s_mul_i32 s49, s48, 28
    s_sub_u32 s49, s43, s49            ; fb
    s_cmp_eq_u32 s42, 0
    s_cselect_b32 s44, s24, s26
    s_cselect_b32 s45, s25, s27
    s_and_b32 s45, s45, 0xffff
    s_mov_b32 s46, 0x188000
    s_mov_b32 s47, 0x00020000
    s_mov_b32 s50, 3584                ; src row stride
    s_mul_i32 s51, s48, 64*3584
    s_lshl_b32 s52, s49, 7
    s_add_u32 s51, s51, s52            ; src base offset
    s_mov_b32 s53, 28*1024             ; dst rt32 stride (KS=28)
    s_lshl_b32 s54, s49, 1
    s_add_u32 s54, s54, s42            ; 64-row block index
    s_mul_i32 s54, s54, 2*28*1024
    s_lshl_b32 s52, s48, 12            ; kt*4 ks16
    s_add_u32 s54, s54, s52
    s_add_u32 s54, s54, %d
    s_branch K1_TR_GO""" % WGU)
    a.label("K1_TR_D")
    a("""s_mul_i32 s48, s43, 9363
    s_lshr_b32 s48, s48, 16            ; ft
    s_mul_i32 s49, s48, 7
    s_sub_u32 s49, s43, s49            ; db""")
    srd(a, 44, 28, 0x188000)
    a("""s_mov_b32 s50, 896
    s_mul_i32 s51, s48, 64*896
    s_lshl_b32 s52, s49, 7
    s_add_u32 s51, s51, s52
    s_mov_b32 s53, 112*1024
    s_mul_i32 s54, s49, 2*112*1024
    s_lshl_b32 s52, s48, 12
    s_add_u32 s54, s54, s52
    s_add_u32 s54, s54, %d""" % WDT)
    a.label("K1_TR_GO")
    a("""v_lshrrev_b32 v2, 3, v1
    v_and_b32 v3, 7, v1
    v_mul_lo_u32 v4, v2, s50
    v_lshl_add_u32 v4, v3, 4, v4
    s_mul_i32 s55, s40, 64*144
    v_mul_u32_u24 v5, 144, v2
    v_lshl_add_u32 v5, v3, 4, v5
    v_add_u32 v5, s55, v5
    s_lshl_b32 s56, s50, 3""")
    for j in range(8):
        a(f"buffer_load_dwordx4 {vr(8+4*j,4)}, v4, s[44:47], s51 offen")
        if j<7: a("s_add_u32 s51, s51, s56")
    for j in range(8):
        a(f"s_waitcnt vmcnt({7-j})")
        a(f"ds_write_b128 v5, {vr(8+4*j,4)} offset:{8*144*j}")
    a("""v_and_b32 v2, 15, v1
    v_lshrrev_b32 v3, 4, v1
    v_lshrrev_b32 v6, 2, v2
    v_lshl_add_u32 v6, v3, 3, v6
    v_mul_u32_u24 v6, 144, v6
    v_and_b32 v7, 3, v2
    v_lshl_add_u32 v6, v7, 3, v6
    v_add_u32 v6, s55, v6
    v_lshrrev_b32 v7, 1, v3
    v_lshlrev_b32 v7, 10, v7               ; (g>>1) ks16
    v_and_b32 v8, 1, v3
    v_lshl_add_u32 v7, v8, 9, v7           ; 32*(g&1)*16
    v_lshl_add_u32 v7, v2, 4, v7           ; + c*16
    s_waitcnt lgkmcnt(0)""")
    for nt in range(4):
        for half in range(2):
            b=40+8*nt+4*half
            for p in range(2):
                a(f"ds_read_b64_tr_b16 {vr(b+2*p,2)}, v6 offset:{(32*half+4*p)*144+32*nt}")
    a("s_waitcnt lgkmcnt(0)")
    for nt in range(4):
        for half in range(2):
            b=40+8*nt+4*half
            a(f"buffer_store_dwordx4 {vr(b,4)}, v7, s[36:39], s54 offen offset:{2048*half+256*(nt&1)}")
        if nt==1: a("s_add_u32 s54, s54, s53")
    a("s_endpgm")

def k1_cs(a):
    a.label("K1_CS")
    a("s_sub_u32 s41, s2, %d" % (N_AB+N_LN+N_TR))
    a("""s_cmp_ge_u32 s41, 14
    s_cselect_b32 s42, 1, 0
    s_cselect_b32 s43, 14, 0
    s_cselect_b32 s44, s26, s24
    s_cselect_b32 s45, s27, s25
    s_sub_u32 s43, s41, s43           ; fb128
    s_and_b32 s45, s45, 0xffff
    s_mov_b32 s46, 0x188000
    s_mov_b32 s47, 0x00020000
    v_lshlrev_b32 v2, 2, v1
    s_mul_i32 s48, s40, 112*3584
    s_lshl_b32 s49, s43, 8
    s_add_u32 s48, s48, s49
    v_mov_b32 v4, 0
    v_mov_b32 v5, 0""")
    for bt in range(2):
        for j in range(56):
            a(f"buffer_load_dword v{8+j}, v2, s[44:47], s48 offen")
            a("s_add_u32 s48, s48, 3584")
        for j in range(56):
            a(f"s_waitcnt vmcnt({55-j})")
            a(f"v_lshlrev_b32 v6, 16, v{8+j}")
            a(f"v_and_b32 v7, 0xffff0000, v{8+j}")
            a("v_add_f32 v4, v4, v6")
            a("v_add_f32 v5, v5, v7")
    a("""v_lshlrev_b32 v6, 3, v0
    ds_write_b64 v6, v[4:5]
    s_waitcnt lgkmcnt(0)
    s_barrier
    s_cmp_eq_u32 s40, 0
    s_cbranch_scc0 K1_CS_END
    ds_read_b64 v[8:9], v6 offset:512
    ds_read_b64 v[10:11], v6 offset:1024
    ds_read_b64 v[12:13], v6 offset:1536
    s_waitcnt lgkmcnt(0)
    v_add_f32 v4, v4, v8
    v_add_f32 v5, v5, v9
    v_add_f32 v4, v4, v10
    v_add_f32 v5, v5, v11
    v_add_f32 v4, v4, v12
    v_add_f32 v5, v5, v13""")
    a("""v_lshlrev_b32 v6, 1, v1          ; 2*lane (0..126)
    v_lshrrev_b32 v7, 6, v6               ; 0/1
    v_and_b32 v6, 63, v6
    v_lshl_add_u32 v6, v7, 7, v6          ; (f>>6 &1)*128 + (f&63)
    s_lshl_b32 s49, s43, 8                ; fb128*2*128
    s_lshl_b32 s50, s42, 6
    s_add_u32 s49, s49, s50
    v_add_u32 v6, s49, v6
    v_lshlrev_b32 v6, 2, v6
    s_mov_b32 s49, %d
    buffer_store_dwordx2 v[4:5], v6, s[36:39], s49 offen""" % CS)
    a.label("K1_CS_END")
    a("s_endpgm")

def k1_init(a):
    a.label("K1_INIT")
    a("s_sub_u32 s41, s2, %d" % (N_AB+N_LN+N_TR+N_CS))
    a("""v_mov_b32 v4, -1
    v_mov_b32 v5, -1
    v_mov_b32 v6, -1
    v_mov_b32 v7, -1
    v_lshlrev_b32 v2, 4, v0
    s_mul_i32 s42, s41, 28672
    s_add_u32 s42, s42, %d""" % (MEMX+7168))
    for j in range(7): a(f"buffer_store_dwordx4 v[4:7], v2, s[36:39], s42 offen"); a("s_add_u32 s42, s42, 4096")
    a("s_mul_i32 s42, s41, 40960")
    a("s_add_u32 s42, s42, %d" % PX)
    for j in range(10): a(f"buffer_store_dwordx4 v[4:7], v2, s[36:39], s42 offen"); a("s_add_u32 s42, s42, 4096")
    a("""v_mov_b32 v8, 0
    v_mov_b32 v9, 0
    v_mov_b32 v10, 0
    v_mov_b32 v11, 0
    s_lshl_b32 s42, s41, 12
    s_add_u32 s42, s42, %d
    buffer_store_dwordx4 v[8:11], v2, s[36:39], s42 offen
    s_endpgm""" % FLAGS)

def k1():
    a=Asm()
    a(f"s_cmp_ge_u32 s2, {K1_GRID}")
    a("s_cbranch_scc1 K1_EXIT")
    prologue(a)
    a(f"s_cmp_lt_u32 s2, {N_AB}"); a("s_cbranch_scc1 K1_AB")
    a(f"s_cmp_lt_u32 s2, {N_AB+N_LN}"); a("s_cbranch_scc1 K1_LN")
    a(f"s_cmp_lt_u32 s2, {N_AB+N_LN+N_TR}"); a("s_cbranch_scc1 K1_TR")
    a(f"s_cmp_lt_u32 s2, {N_AB+N_LN+N_TR+N_CS}"); a("s_cbranch_scc1 K1_CS")
    a("s_branch K1_INIT")
    a.label("K1_EXIT"); a("s_endpgm")
    import os
    only=os.environ.get("K1ONLY","")
    for nm,fn in (("AB",k1_ab),("LN",k1_ln),("TR",k1_tr),("CS",k1_cs),("INIT",k1_init)):
        if only and nm!=only:
            a.label("K1_"+nm); a("s_endpgm")
        else: fn(a)
    return a.text()

def build(kernels):
    hdr = open("cdna_kernels/%s.s.ref"%NAME).read().split("\n")
    top=[]
    for line in hdr:
        if line.startswith("; @launch") or line.startswith("; Override") or line.startswith("; grid="): continue
        if not line.startswith(";"): break
        top.append(line)
    out="\n".join(top)+"\n"
    for (name,text,grid,block,lds,vg,ac) in kernels:
        out+=f"; @launch kernel={name} grid=({grid},1,1) block=({block},1,1) lds={lds}\n"
    out+='.amdgcn_target "amdgcn-amd-amdhsa--gfx950"\n.text\n'
    seen=set()
    for (name,text,grid,block,lds,vg,ac) in kernels:
        if name in seen: continue
        seen.add(name)
        out+=kernel_header(name)+text
    out+='.section .rodata,"a"\n'
    seen=set()
    for (name,text,grid,block,lds,vg,ac) in kernels:
        if name in seen: continue
        seen.add(name)
        out+=".p2align 6\n"+kernel_desc(name,vg,ac)
    return out

if __name__=="__main__":
    ks=[("k1_kernel",k1(),K1_GRID,256,K1_LDS,256,256)]
    try:
        import gen2
        ks+=gen2.kernels()
    except ImportError:
        pass
    open("cdna_kernels/%s.s"%NAME,"w").write(build(ks))
```

```python
from gen import *
import os
NSTEPS=int(os.environ.get("NSTEPS","63"))

def spin_guard(a):
    a("s_sub_u32 s99, s99, 1")
    a("s_cbranch_scc1 K2_ABORT")

def poll_mem(a, tag, soff, va, vb, d0, d1, tmp):
    a.label(tag)
    spin_guard(a)
    a(f"buffer_load_dwordx4 {vr(d0,4)}, v{va}, s[36:39], {soff} offen sc1")
    a(f"buffer_load_dwordx4 {vr(d1,4)}, v{vb}, s[36:39], {soff} offen sc1")
    a("s_waitcnt vmcnt(0)")
    a(f"v_max3_u32 v{tmp}, v{d0}, v{d0+1}, v{d0+2}")
    a(f"v_max3_u32 v{tmp}, v{tmp}, v{d0+3}, v{d1}")
    a(f"v_max3_u32 v{tmp}, v{tmp}, v{d1+1}, v{d1+2}")
    a(f"v_max_u32 v{tmp}, v{tmp}, v{d1+3}")
    a(f"v_cmp_eq_u32 vcc, -1, v{tmp}")
    a(f"s_cbranch_vccnz {tag}")

PROF=int(os.environ.get("PROF","0"))
STAMPS=0x1720000
def stamp(a,k):
    if PROF not in (1,2): return
    a(f"""s_memtime s[70:71]
    s_waitcnt lgkmcnt(0)
    s_sub_u32 s72, s70, s73
    s_add_u32 s{80+k}, s{80+k}, s72
    s_mov_b32 s73, s70""")
TSB=0x1740000
def rt(a, ev):
    if PROF!=3: return
    rt.n+=1
    a(f"""s_cmp_eq_u32 s40, 0
    s_cbranch_scc0 RT_{rt.n}
    s_memrealtime s[70:71]
    s_waitcnt lgkmcnt(0)
    s_lshl_b32 s72, s59, 4
    s_add_u32 s72, s72, s77
    s_mov_b64 s[74:75], exec
    s_mov_b64 exec, 1
    v_mov_b32 v11, s70
    v_mov_b32 v10, 0
    buffer_store_dword v11, v10, s[36:39], s72 offen offset:{4*ev}
    s_mov_b64 exec, s[74:75]""")
    a.label(f"RT_{rt.n}")
rt.n=0
def rt_init(a, base):
    if PROF!=3: return
    a(f"""s_add_u32 s77, s42, {base}
    s_lshl_b32 s77, s77, 10
    s_add_u32 s77, s77, {TSB}
    s_mov_b64 exec, 1
    v_mov_b32 v11, s78
    v_mov_b32 v10, 0
    buffer_store_dword v11, v10, s[36:39], s77 offen offset:12
    v_mov_b32 v11, s80
    buffer_store_dword v11, v10, s[36:39], s77 offen offset:28
    s_mov_b64 exec, -1""")
def stamp_init(a):
    if PROF not in (1,2): return
    for k in range(16): a(f"s_mov_b32 s{80+k}, 0")
    a("s_memtime s[70:71]"); a("s_waitcnt lgkmcnt(0)"); a("s_mov_b32 s73, s70")
def stamp_dump(a, base_add):
    if PROF not in (1,2): return
    a(f"""s_add_u32 s74, s42, {base_add}
    s_lshl_b32 s74, s74, 2
    s_add_u32 s74, s74, s40
    s_lshl_b32 s74, s74, 6
    s_add_u32 s74, s74, {STAMPS}
    s_mov_b64 exec, 1
    v_mov_b32 v2, 0""")
    for k in range(16):
        a(f"v_mov_b32 v3, s{80+k}")
        a(f"buffer_store_dword v3, v2, s[36:39], s74 offen offset:{4*k}")
    a("s_mov_b64 exec, -1")

AOP=16; IDX=44; ACC=48
def wfrag(i):
    return ar(8*i,8) if i<32 else vr(176+8*(i-32),8)
def wfrag_half(i,h):
    return ar(8*i+4*h,4) if i<32 else vr(176+8*(i-32)+4*h,4)

class LdsQ:
    def __init__(self,a): self.a=a; self.n=0; self.done=0
    def issue(self, s): self.a(s); self.n+=1; return self.n
    def wait(self, op):
        if op<=self.done: return
        k=self.n-op
        self.a(f"s_waitcnt lgkmcnt({min(k,15)})") if k<=15 else None
        assert k<=15
        self.done=op
    def wait_all(self):
        self.a("s_waitcnt lgkmcnt(0)"); self.done=self.n

def chain_common_setup(a):
    a("""v_and_b32 v2, 15, v1
    v_lshrrev_b32 v3, 4, v1
    v_lshlrev_b32 v4, 4, v1                 ; lane*16
    v_lshlrev_b32 v5, 4, v0                 ; chunk t
    v_add_u32 v6, 4096, v5
    v_cmp_gt_u32 vcc, 192, v0
    s_nop 1
    v_cndmask_b32 v6, v5, v6, vcc           ; chunk t+256 (or t)
    v_mov_b32 v%d, 0x4444
    v_mov_b32 v9, 0xeeee
    v_cmp_gt_u32 vcc, 8, v2
    s_nop 1
    v_cndmask_b32 v%d, v9, v%d, vcc""" % (IDX,IDX,IDX))

def poll_mem2(a, tag, soff, A, B, tmp, lds_base, addrs=(5,6)):
    n=len(addrs)
    def issue(R):
        for k,v in enumerate(addrs): a(f"buffer_load_dwordx4 {vr(R+4*k,4)}, v{v}, s[36:39], {soff} offen sc1")
    def check(R):
        regs=[R+i for i in range(4*n)]
        a(f"v_max3_u32 v{tmp}, v{regs[0]}, v{regs[1]}, v{regs[2]}")
        i=3
        while i+1<len(regs): a(f"v_max3_u32 v{tmp}, v{tmp}, v{regs[i]}, v{regs[i+1]}"); i+=2
        if i<len(regs): a(f"v_max_u32 v{tmp}, v{tmp}, v{regs[i]}")
        a(f"v_cmp_eq_u32 vcc, -1, v{tmp}")
    issue(A)
    a("s_nop 15"); a("s_nop 15")
    issue(B)
    a.label(tag)
    spin_guard(a)
    if PROF in (1,2): a("s_add_u32 s89, s89, 63")
    a(f"s_waitcnt vmcnt({n})")
    check(A)
    a(f"s_cbranch_vccz {tag}_DA")
    issue(A)
    a(f"s_waitcnt vmcnt({n})")
    check(B)
    a(f"s_cbranch_vccz {tag}_DB")
    issue(B)
    a(f"s_branch {tag}")
    for nm,R in (("DA",A),("DB",B)):
        a.label(f"{tag}_{nm}")
        for k,v in enumerate(addrs): a(f"ds_write_b128 v{v}, {vr(R+4*k,4)} offset:{lds_base}")
        if nm=="DA": a(f"s_branch {tag}_J")
    a.label(f"{tag}_J")
    a("s_waitcnt lgkmcnt(0)")
    a("s_barrier")

def load_wtile(a, soff_sreg, vlane, frags, ldsinfo=None):
    for b in range(7):
        a(f"s_add_u32 s60, {soff_sreg}, {4096*b}")
        if frags is not None:
            a(f"buffer_load_dwordx4 {wfrag_half(frags[b],0)}, v{vlane}, s[36:39], s60 offen")
            a(f"buffer_load_dwordx4 {wfrag_half(frags[b],1)}, v{vlane}, s[36:39], s60 offen offset:2048")
        else:
            va, boff, tmp = ldsinfo
            a(f"buffer_load_dwordx4 {vr(tmp+8*b,4)}, v{vlane}, s[36:39], s60 offen")
            a(f"buffer_load_dwordx4 {vr(tmp+8*b+4,4)}, v{vlane}, s[36:39], s60 offen offset:2048")
    if frags is None:
        va, boff, tmp = ldsinfo
        a("s_waitcnt vmcnt(0)")
        for b in range(7):
            a(f"ds_write_b128 v{va}, {vr(tmp+8*b,4)} offset:{boff+2048*b}")
            a(f"ds_write_b128 v{va}, {vr(tmp+8*b+4,4)} offset:{boff+2048*b+1024}")
        a("s_waitcnt lgkmcnt(0)")

TT_RS=32
S_MEM=0; S_TT=7168; S_RED=S_TT+4*3584; RED_RS=272; RED_W=16*RED_RS; S_WL=S_RED+4*RED_W+64; S_KST=S_WL+4*14336
KX=76; KM=108; TOP=124; SACC=132; WLT=144
def score(a):
    a.label("K2_SCORE")
    if PROF==3: a("s_memrealtime s[80:81]"); a("s_waitcnt lgkmcnt(0)")
    chain_common_setup(a)
    a("""s_mul_i32 s48, s40, 112
    s_and_b32 s49, s40, 1
    s_lshl_b32 s50, s49, 4
    s_add_u32 s50, s48, s50              ; qa
    s_cmp_eq_u32 s49, 0
    s_cselect_b32 s51, 96, 0
    s_add_u32 s51, s48, s51              ; qs
    s_mul_i32 s52, s42, 14*28*1024
    s_add_u32 s52, s52, %d               ; head base""" % WTA)
    a("""v_lshrrev_b32 v9, 1, v3
    v_lshlrev_b32 v9, 10, v9
    v_and_b32 v10, 1, v3
    v_lshl_add_u32 v9, v10, 9, v9
    v_lshl_add_u32 v9, v2, 4, v9
    s_mul_i32 s53, s40, 14336
    s_add_u32 s53, s53, %d
    v_add_u32 v12, s53, v4               ; WL lds addr""" % S_WL)
    for u in range(7):
        if u<6: a(f"s_add_u32 s54, s50, {16*u}")
        else: a("s_mov_b32 s54, s51")
        a("""s_lshr_b32 s55, s54, 5
        s_mul_i32 s55, s55, 28*1024
        s_and_b32 s56, s54, 31
        s_lshl_b32 s56, s56, 4
        s_add_u32 s55, s55, s56
        s_add_u32 s55, s55, s52""")
        if u<6: load_wtile(a, "s55", 9, [7*u+b for b in range(7)])
        else: load_wtile(a, "s55", 9, None, (12, 0, 48))
    a("""s_mul_i32 s53, s40, 3584
    s_add_u32 s53, s53, %d
    v_bfe_u32 v10, v2, 1, 2
    v_xor_b32 v10, v10, v3
    v_lshlrev_b32 v13, 5, v2
    v_lshl_add_u32 v13, v10, 3, v13
    v_add_u32 v13, s53, v13               ; TT write addr""" % S_TT)
    a("""v_lshrrev_b32 v10, 2, v2              ; r
    v_and_b32 v11, 3, v2                  ; cc
    v_lshl_add_u32 v14, v3, 3, v10        ; 8g + r
    v_lshlrev_b32 v14, 5, v14
    v_add_u32 v14, s53, v14
    v_lshrrev_b32 v15, 1, v10             ; r>>1
    v_xor_b32 v15, v15, v11               ; cc ^ (r>>1)          (p=0)
    v_xor_b32 v11, 2, v15                 ; cc ^ (2 + (r>>1))    (p=1)
    v_lshl_add_u32 v15, v15, 3, v14       ; addr p=0
    v_lshl_add_u32 v14, v11, 3, v14
    v_add_u32 v14, 128, v14""")
    a("""s_lshl_b32 s53, s49, 9
    v_subrev_u32 v160, s53, v15
    v_subrev_u32 v161, s53, v14
    v_lshrrev_b32 v10, 1, v3
    v_cmp_eq_u32 s[64:65], s49, v10
    s_nop 1
    v_cndmask_b32 v160, v15, v160, s[64:65]
    v_cndmask_b32 v161, v14, v161, s[64:65]
    v_cndmask_b32 v45, 0, -1, s[64:65]    ; and-mask""")
    a("""v_and_b32 v10, 7, v2
    v_lshl_add_u32 v10, v3, 4, v10
    v_lshlrev_b32 v10, 4, v10""")
    for m in range(4):
        if m<3: a(f"s_lshr_b32 s53, s50, 5\ns_add_u32 s53, s53, {m}")
        else: a("s_lshr_b32 s53, s51, 5")
        a(f"""s_lshr_b32 s54, s53, 1
        s_lshl_b32 s54, s54, 10
        s_and_b32 s55, s53, 1
        s_lshl_b32 s55, s55, 7
        s_add_u32 s54, s54, s55
        v_add_u32 v{162+m}, s54, v10""")
    a("""s_lshr_b32 s53, s50, 5
    s_lshl_b32 s53, s53, 10
    v_add_u32 v166, s53, v4
    s_lshr_b32 s53, s51, 5
    s_lshl_b32 s53, s53, 10
    v_add_u32 v167, s53, v4""")
    a("""s_mul_i32 s53, s40, %d
    s_add_u32 s53, s53, %d
    v_mul_u32_u24 v168, %d, v2
    v_lshl_add_u32 v168, v3, 4, v168
    v_add_u32 v168, s53, v168""" % (RED_W,S_RED,RED_RS))
    a("""v_add_u32 v10, 2, v2
    v_cmp_gt_u32 vcc, 2, v2
    s_nop 1
    v_cndmask_b32 v10, v10, v2, vcc
    v_min_u32 v10, 11, v10
    v_and_b32 v11, 1, v3
    s_lshl_b32 s53, s40, 1
    v_add_u32 v11, s53, v11               ; i
    v_mul_u32_u24 v169, %d, v11
    v_lshl_add_u32 v169, v10, 4, v169
    v_add_u32 v169, %d, v169              ; RED read addr
    v_subrev_u32 v10, 2, v2               ; q-2
    v_lshrrev_b32 v170, 1, v10
    v_lshlrev_b32 v170, 7, v170
    v_lshl_add_u32 v170, v11, 4, v170
    v_and_b32 v10, 1, v10
    v_lshl_add_u32 v170, v10, 3, v170     ; x part offset
    v_lshlrev_b32 v10, 6, v2
    v_lshl_add_u32 v10, v11, 3, v10
    v_add_u32 v10, 512, v10               ; mem part offset
    v_cmp_gt_u32 vcc, 2, v2
    s_nop 1
    v_cndmask_b32 v170, v170, v10, vcc
    s_mul_i32 s53, s42, 640
    v_add_u32 v170, s53, v170             ; P store voffset
    v_cmp_gt_u32 s[62:63], 10, v2
    v_cmp_gt_u32 vcc, 32, v1
    s_and_b64 s[62:63], s[62:63], vcc
    v_mov_b32 v46, 0xff7fffff
    s_mov_b32 s68, 0x3fb8aa3b""" % (RED_RS,S_RED))
    a(f"""s_lshl_b32 s76, s40, 13
    s_add_u32 s76, s76, {S_KST}
    v_add_u32 v171, s76, v4""")
    def dma_kx_list():
        out=[]
        for kt in range(2):
            for m in range(4):
                def f(kt=kt,m=m):
                    a(f"s_add_u32 m0, s76, {4096*kt+1024*m - (1024*m if m<3 else 0)}")
                    a(f"s_add_u32 s61, s56, {14*1024*kt}")
                    if m<3: a(f"buffer_load_dwordx4 v166, s[36:39], s61 offen offset:{1024*m} lds")
                    else: a(f"buffer_load_dwordx4 v167, s[36:39], s61 offen lds")
                out.append(f)
        return out
    def rd_kx():
        for kt in range(2):
            for m in range(4):
                a(f"ds_read_b128 {vr(KX+16*kt+4*m,4)}, v171 offset:{4096*kt+1024*m}")
    a(f"s_mov_b32 s56, {XNP}")
    a(f"s_mov_b32 s57, {MEMX}")
    a(f"s_mov_b32 s58, {PX}")
    a("s_mov_b32 s59, 0")
    for f in dma_kx_list(): f()
    a("s_waitcnt vmcnt(0)")
    rd_kx()
    a("s_waitcnt lgkmcnt(0)")
    a(f"s_add_u32 s56, s56, {2*14*1024}")
    for f in dma_kx_list(): f()
    a("s_barrier")
    stamp_init(a); rt_init(a,0)
    a.label("SC_LOOP")
    L=LdsQ(a)
    wl={}
    def rd_wl(k):
        buf=WLT+8*(k&1)
        L.issue(f"ds_read_b128 {vr(buf,4)}, v12 offset:{2048*k}")
        wl[k]=L.issue(f"ds_read_b128 {vr(buf+4,4)}, v12 offset:{2048*k+1024}")
    rd_wl(0); rd_wl(1)
    for r in range(28): a(f"v_mov_b32 v{ACC+r}, 0")
    poll_mem2(a, "SC_POLL", "s57", KM, KM+8, 47, S_MEM)
    L.done=L.n
    stamp(a,0); rt(a,0)
    aop={}
    for b in range(7): aop[b]=L.issue(f"ds_read_b128 {vr(AOP+4*b,4)}, v4 offset:{S_MEM+1024*b}")
    order=[(u,b) for b in range(2) for u in range(6)]+[(u,b) for u in range(6) for b in range(2,7)]
    seq=[]; k=0; nr=0
    for (u,b) in order:
        seq.append(("r",u,b)); nr+=1
        if nr%4==0 and k<7: seq.append(("l",6,k)); k+=1
    assert k==7 and len(seq)==49
    last={}
    for n,(t,u,b) in enumerate(seq): last[u]=n
    acts={}
    def at(n,f): acts.setdefault(n,[]).append(f)
    trd={}; kmr=[None]; first=[True]
    def km_read():
        a("s_waitcnt vmcnt(0)")
        for m in range(4): kmr[0]=L.issue(f"ds_read_b128 {vr(KM+4*m,4)}, v{162+m} offset:{S_MEM}")
    def cvt_write(u):
        def f():
            a(f"v_cvt_pk_bf16_f32 v{ACC+4*u}, v{ACC+4*u}, v{ACC+4*u+1}")
            a(f"v_cvt_pk_bf16_f32 v{ACC+4*u+1}, v{ACC+4*u+2}, v{ACC+4*u+3}")
            L.issue(f"ds_write_b64 v13, {vr(ACC+4*u,2)} offset:{512*u}")
        return f
    def tr_read(m):
        def f():
            t=TOP+4*(m&1) if m<3 else 172
            if m<3:
                L.issue(f"ds_read_b64_tr_b16 {vr(t,2)}, v15 offset:{1024*m}")
                trd[m]=L.issue(f"ds_read_b64_tr_b16 {vr(t+2,2)}, v14 offset:{1024*m}")
            else:
                L.issue(f"ds_read_b64_tr_b16 {vr(t,2)}, v160 offset:3072")
                trd[m]=L.issue(f"ds_read_b64_tr_b16 {vr(t+2,2)}, v161 offset:3072")
        return f
    def s_mask(m):
        def f():
            t=172
            L.wait(trd[m])
            for r in range(4): a(f"v_and_b32 v{t+r}, v45, v{t+r}")
        return f
    def s_mfma(m):
        def f():
            t=TOP+4*(m&1) if m<3 else 172
            L.wait(kmr[0]); L.wait(trd[m])
            for kt in range(3):
                A = vr(KM+4*m,4) if kt==0 else vr(KX+16*(kt-1)+4*m,4)
                c = "0" if first[0] else vr(SACC+4*kt,4)
                a(f"v_mfma_f32_16x16x32_bf16 {vr(SACC+4*kt,4)}, {A}, {vr(t,4)}, {c}")
            first[0]=False
        return f
    at(10, km_read)
    for u in range(7):
        if u!=5: at(last[u]+3, cvt_write(u))
    at(last[1]+4, tr_read(0)); at(last[1]+9, s_mfma(0))
    at(last[3]+4, tr_read(1)); at(last[3]+9, s_mfma(1))
    p6=last[6]+4
    at(p6, tr_read(3)); at(p6+6, s_mask(3)); at(p6+8, s_mfma(3))
    assert p6+8 < len(seq), (p6,len(seq))
    for n,(t,u,b) in enumerate(seq):
        if t=="r":
            L.wait(aop[b])
            a(f"v_smfmac_f32_16x16x64_bf16 {vr(ACC+4*u,4)}, {vr(AOP+4*b,4)}, {wfrag(7*u+b)}, v{IDX}")
        else:
            L.wait(wl[b])
            a(f"v_smfmac_f32_16x16x64_bf16 {vr(ACC+24,4)}, {vr(AOP+4*b,4)}, {vr(WLT+8*(b&1),8)}, v{IDX}")
            if b+2<7: rd_wl(b+2)
        for f in acts.get(n,[]): f()
    assert max(acts)<len(seq)
    stamp(a,2)
    a(f"s_add_u32 s56, s56, {2*14*1024}")
    a("s_nop 6")
    cvt_write(5)(); tr_read(2)(); s_mfma(2)()
    a("s_nop 7")
    for kt in range(3): a(f"ds_write_b128 v168, {vr(SACC+4*kt,4)} offset:{64*kt}")
    a("s_waitcnt lgkmcnt(0)")
    stamp(a,4)
    a("s_barrier")
    stamp(a,5)
    T=ACC
    q=lambda k: (T+4*k if k<7 else TOP)
    for w in range(4):
        for hf in range(2):
            a(f"ds_read_b128 {vr(q(2*w+hf),4)}, v169 offset:{RED_W*w+8*RED_RS*hf}")
    def pka(d,x,y):
        for h in (0,2): a(f"v_pk_add_f32 {vr(d+h,2)}, {vr(x+h,2)}, {vr(y+h,2)}")
    a("s_waitcnt lgkmcnt(4)")
    pka(q(0),q(0),q(1)); pka(q(2),q(2),q(3)); pka(q(0),q(0),q(2))
    a("s_waitcnt lgkmcnt(0)")
    pka(q(4),q(4),q(5)); pka(q(6),q(6),q(7)); pka(q(4),q(4),q(6)); pka(q(0),q(0),q(4))
    a(f"v_max3_f32 v{T+4}, v{T}, v{T+1}, v{T+2}")
    a(f"v_max_f32 v{T+4}, v{T+4}, v{T+3}")
    a(f"v_cndmask_b32 v{T+4}, v46, v{T+4}, s[62:63]")
    for rr in (1,2,4,8):
        a("s_nop 1"); a(f"v_max_f32_dpp v{T+4}, v{T+4}, v{T+4} row_ror:{rr} row_mask:0xf bank_mask:0xf")
    a(f"v_mul_f32 v{T+4}, s68, v{T+4}")
    for r in range(4): a(f"v_fma_f32 v{T+r}, v{T+r}, s68, -v{T+4}")
    for r in range(4): a(f"v_exp_f32 v{T+r}, v{T+r}")
    a("s_nop 0")
    a(f"v_add_f32 v{T+5}, v{T}, v{T+1}")
    a(f"v_add_f32 v{T+6}, v{T+2}, v{T+3}")
    a(f"v_add_f32 v{T+5}, v{T+5}, v{T+6}")
    a(f"v_cndmask_b32 v{T+5}, 0, v{T+5}, s[62:63]")
    for rr in (1,2,4,8):
        a("s_nop 1"); a(f"v_add_f32_dpp v{T+5}, v{T+5}, v{T+5} row_ror:{rr} row_mask:0xf bank_mask:0xf")
    a(f"v_rcp_f32 v{T+5}, v{T+5}")
    a("s_nop 0")
    for r in range(4): a(f"v_mul_f32 v{T+r}, v{T+r}, v{T+5}")
    a(f"v_cvt_pk_bf16_f32 v{T+6}, v{T}, v{T+1}")
    a(f"v_cvt_pk_bf16_f32 v{T+7}, v{T+2}, v{T+3}")
    a(f"v_min_u32 v{T+6}, 0xfffffffe, v{T+6}")
    a(f"v_min_u32 v{T+7}, 0xfffffffe, v{T+7}")
    a("s_mov_b64 exec, s[62:63]")
    a(f"buffer_store_dwordx2 {vr(T+6,2)}, v170, s[36:39], s58 offen")
    a("s_mov_b64 exec, -1")
    stamp(a,6); rt(a,1)
    a("s_waitcnt vmcnt(1)")
    rd_kx()
    a("s_waitcnt lgkmcnt(0)")
    for f in dma_kx_list(): f()
    a("""s_add_u32 s57, s57, 7168
    s_add_u32 s58, s58, 10240
    s_add_u32 s59, s59, 1
    s_cmp_lt_u32 s59, %d
    s_cbranch_scc1 SC_LOOP""" % NSTEPS)
    stamp_dump(a,0)
    a("s_endpgm")

V_MEM=0; V_P=0; V_PART=10240; PART_RS=144; PART_W=8*PART_RS; V_WL=V_PART+4*PART_W+64; V_ZST=V_WL+4*28672
ZX=80; PXR=112; PMR=128; OACC=136; VWLT=144; VT=160; ZB=144
def value(a):
    a.label("K2_VALUE")
    if PROF==3: a("s_memrealtime s[80:81]"); a("s_waitcnt lgkmcnt(0)")
    chain_common_setup(a)
    a("""v_lshrrev_b32 v9, 1, v3
    v_lshlrev_b32 v9, 10, v9
    v_and_b32 v10, 1, v3
    v_lshl_add_u32 v9, v10, 9, v9
    v_lshl_add_u32 v9, v2, 4, v9
    s_mul_i32 s53, s40, 28672
    s_add_u32 s53, s53, %d
    v_add_u32 v12, s53, v4              ; WL lds addr""" % V_WL)
    for hh in range(4):
        for ct in range(2):
            a(f"""s_lshl_b32 s54, s40, 2
            s_add_u32 s54, s54, {hh}
            s_mul_i32 s54, s54, 14
            s_add_u32 s54, s54, s42
            s_mul_i32 s55, s54, 28*1024
            s_add_u32 s55, s55, {WTB+256*ct}""")
            t=2*hh+ct
            if t<6: load_wtile(a,"s55",9,[7*t+b for b in range(7)])
            else: load_wtile(a,"s55",9,None,(12,14336*(t-6),48))
    a("""v_and_b32 v10, 7, v2
    s_mul_i32 s53, s40, 2560
    v_lshlrev_b32 v13, 7, v3
    v_lshl_add_u32 v13, v10, 4, v13
    v_add_u32 v13, s53, v13              ; P x part: g*128 + i*16
    v_and_b32 v11, 1, v3
    v_lshlrev_b32 v14, 6, v11
    v_lshl_add_u32 v14, v10, 3, v14
    v_add_u32 v14, s53, v14
    v_add_u32 v14, 512, v14
    v_add_u32 v7, 8192, v5
    v_cmp_gt_u32 vcc, 128, v0
    s_nop 1
    v_cndmask_b32 v7, v5, v7, vcc
    v_add_u32 v8, 4096, v5               ; P chunk t+256""")
    a("""v_and_b32 v10, 7, v2
    v_mul_u32_u24 v%d, %d, v10
    v_lshl_add_u32 v%d, v3, 4, v%d
    s_mul_i32 s53, s40, %d
    s_add_u32 s53, s53, %d
    v_add_u32 v%d, s53, v%d
    v_cmp_gt_u32 s[64:65], 8, v2""" % (VT,PART_RS,VT,VT,PART_W,V_PART,VT,VT))
    a("""v_and_b32 v10, 1, v3
    s_lshl_b32 s53, s40, 1
    v_add_u32 v10, s53, v10              ; i
    v_mul_u32_u24 v%d, %d, v10
    v_lshl_add_u32 v%d, v2, 3, v%d
    v_add_u32 v%d, %d, v%d""" % (VT+1,PART_RS,VT+1,VT+1,VT+1,V_PART,VT+1))
    a("""v_and_b32 v11, 1, v2
    v_lshl_add_u32 v%d, v11, 3, v10
    v_lshrrev_b32 v11, 3, v2
    v_lshl_add_u32 v%d, v11, 4, v%d
    v_lshlrev_b32 v%d, 4, v%d
    v_bfe_u32 v11, v2, 1, 2
    v_lshl_add_u32 v%d, v11, 2, v%d
    s_lshr_b32 s53, s42, 1
    s_lshl_b32 s53, s53, 10
    s_and_b32 s54, s42, 1
    s_lshl_b32 s54, s54, 9
    s_add_u32 s53, s53, s54
    v_add_u32 v%d, s53, v%d
    v_cmp_gt_u32 s[62:63], 32, v1""" % ((VT+2,)*9))
    a("""v_lshlrev_b32 v%d, 4, v2
    v_and_b32 v11, 1, v3
    v_lshl_add_u32 v%d, v11, 3, v%d
    v_lshrrev_b32 v11, 1, v3
    v_lshl_add_u32 v%d, v11, 2, v%d""" % ((VT+3,)*5))
    a(f"""s_mul_i32 s66, s40, 28*1024
    s_lshl_b32 s53, s42, 11
    s_add_u32 s66, s66, s53
    s_add_u32 s66, s66, {MBL}
    s_lshl_b32 s53, s40, 2
    s_mul_i32 s56, s53, 28*1024
    s_lshl_b32 s53, s42, 11
    s_add_u32 s56, s56, s53
    s_add_u32 s56, s56, {VO}
    s_mov_b32 s57, {MEMX}
    s_mov_b32 s58, {PX}
    s_mov_b32 s59, 0
    s_mov_b32 s67, {FLAGS}
    v_mov_b32 v{VT+4}, 0""")
    a(f"""s_lshl_b32 s76, s40, 13
    s_add_u32 s76, s76, {V_ZST}
    v_add_u32 v{VT+6}, s76, v4
    s_mul_i32 s53, s40, {PART_W}
    s_add_u32 s53, s53, {V_PART}
    v_add_u32 v10, s53, v{VT+3}
    v_mov_b32 v15, v10
    v_add_u32 v11, s53, v4
    v_mov_b32 v9, v11""")
    def dma_zx_list():
        out=[]
        for hh in range(4):
            for ct in range(2):
                def f(hh=hh,ct=ct):
                    a(f"s_add_u32 m0, s76, {2048*hh}")
                    a(f"s_add_u32 s61, s56, {28*1024*hh}")
                    a(f"buffer_load_dwordx4 v4, s[36:39], s61 offen offset:{1024*ct} lds")
                out.append(f)
        return out
    def rd_zx():
        for hh in range(4):
            for ct in range(2):
                a(f"ds_read_b128 {vr(ZX+8*hh+4*ct,4)}, v{VT+6} offset:{2048*hh+1024*ct}")
    def wait_vo(tag):
        a.label(tag)
        spin_guard(a)
        a(f"buffer_load_dword v{VT+7}, v{VT+4}, s[36:39], s67 offen sc1")
        a("s_waitcnt vmcnt(0)")
        a(f"v_cmp_gt_u32 vcc, 224, v{VT+7}")
        a(f"s_cbranch_vccnz {tag}")
        a("s_add_u32 s67, s67, 128")
    wait_vo("VA_WVO0")
    for f in dma_zx_list(): f()
    a("s_waitcnt vmcnt(0)")
    rd_zx()
    a("s_waitcnt lgkmcnt(0)")
    a(f"s_add_u32 s56, s56, {16*28*1024}")
    a("s_barrier")
    stamp_init(a); rt_init(a,16)
    SEL=172
    a("""v_and_b32 v10, 7, v2                   ; key
    v_lshrrev_b32 v11, 3, v2               ; hd'
    v_lshrrev_b32 v16, 2, v10              ; key>>2
    v_and_b32 v17, 1, v3
    v_cmp_eq_u32 vcc, v16, v17             ; cond
    v_and_b32 v16, 3, v10
    v_lshl_add_u32 v16, v11, 2, v16
    v_and_b32 v17, 1, v16
    v_lshlrev_b32 v17, 4, v17
    v_mov_b32 v18, 0x3f80
    v_lshlrev_b32 v18, v17, v18
    v_cndmask_b32 v18, 0, v18, vcc
    v_lshrrev_b32 v16, 1, v16""")
    for r in range(4):
        a(f"v_cmp_eq_u32 vcc, {r}, v16")
        a("s_nop 1")
        a(f"v_cndmask_b32 v{SEL+r}, 0, v18, vcc")
    a(f"""v_lshrrev_b32 v10, 1, v3
    v_lshl_add_u32 v10, v10, 4, v2
    v_lshlrev_b32 v10, 4, v10
    v_and_b32 v11, 1, v3
    v_lshl_add_u32 v{VT+3}, v11, 3, v10""")
    a.label("VA_LOOP")
    L=LdsQ(a)
    wl={}
    def rd_wl(k):
        buf=VWLT+8*(k&1)
        off=14336*(k//7)+2048*(k%7)
        L.issue(f"ds_read_b128 {vr(buf,4)}, v12 offset:{off}")
        wl[k]=L.issue(f"ds_read_b128 {vr(buf+4,4)}, v12 offset:{off+1024}")
    rd_wl(0); rd_wl(1)
    for r in range(32): a(f"v_mov_b32 v{ACC+r}, 0")
    poll_mem2(a, "VA_POLL", "s57", PXR, PXR+8, VT+7, V_MEM)
    L.done=L.n
    stamp(a,0); rt(a,0)
    aop={}
    for b in range(7): aop[b]=L.issue(f"ds_read_b128 {vr(AOP+4*b,4)}, v4 offset:{V_MEM+1024*b}")
    a("""s_and_b32 s60, s59, 3
    s_cmp_eq_u32 s60, 3
    s_cbranch_scc0 VA_NOW
    s_cmp_ge_u32 s59, 60
    s_cbranch_scc1 VA_NOW""")
    wait_vo("VA_WVO")
    a.label("VA_NOW")
    dz=dma_zx_list()
    k=0; nr=0
    for t in range(6):
        for b in range(7):
            L.wait(aop[b])
            a(f"v_smfmac_f32_16x16x64_bf16 {vr(ACC+4*t,4)}, {vr(AOP+4*b,4)}, {wfrag(7*t+b)}, v{IDX}")
            nr+=1
            if nr%4==2 and dz: dz.pop(0)()
            if nr%3==0:
                L.wait(wl[k])
                a(f"v_smfmac_f32_16x16x64_bf16 {vr(ACC+4*(6+k//7),4)}, {vr(AOP+4*(k%7),4)}, {vr(VWLT+8*(k&1),8)}, v{IDX}")
                if k+2<14: rd_wl(k+2)
                k+=1
    assert k==14
    a("s_nop 7")
    stamp(a,3)
    for pp in range(2):
        for ct in range(2):
            x=ACC+4*(4*pp+ct); y=ACC+4*(4*pp+2+ct)
            a(f"v_cvt_pk_bf16_f32 v{x}, v{x}, v{x+1}")
            a(f"v_cvt_pk_bf16_f32 v{x+1}, v{x+2}, v{x+3}")
            a(f"v_cvt_pk_bf16_f32 v{x+2}, v{y}, v{y+1}")
            a(f"v_cvt_pk_bf16_f32 v{x+3}, v{y+2}, v{y+3}")
    a("s_nop 1")
    for pp in range(2):
        for ct in range(2):
            x=ACC+4*(4*pp+ct); y=ACC+4*(4*pp+2+ct)
            a(f"v_mfma_f32_16x16x32_bf16 {vr(y,4)}, {vr(SEL,4)}, {vr(x,4)}, 0")
    a("s_nop 4")
    for pp in range(2):
        for ct in range(2):
            y=ACC+4*(4*pp+2+ct)
            a(f"v_cvt_pk_bf16_f32 v{y}, v{y}, v{y+1}")
            a(f"v_cvt_pk_bf16_f32 v{y+1}, v{y+2}, v{y+3}")
            a(f"buffer_store_dwordx2 {vr(y,2)}, v{VT+3}, s[36:39], s66 offen offset:{1024*ct+512*pp}")
    a(f"s_add_u32 s66, s66, {4*28*1024}")
    a(f"s_cmp_eq_u32 s59, {NSTEPS}")
    a("s_cbranch_scc1 VA_END")
    stamp(a,4)
    if PROF==2:
        a("s_waitcnt vmcnt(4)")
        stamp(a,11)
        a("s_waitcnt vmcnt(0)")
        stamp(a,12)
    a("s_barrier")
    poll_mem2(a, "VA_POLLP", "s58", PXR, AOP, VT+7, V_P, addrs=(5,8,7))
    a("s_waitcnt vmcnt(3)")
    for hh in range(4):
        a(f"ds_read_b128 {vr(ZB+4*hh,4)}, v13 offset:{V_P+640*hh}")
        a(f"ds_read_b64 {vr(PMR+2*hh,2)}, v14 offset:{V_P+640*hh}")
    fst=[True,True]
    for hh in range(4):
        a(f"s_waitcnt lgkmcnt({6-2*hh})")
        for ct in range(2):
            c="0" if fst[ct] else vr(OACC+4*ct,4); fst[ct]=False
            a(f"v_mfma_f32_16x16x32_bf16 {vr(OACC+4*ct,4)}, {vr(ZX+8*hh+4*ct,4)}, {vr(ZB+4*hh,4)}, {c}")
    for pp in range(2):
        for ct in range(2):
            a(f"v_mfma_f32_16x16x32_bf16 {vr(OACC+4*ct,4)}, {vr(ACC+4*(4*pp+ct),4)}, {vr(PMR+4*pp,4)}, {vr(OACC+4*ct,4)}")
    a.label("VA_PJ")
    stamp(a,5); rt(a,1)
    a(f"""s_add_u32 s57, s57, 7168
    s_add_u32 s56, s56, {16*28*1024}
    s_add_u32 s58, s58, 10240
    s_add_u32 s59, s59, 1
    s_mov_b64 exec, s[64:65]
    s_nop 2""")
    for ct in range(2): a(f"ds_write_b128 v{VT}, {vr(OACC+4*ct,4)} offset:{64*ct}")
    a("s_mov_b64 exec, -1")
    a("s_waitcnt lgkmcnt(0)")
    a("s_barrier")
    stamp(a,6)
    T=ZX
    for w in range(4): a(f"ds_read_b64 {vr(T+2*w,2)}, v{VT+1} offset:{PART_W*w}")
    a("s_waitcnt lgkmcnt(2)")
    a(f"v_pk_add_f32 {vr(T,2)}, {vr(T,2)}, {vr(T+2,2)}")
    a("s_waitcnt lgkmcnt(0)")
    a(f"v_pk_add_f32 {vr(T+4,2)}, {vr(T+4,2)}, {vr(T+6,2)}")
    a(f"v_pk_add_f32 {vr(T,2)}, {vr(T,2)}, {vr(T+4,2)}")
    a(f"v_cvt_pk_bf16_f32 v{VT+5}, v{T}, v{T+1}")
    a(f"v_min_u32 v{VT+5}, 0xfffffffe, v{VT+5}")
    a("s_mov_b64 exec, s[62:63]")
    a(f"buffer_store_dword v{VT+5}, v{VT+2}, s[36:39], s57 offen")
    a("s_mov_b64 exec, -1")
    s59fix=True
    stamp(a,7); rt(a,2)
    a("s_waitcnt vmcnt(1)")
    rd_zx()
    stamp(a,8)
    a("s_branch VA_LOOP")
    a.label("VA_END")
    a("""s_waitcnt vmcnt(0)
    s_barrier
    s_add_u32 s57, s57, 7168
    v_mov_b32 v%d, 0
    s_mov_b64 exec, s[62:63]
    buffer_store_dword v%d, v%d, s[36:39], s57 offen
    s_mov_b64 exec, -1""" % (VT+5,VT+5,VT+2))
    stamp_dump(a,16)
    a("s_endpgm")

def helper(a):
    a.label("K2_HELPER")
    a("""v_lshlrev_b32 v5, 4, v0                 ; chunk t
    v_add_u32 v6, 4096, v5
    v_cmp_gt_u32 vcc, 192, v0
    s_nop 1
    v_cndmask_b32 v6, v5, v6, vcc
    v_lshlrev_b32 v4, 4, v1
    s_mul_i32 s48, s40, 28672               ; wave's 28 KB part
    s_mul_i32 s49, s42, %d
    s_add_u32 s48, s48, s49
    s_add_u32 s56, s48, %d                  ; src
    s_add_u32 s58, s48, %d                  ; dst
    s_mul_i32 s49, s42, 7168
    s_add_u32 s57, s49, %d                  ; MEMX[s+1]
    s_mov_b32 s59, s42
    s_lshl_b32 s49, s42, 7
    s_add_u32 s67, s49, %d                  ; CH flags
    v_mov_b32 v7, 0
    v_mov_b32 v8, 1""" % (4*28*1024, MBL, MB, MEMX+7168, FLAGS+128*32))
    rt_init(a,30)
    a.label("HE_LOOP")
    a.label("HE_POLL")
    spin_guard(a)
    a("""buffer_load_dwordx4 v[16:19], v5, s[36:39], s57 offen sc1
    buffer_load_dwordx4 v[20:23], v6, s[36:39], s57 offen sc1
    s_waitcnt vmcnt(0)
    v_max3_u32 v9, v16, v17, v18
    v_max3_u32 v9, v9, v19, v20
    v_max3_u32 v9, v9, v21, v22
    v_max_u32 v9, v9, v23
    v_cmp_eq_u32 vcc, -1, v9
    s_cbranch_vccnz HE_POLL
    s_barrier""")
    a(f"s_add_u32 s61, s57, {MEMN-MEMX}")
    a("buffer_store_dwordx4 v[16:19], v5, s[36:39], s61 offen sc1")
    a("buffer_store_dwordx4 v[20:23], v6, s[36:39], s61 offen sc1")
    for j in range(28):
        a(f"s_add_u32 s60, s56, {1024*(j&~3)}")
        a(f"buffer_load_dwordx4 {vr(32+4*j,4)}, v4, s[36:39], s60 offen offset:{1024*(j&3)} sc1")
    a("s_waitcnt vmcnt(28)")
    a("""s_barrier
    s_cmp_eq_u32 s40, 0
    s_cbranch_scc0 HE_NOM
    s_mov_b64 exec, 1
    s_add_u32 s60, s67, %d
    buffer_atomic_add v8, v7, s[36:39], s60 offen
    s_mov_b64 exec, -1""" % (128*(400+1-32)))
    a.label("HE_NOM")
    for j in range(28):
        a(f"s_waitcnt vmcnt(27)")
        a(f"s_add_u32 s60, s58, {1024*(j&~3)}")
        a(f"buffer_store_dwordx4 {vr(32+4*j,4)}, v4, s[36:39], s60 offen offset:{1024*(j&3)} sc1")
    a("""s_waitcnt vmcnt(0)
    s_barrier
    s_cmp_eq_u32 s40, 0
    s_cbranch_scc0 HE_NOF
    s_mov_b64 exec, 1
    buffer_atomic_add v8, v7, s[36:39], s67 offen
    s_mov_b64 exec, -1""")
    a.label("HE_NOF")
    rt(a,0)
    a(f"""s_add_u32 s56, s56, {2*4*28*1024}
    s_add_u32 s58, s58, {2*4*28*1024}
    s_add_u32 s57, s57, {2*7168}
    s_add_u32 s67, s67, 256
    s_add_u32 s59, s59, 2
    s_cmp_lt_u32 s59, 64
    s_cbranch_scc1 HE_LOOP
    s_endpgm""")

def k2():
    a=Asm()
    a("s_cmp_ge_u32 s2, 256"); a("s_cbranch_scc1 K2_EXIT")
    if PROF==3: a("s_memrealtime s[78:79]")
    prologue(a)
    srd(a,44,32,256)
    a("s_mov_b32 s99, 3000000")
    a("""s_getreg_b32 s41, hwreg(HW_REG_XCC_ID)
    s_and_b32 s41, s41, 7
    s_cmp_eq_u32 s40, 0
    s_cbranch_scc0 K2_WAITROLE
    s_mov_b64 exec, 1
    s_lshl_b32 s48, s41, 7
    s_add_u32 s48, s48, 24196864
    s_mov_b32 s49, 24198144
    v_mov_b32 v2, 0
    v_mov_b32 v3, 1
    buffer_atomic_add v3, v2, s[36:39], s48 offen sc0
    s_waitcnt vmcnt(0)
    v_cmp_eq_u32 vcc, 31, v3
    s_cbranch_vccz K2_POLLCH
    v_mov_b32 v4, s41
    v_add_u32 v4, 1, v4
    v_mov_b32 v5, 0
    buffer_atomic_cmpswap v[4:5], v2, s[36:39], s49 offen
    s_waitcnt vmcnt(0)""")
    a.label("K2_POLLCH")
    spin_guard(a)
    a("""buffer_load_dword v4, v2, s[36:39], s49 offen sc1
    s_waitcnt vmcnt(0)
    v_cmp_eq_u32 vcc, 0, v4
    s_cbranch_vccnz K2_POLLCH
    v_mov_b32 v2, 0
    v_mov_b32 v6, v3
    v_mov_b32 v7, v4
    ds_write_b64 v2, v[6:7]
    s_waitcnt lgkmcnt(0)
    s_mov_b64 exec, -1""")
    a.label("K2_WAITROLE")
    a("""s_barrier
    v_mov_b32 v2, 0
    ds_read_b64 v[4:5], v2
    s_waitcnt lgkmcnt(0)
    v_readfirstlane_b32 s42, v4
    v_readfirstlane_b32 s43, v5
    s_barrier
    s_sub_u32 s43, s43, 1
    s_cmp_eq_u32 s41, s43
    s_cbranch_scc0 K2_WORKER
    s_cmp_lt_u32 s42, 16
    s_cbranch_scc1 K2_SCORE
    s_cmp_lt_u32 s42, 30
    s_cbranch_scc0 K2_H0
    s_sub_u32 s42, s42, 16
    s_branch K2_VALUE""")
    a.label("K2_H0")
    a("""s_cmp_lt_u32 s42, 32
    s_cbranch_scc0 K2_WORKER
    s_sub_u32 s42, s42, 30
    s_branch K2_HELPER""")
    a.label("K2_EXIT"); a("s_endpgm")
    a.label("K2_ABORT")
    srd(a,44,32,256)
    a("""s_mov_b64 exec, 1
    v_mov_b32 v2, 60
    v_mov_b32 v3, 1
    buffer_atomic_add v3, v2, s[44:47], 0 offen
    s_endpgm""")
    if os.environ.get("NOCHAIN"):
        for nm in ("K2_SCORE","K2_VALUE","K2_HELPER"): a.label(nm); a("s_endpgm")
    else:
        score(a); value(a); helper(a)
    a.label("K2_WORKER")
    try:
        import gen3
        gen3.worker(a)
    except ImportError:
        a("s_endpgm")
    return a.text()

def kernels():
    ks=[("k2_kernel",k2(),256,256,V_ZST+32768,512,256)]
    try:
        import gen3
        ks+=gen3.kernels()
    except ImportError: pass
    return ks
```

```python
from gen import *
import os

def gemm_wave(a, MI, NI, KS, sA, strideA, sB, strideB, vlane, bufA, bufB, modsB="", modsA="", CH=4):
    nch=KS//CH
    assert KS%CH==0
    tmp="s60"
    def ldA(mi,c):
        for k in range(CH):
            off=(c*CH+k)*1024
            a(f"s_add_u32 {tmp}, {sA}, {mi*strideA+(off//4096)*4096}")
            a(f"buffer_load_dwordx4 {vr(bufA+(mi*CH+k)*4,4)}, v{vlane}, s[36:39], {tmp} offen offset:{off%4096} {modsA}")
    def ldB(ni,c):
        for k in range(CH):
            off=(c*CH+k)*1024
            a(f"s_add_u32 {tmp}, {sB}, {ni*strideB+(off//4096)*4096}")
            a(f"buffer_load_dwordx4 {vr(bufB+((c&1)*NI*CH+ni*CH+k)*4,4)}, v{vlane}, s[36:39], {tmp} offen offset:{off%4096} {modsB}")
    q=[]
    def issue(tag,n): q.extend([tag]*n)
    def wait(tag):
        idx=max(i for i,t in enumerate(q) if t==tag)
        n=len(q)-1-idx
        a(f"s_waitcnt vmcnt({min(n,63)})")
    for ni in range(NI): ldB(ni,0); issue(("B",0),CH)
    for mi in range(MI): ldA(mi,0); issue(("A",mi,0),CH)
    for c in range(nch):
        if c+1<nch:
            pass
        for mi in range(MI):
            if mi==0: wait(("B",c))
            wait(("A",mi,c))
            for k in range(CH):
                for ni in range(NI):
                    acc=ar(16*(mi*NI+ni),16)
                    cc="0" if (c==0 and k==0) else acc
                    a(f"v_mfma_f32_32x32x16_bf16 {acc}, {vr(bufA+(mi*CH+k)*4,4)}, {vr(bufB+((c&1)*NI*CH+ni*CH+k)*4,4)}, {cc}")
            if c+1<nch:
                per=-(-NI//min(MI,2))
                for ni in range(mi*per, min(NI,(mi+1)*per)):
                    ldB(ni,c+1); issue(("B",c+1),CH)
                ldA(mi,c+1); issue(("A",mi,c+1),CH)

def gemm_wg(a, KS, sA, strideA, sB, strideB, modsA="", modsB="", tag="G", lds0=0, MI=4, NI=4):
    CH=4; nch=KS//CH; assert KS%CH==0
    ABY=2*MI*CH*1024; BBY=2*NI*CH*1024; STG=ABY+BBY
    nA=(2*MI)//4; nB=(2*NI)//4
    a(f"""s_mul_i32 s62, s40, {nA*strideA}
    s_add_u32 s62, s62, {sA}
    s_mul_i32 s63, s40, {nB*strideB}
    s_add_u32 s63, s63, {sB}
    s_mul_i32 s64, s40, {nA*CH*1024}
    s_add_u32 s64, s64, {lds0}
    s_mul_i32 s65, s40, {nB*CH*1024}
    s_add_u32 s65, s65, {lds0+ABY}
    s_lshr_b32 s60, s40, 1
    s_mul_i32 s60, s60, {MI*CH*1024}
    s_add_u32 s60, s60, {lds0}
    v_add_u32 v12, s60, v4
    s_and_b32 s60, s40, 1
    s_mul_i32 s60, s60, {NI*CH*1024}
    s_add_u32 s60, s60, {lds0+ABY}
    v_add_u32 v13, s60, v4
    v_add_u32 v14, {STG}, v12
    v_add_u32 v15, {STG}, v13""")
    def dma(c):
        st=(c&1)*STG
        for r in range(nA):
            a(f"s_add_u32 m0, s64, {st+r*CH*1024}")
            a(f"s_add_u32 s60, s62, {r*strideA+c*CH*1024}")
            for k in range(CH): a(f"buffer_load_dwordx4 v4, s[36:39], s60 offen offset:{1024*k} lds {modsA}")
        for r in range(nB):
            a(f"s_add_u32 m0, s65, {st+r*CH*1024}")
            a(f"s_add_u32 s60, s63, {r*strideB+c*CH*1024}")
            for k in range(CH): a(f"buffer_load_dwordx4 v4, s[36:39], s60 offen offset:{1024*k} lds {modsB}")
    FA=16; FB=FA+2*MI*4
    def rd(c,k,set_):
        va,vb=(12,13) if (c&1)==0 else (14,15)
        for mi in range(MI): a(f"ds_read_b128 {vr(FA+(set_*MI+mi)*4,4)}, v{va} offset:{(mi*CH+k)*1024}")
        for ni in range(NI): a(f"ds_read_b128 {vr(FB+(set_*NI+ni)*4,4)}, v{vb} offset:{(ni*CH+k)*1024}")
    a("s_barrier")
    dma(0)
    for c in range(nch):
        a("s_waitcnt vmcnt(0)")
        a("s_barrier")
        rd(c,0,0)
        if c+1<nch: dma(c+1)
        for k in range(CH):
            if k+1<CH:
                rd(c,k+1,(k+1)&1)
                a(f"s_waitcnt lgkmcnt({MI+NI})")
            else:
                a("s_waitcnt lgkmcnt(0)")
            for mi in range(MI):
                for ni in range(NI):
                    acc=ar(16*(mi*NI+ni),16)
                    cc="0" if (c==0 and k==0) else acc
                    if os.environ.get("NOMFMA") and not (c==0 and k==0): continue
                    a(f"v_mfma_f32_32x32x16_bf16 {acc}, {vr(FA+((k&1)*MI+mi)*4,4)}, {vr(FB+((k&1)*NI+ni)*4,4)}, {cc}")

def acc_read(a, dst, mi, ni, NI, n=16):
    for r in range(n): a(f"v_accvgpr_read_b32 v{dst+r}, a{16*(mi*NI+ni)+r}")

def vo_epilogue(a, MI, NI, srb, sct, inc):
    a("v_lshl_add_u32 v7, v5, 10, v6")
    a("s_nop 7"); a("s_nop 7")
    for ni in range(NI):
        a(f"""s_mul_i32 s58, {sct}, {NI}
        s_add_u32 s58, s58, {ni}
        s_mul_i32 s59, s58, 4682
        s_lshr_b32 s59, s59, 16            ; h = R/14
        s_mul_i32 s61, s59, 14
        s_sub_u32 s61, s58, s61            ; dt32
        s_mul_i32 s59, s59, 28
        s_lshl_b32 s61, s61, 1
        s_add_u32 s59, s59, s61
        s_mul_i32 s61, {srb}, {MI*16*28}
        s_add_u32 s59, s59, s61
        s_lshl_b32 s59, s59, 10
        s_add_u32 s59, s59, {VO}""")
        for mi in range(MI):
            acc_read(a, 16, mi, ni, NI)
            for j in range(4):
                a(f"v_cvt_pk_bf16_f32 v{32+2*j}, v{16+4*j}, v{17+4*j}")
                a(f"v_cvt_pk_bf16_f32 v{33+2*j}, v{18+4*j}, v{19+4*j}")
            a(f"s_add_u32 s61, s59, {mi*16*28*1024}")
            for j in range(0 if os.environ.get('NOST') else 4):
                a(f"buffer_store_dwordx2 {vr(32+2*j,2)}, v7, s[36:39], s61 offen offset:{256*j} sc1")
    a(f"""s_waitcnt vmcnt(0)
    s_mul_i32 s58, {srb}, {MI}
    s_lshr_b32 s58, s58, 2
    s_lshl_b32 s58, s58, 7
    s_add_u32 s58, s58, {FLAGS}
    s_mov_b64 exec, 1
    v_mov_b32 v8, 0
    v_mov_b32 v9, {inc}
    buffer_atomic_add v9, v8, s[36:39], s58 offen
    s_mov_b64 exec, -1""")

NQ=7
W_BCAST=140000
def wait_flag(a, tag, sidx_expr_reg, target):
    a.label(tag)
    a("s_sub_u32 s99, s99, 1"); a("s_cbranch_scc1 K2_ABORT")
    a(f"buffer_load_dword v9, v8, s[36:39], {sidx_expr_reg} offen sc1")
    a("s_waitcnt vmcnt(0)")
    a("v_readfirstlane_b32 s47, v9")
    a(f"s_cmp_ge_u32 s47, {target}")
    a(f"s_cbranch_scc1 {tag}_OK")
    a("s_sleep 8")
    a(f"s_branch {tag}")
    a.label(tag+"_OK")

def signal(a, soff):
    a(f"""s_waitcnt vmcnt(0)
    s_mov_b64 exec, 1
    v_mov_b32 v8, 0
    v_mov_b32 v9, 1
    buffer_atomic_add v9, v8, s[36:39], {soff} offen
    s_mov_b64 exec, -1""")

def token_tasks(a):
    import gen4
    a.label("W_TOK")
    a.label("TK_LOOP")
    a(f"""s_cmp_ge_u32 s66, {64*65}
    s_cbranch_scc1 TK_END
    s_mul_i32 s67, s66, 64528
    s_lshr_b32 s67, s67, 22            ; seg = G/65
    s_mul_i32 s68, s67, 65
    s_sub_u32 s68, s66, s68            ; k
    v_mov_b32 v8, 0
    s_lshl_b32 s69, s67, 7             ; seg*128
    s_cmp_lt_u32 s68, 16
    s_cbranch_scc1 TK_S
    s_cmp_lt_u32 s68, 23
    s_cbranch_scc1 TK_V
    s_cmp_lt_u32 s68, 51
    s_cbranch_scc1 TK_F1
    s_branch TK_F2""")
    a.label("TK_S")
    a(f"s_add_u32 s46, s69, {FLAGS+128*400}")
    wait_flag(a,"TK_S_W1","s46",1)
    a(f"""s_lshr_b32 s46, s67, 2
    s_lshl_b32 s46, s46, 7
    s_add_u32 s46, s46, {FLAGS+128*128}""")
    wait_flag(a,"TK_S_W2","s46",56)
    gen4.t3s_body(a,"s67","s68","TK")
    a(f"s_add_u32 s46, s69, {FLAGS+128*192}")
    signal(a,"s46")
    a("s_branch TK_NEXT")
    a.label("TK_V")
    a("s_sub_u32 s68, s68, 16")
    a(f"s_add_u32 s46, s69, {FLAGS+128*192}")
    wait_flag(a,"TK_V_W1","s46",16)
    a(f"""s_lshr_b32 s46, s67, 2
    s_lshl_b32 s46, s46, 7
    s_add_u32 s46, s46, {FLAGS}""")
    wait_flag(a,"TK_V_W2","s46",224)
    a(f"s_add_u32 s46, s69, {FLAGS+128*32}")
    wait_flag(a,"TK_V_W3","s46",1)
    gen4.t3v_body(a,"s67","s68")
    a(f"s_add_u32 s46, s69, {FLAGS+128*256}")
    signal(a,"s46")
    a("s_branch TK_NEXT")
    a.label("TK_F1")
    a("s_sub_u32 s68, s68, 23")
    a(f"s_add_u32 s46, s69, {FLAGS+128*256}")
    wait_flag(a,"TK_F1_W","s46",7)
    gen4.f1_body(a,"s67","s68",1)
    a(f"s_add_u32 s46, s69, {FLAGS+128*320}")
    signal(a,"s46")
    a("s_branch TK_NEXT")
    a.label("TK_F2")
    a("s_sub_u32 s68, s68, 51")
    a(f"s_add_u32 s46, s69, {FLAGS+128*320}")
    wait_flag(a,"TK_F2_W","s46",28)
    gen4.f2_body(a,"s67","s68",1,1)
    a.label("TK_NEXT")
    a("""s_add_u32 s66, s66, 896
    s_branch TK_LOOP""")
    a.label("TK_END")
    a("s_endpgm")

def worker(a):
    a("s_cmp_eq_u32 s40, 0")
    a("s_cbranch_scc0 W_TB")
    a(f"""s_mov_b64 exec, 1
    s_mov_b32 s50, {FLAGS+128*121}
    v_mov_b32 v8, 0
    v_mov_b32 v9, 1
    buffer_atomic_add v9, v8, s[36:39], s50 offen sc0
    s_waitcnt vmcnt(0)
    v_mov_b32 v8, {W_BCAST+16}
    ds_write_b32 v8, v9
    s_waitcnt lgkmcnt(0)
    s_mov_b64 exec, -1""")
    a.label("W_TB")
    a(f"""s_barrier
    v_mov_b32 v8, {W_BCAST+16}
    ds_read_b32 v9, v8
    s_waitcnt lgkmcnt(0)
    v_readfirstlane_b32 s66, v9
    s_lshl_b32 s66, s66, 2
    s_add_u32 s66, s66, s40""")
    a("""s_cmp_gt_u32 s41, s43
    s_cselect_b32 s48, 1, 0
    s_sub_u32 s48, s41, s48
    s_min_u32 s48, s48, 6
    s_mov_b32 s49, 0
    v_lshlrev_b32 v4, 4, v1            ; lane*16
    v_and_b32 v2, 31, v1
    v_lshrrev_b32 v3, 5, v1            ; hi""")
    a("""v_lshrrev_b32 v5, 4, v2
    v_and_b32 v6, 15, v2
    v_lshlrev_b32 v6, 4, v6
    v_lshl_add_u32 v6, v3, 3, v6""")
    a.label("W_NEXT")
    a("s_cmp_eq_u32 s40, 0")
    a("s_cbranch_scc0 W_BC")
    a(f"""s_mov_b64 exec, 1
    s_lshl_b32 s50, s48, 7
    s_add_u32 s50, s50, {FLAGS+128*100}
    v_mov_b32 v8, 0
    v_mov_b32 v9, 88
    s_cmp_eq_u32 s49, 0
    s_cbranch_scc1 W_ATOM
    buffer_load_dword v9, v8, s[36:39], s50 offen sc1
    s_waitcnt vmcnt(0)
    v_readfirstlane_b32 s51, v9
    s_cmp_lt_u32 s51, 88
    s_cbranch_scc0 W_WR""")
    a.label("W_ATOM")
    a("""v_mov_b32 v9, 1
    buffer_atomic_add v9, v8, s[36:39], s50 offen sc0
    s_waitcnt vmcnt(0)""")
    a.label("W_WR")
    a(f"""v_mov_b32 v8, {W_BCAST}
    ds_write_b32 v8, v9
    s_waitcnt lgkmcnt(0)
    s_mov_b64 exec, -1""")
    a.label("W_BC")
    a(f"""s_barrier
    v_mov_b32 v8, {W_BCAST}
    ds_read_b32 v9, v8
    s_waitcnt lgkmcnt(0)
    v_readfirstlane_b32 s51, v9
    s_barrier
    s_cmp_lt_u32 s51, 88
    s_cbranch_scc1 W_GOT
    s_add_u32 s48, s48, 1
    s_cmp_ge_u32 s48, 7
    s_cselect_b32 s48, 0, s48
    s_add_u32 s49, s49, 1
    s_cmp_lt_u32 s49, 7
    s_cbranch_scc1 W_NEXT
    s_branch W_TOK""")
    a.label("W_GOT")
    a("s_cmp_lt_u32 s51, 32")
    a("s_cbranch_scc1 W_VS")
    a("""s_sub_u32 s53, s51, 24
    s_mov_b32 s52, 0
    s_cmp_lt_u32 s51, 56
    s_cbranch_scc1 W_DEC
    s_sub_u32 s53, s51, 56
    s_mov_b32 s52, 1""")
    a.label("W_DEC")
    a("""s_lshr_b32 s54, s53, 2             ; rb256
    s_and_b32 s53, s53, 3
    s_lshl_b32 s55, s48, 2
    s_add_u32 s55, s55, s53            ; ct256 (0..27)
    s_mul_i32 s56, s54, 8*28*1024      ; XN offset
    s_add_u32 s56, s56, %d
    s_mul_i32 s57, s55, 8*28*1024      ; W rows
    s_cmp_eq_u32 s52, 0
    s_cbranch_scc0 W_T""" % XN)
    a(f"s_add_u32 s57, s57, {WTB}")
    gemm_wg(a,28,"s56",28*1024,"s57",28*1024)
    a("""s_lshl_b32 s54, s54, 1
    s_lshr_b32 s58, s40, 1
    s_add_u32 s54, s54, s58
    s_lshl_b32 s55, s55, 1
    s_and_b32 s58, s40, 1
    s_add_u32 s55, s55, s58""")
    vo_epilogue(a,4,4,"s54","s55",4)
    a("s_branch W_NEXT")
    a.label("W_VS")
    a("""s_lshr_b32 s54, s51, 3             ; rb128
    s_and_b32 s53, s51, 7
    s_lshl_b32 s55, s48, 3
    s_add_u32 s55, s55, s53            ; ct128
    s_mul_i32 s56, s54, 4*28*1024
    s_add_u32 s56, s56, %d
    s_mul_i32 s57, s55, 4*28*1024
    s_add_u32 s57, s57, %d""" % (XN, WTB))
    gemm_wg(a,28,"s56",28*1024,"s57",28*1024,MI=2,NI=2)
    a("""s_lshr_b32 s59, s54, 0
    s_lshl_b32 s54, s54, 1
    s_lshr_b32 s58, s40, 1
    s_add_u32 s54, s54, s58
    s_lshl_b32 s55, s55, 1
    s_and_b32 s58, s40, 1
    s_add_u32 s55, s55, s58""")
    vo_epilogue(a,2,2,"s54","s55",1)
    a("s_branch W_NEXT")
    a.label("W_T")
    a(f"s_add_u32 s57, s57, {WTA}")
    gemm_wg(a,28,"s57",28*1024,"s56",28*1024)
    a("""s_lshl_b32 s54, s54, 1
    s_and_b32 s58, s40, 1
    s_add_u32 s54, s54, s58
    s_lshl_b32 s55, s55, 1
    s_lshr_b32 s58, s40, 1
    s_add_u32 s55, s55, s58""")
    a("""v_mul_u32_u24 v7, 16*14*1024, v5
    v_add_u32 v7, v7, v6""")
    a("s_nop 7"); a("s_nop 7")
    for mi in range(4):
        a(f"""s_lshl_b32 s58, s55, 2
        s_add_u32 s58, s58, {mi}
        s_mul_i32 s59, s58, 4682
        s_lshr_b32 s59, s59, 16            ; h
        s_mul_i32 s61, s59, 14
        s_sub_u32 s61, s58, s61            ; ks32
        s_mul_i32 s59, s59, 14
        s_add_u32 s59, s59, s61
        s_lshl_b32 s61, s54, 3
        s_mul_i32 s61, s61, 16*14
        s_add_u32 s59, s59, s61
        s_lshl_b32 s59, s59, 10
        s_add_u32 s59, s59, {TX}""")
        for ni in range(4):
            acc_read(a, 16, mi, ni, 4)
            for j in range(4):
                a(f"v_cvt_pk_bf16_f32 v{32+2*j}, v{16+4*j}, v{17+4*j}")
                a(f"v_cvt_pk_bf16_f32 v{33+2*j}, v{18+4*j}, v{19+4*j}")
            a(f"s_add_u32 s61, s59, {ni*2*16*14*1024}")
            for j in range(0 if os.environ.get('NOST') else 4):
                a(f"buffer_store_dwordx2 {vr(32+2*j,2)}, v7, s[36:39], s61 offen offset:{256*j} sc1")
    a(f"""s_waitcnt vmcnt(0)
    s_lshl_b32 s58, s54, 7
    s_add_u32 s58, s58, {FLAGS+128*128}
    s_mov_b64 exec, 1
    v_mov_b32 v8, 0
    v_mov_b32 v9, 1
    buffer_atomic_add v9, v8, s[36:39], s58 offen
    s_mov_b64 exec, -1
    s_branch W_NEXT""")
    import gen5
    gen5.token_tasks(a)

def kernels():
    try:
        import gen4
        return gen4.kernels()
    except ImportError:
        return []
```

```python
from gen import *
from gen3 import gemm_wave, acc_read
import os

def xlane_reduce(a, v, t, op):
    a(f"v_mov_b32 v{t}, v{v}")
    a("s_nop 1")
    a(f"v_permlane16_swap_b32 v{v}, v{t}")
    a("s_nop 1")
    a(f"{op} v{v}, v{v}, v{t}")
    a(f"v_mov_b32 v{t}, v{v}")
    a("s_nop 1")
    a(f"v_permlane32_swap_b32 v{v}, v{t}")
    a("s_nop 1")
    a(f"{op} v{v}, v{v}, v{t}")

def t3s_body(a, sseg, sh, tag):
    a(f"""v_and_b32 v2, 15, v1
    v_lshrrev_b32 v3, 4, v1
    v_lshlrev_b32 v4, 4, v1
    v_and_b32 v5, 7, v2
    v_lshl_add_u32 v5, v3, 4, v5
    v_lshlrev_b32 v5, 4, v5                 ; ((j&7)+16g)*16
    s_mul_i32 s50, {sseg}, 7168
    s_add_u32 s50, s50, {MEMN}
    s_mul_i32 s51, {sseg}, 2*14*1024
    s_add_u32 s51, s51, {XNP}
    s_lshl_b32 s52, {sseg}, 5               ; 2seg*16
    s_add_u32 s52, s52, {sh}
    s_mul_i32 s52, s52, 14*1024
    s_add_u32 s52, s52, {TX}""")
    ACC=8
    B0=32
    for half in range(2):
        for k in range(7):
            ks=7*half+k; b=B0+20*k
            a(f"s_add_u32 s60, s50, {(ks>>1)*1024+(ks&1)*128}")
            a(f"buffer_load_dwordx4 {vr(b,4)}, v5, s[36:39], s60 offen sc1")
            a(f"s_add_u32 s60, s51, {ks*1024}")
            a(f"buffer_load_dwordx4 {vr(b+4,4)}, v4, s[36:39], s60 offen")
            a(f"s_add_u32 s60, s51, {(14+ks)*1024}")
            a(f"buffer_load_dwordx4 {vr(b+8,4)}, v4, s[36:39], s60 offen")
            a(f"s_add_u32 s60, s52, {ks*1024}")
            a(f"buffer_load_dwordx4 {vr(b+12,4)}, v4, s[36:39], s60 offen sc1")
            a(f"s_add_u32 s60, s52, {(16*14+ks)*1024}")
            a(f"buffer_load_dwordx4 {vr(b+16,4)}, v4, s[36:39], s60 offen sc1")
        for k in range(7):
            ks=7*half+k; b=B0+20*k
            a(f"s_waitcnt vmcnt({5*(6-k)})")
            for kt in range(3):
                for tt in range(2):
                    d=ACC+(kt*2+tt)*4
                    c="0" if ks==0 else vr(d,4)
                    a(f"v_mfma_f32_16x16x32_bf16 {vr(d,4)}, {vr(b+4*kt,4)}, {vr(b+12+4*tt,4)}, {c}")
    a("s_nop 7")
    a("v_mov_b32 v6, 0xff7fffff")
    a("s_mov_b32 s53, 0x3fb8aa3b")
    a(f"""v_lshrrev_b32 v7, 1, v3
    v_lshl_add_u32 v7, v7, 4, v2
    v_lshlrev_b32 v7, 4, v7
    v_and_b32 v200, 1, v3
    v_lshl_add_u32 v7, v200, 3, v7
    s_and_b32 s54, {sh}, 3
    s_lshl_b32 s54, s54, 8
    v_lshlrev_b32 v201, 4, v2
    v_lshl_add_u32 v201, v3, 3, v201
    v_add_u32 v201, s54, v201
    s_lshl_b32 s55, {sseg}, 4
    s_add_u32 s55, s55, {sh}
    s_lshl_b32 s55, s55, 11
    s_add_u32 s55, s55, {PTX}
    s_lshl_b32 s56, {sseg}, 2
    s_lshr_b32 s57, {sh}, 2
    s_add_u32 s56, s56, s57
    s_lshl_b32 s56, s56, 11
    s_add_u32 s56, s56, {PTM}
    v_cmp_gt_u32 s[58:59], 2, v3            ; g<2
    v_lshlrev_b32 v33, 2, v3                ; 4g""")
    for tt in range(2):
        vals=[ACC+(kt*2+tt)*4+r for kt in range(3) for r in range(4)]
        for r in range(4): a(f"v_cndmask_b32 v{vals[r]}, v6, v{vals[r]}, s[58:59]")
        a(f"v_add_u32 v32, {16*tt}, v2")
        for kt in (1,2):
            for r in range(4):
                a(f"v_add_u32 v34, {16*(kt-1)+r}, v33")
                a(f"v_cmp_le_u32 vcc, v34, v32")
                a("s_nop 1")
                a(f"v_cndmask_b32 v{vals[4*kt+r]}, v6, v{vals[4*kt+r]}, vcc")
        a(f"v_max3_f32 v35, v{vals[0]}, v{vals[1]}, v{vals[2]}")
        for i in range(3,11,2): a(f"v_max3_f32 v35, v35, v{vals[i]}, v{vals[i+1]}")
        a(f"v_max_f32 v35, v35, v{vals[11]}")
        xlane_reduce(a,35,36,"v_max_f32")
        a("v_mul_f32 v35, s53, v35")
        for v in vals:
            a(f"v_fma_f32 v{v}, v{v}, s53, -v35")
            a(f"v_exp_f32 v{v}, v{v}")
        a("s_nop 0")
        a(f"v_add_f32 v36, v{vals[0]}, v{vals[1]}")
        for v in vals[2:]: a(f"v_add_f32 v36, v36, v{v}")
        xlane_reduce(a,36,37,"v_add_f32")
        a("v_rcp_f32 v36, v36")
        a("s_nop 0")
        for v in vals: a(f"v_mul_f32 v{v}, v{v}, v36")
        for kt in range(3):
            a(f"v_cvt_pk_bf16_f32 v{38+2*kt}, v{vals[4*kt]}, v{vals[4*kt+1]}")
            a(f"v_cvt_pk_bf16_f32 v{39+2*kt}, v{vals[4*kt+2]}, v{vals[4*kt+3]}")
        a(f"buffer_store_dwordx2 v[40:41], v7, s[36:39], s55 offen offset:{1024*tt} sc1")
        a(f"buffer_store_dwordx2 v[42:43], v7, s[36:39], s55 offen offset:{1024*tt+512} sc1")
        a("s_mov_b64 exec, s[58:59]")
        a(f"buffer_store_dwordx2 v[38:39], v201, s[36:39], s56 offen offset:{1024*tt} sc1")
        a("s_mov_b64 exec, -1")
        a("s_nop 1")

def k3():
    a=Asm()
    a("s_cmp_ge_u32 s2, 256"); a("s_cbranch_scc1 K3_EXIT")
    prologue(a)
    a("""s_lshl_b32 s41, s2, 2
    s_add_u32 s41, s41, s40        ; task
    s_lshr_b32 s42, s41, 4         ; seg
    s_and_b32 s43, s41, 15         ; head""")
    t3s_body(a,"s42","s43","K3")
    a.label("K3_EXIT"); a("s_endpgm")
    return a.text()

def t3v_body(a, sseg, scg):
    a(f"""v_and_b32 v2, 15, v1
    v_lshrrev_b32 v3, 4, v1
    v_lshlrev_b32 v4, 4, v1
    s_lshl_b32 s50, {scg}, 2
    s_lshl_b32 s51, {sseg}, 2
    s_mul_i32 s51, s51, 28
    s_add_u32 s51, s51, s50
    s_lshl_b32 s51, s51, 10
    s_add_u32 s51, s51, {MB}
    s_lshl_b32 s52, {sseg}, 4
    s_mul_i32 s52, s52, 28
    s_add_u32 s52, s52, s50
    s_lshl_b32 s52, s52, 10
    s_add_u32 s52, s52, {VO}
    s_lshl_b32 s53, {sseg}, 13
    s_add_u32 s53, s53, {PTM}
    s_lshl_b32 s54, {sseg}, 15
    s_add_u32 s54, s54, {PTX}               ; + h*2K + tt*1K""")
    B0=16
    def ld(hq):
        base=B0+120*(hq&1)
        for st in range(5):
            b=base+24*st
            if st==0:
                a(f"s_add_u32 s60, s51, {hq*28*1024}")
                a(f"s_add_u32 s61, s53, {hq*2048}")
            else:
                h=4*hq+st-1
                a(f"s_add_u32 s60, s52, {h*28*1024}")
                a(f"s_add_u32 s61, s54, {h*2048}")
            for dt in range(4): a(f"buffer_load_dwordx4 {vr(b+4*dt,4)}, v4, s[36:39], s60 offen offset:{1024*dt} sc1")
            for tt in range(2): a(f"buffer_load_dwordx4 {vr(b+16+4*tt,4)}, v4, s[36:39], s61 offen offset:{1024*tt} sc1")
    ld(0)
    for hq in range(4):
        if hq<3: ld(hq+1)
        base=B0+120*(hq&1)
        for st in range(5):
            b=base+24*st
            rem=(30 if hq<3 else 0)+6*(4-st)
            a(f"s_waitcnt vmcnt({rem})")
            for dt in range(4):
                for tt in range(2):
                    acc=ar(4*(dt*2+tt),4)
                    c="0" if (hq==0 and st==0) else acc
                    a(f"v_mfma_f32_16x16x32_bf16 {acc}, {vr(b+4*dt,4)}, {vr(b+16+4*tt,4)}, {c}")
    srd(a,44,8,2048*896)
    a(f"""v_mul_u32_u24 v5, 896, v2
    v_lshl_add_u32 v5, v3, 3, v5
    s_mul_i32 s55, {sseg}, 32*896
    s_lshl_b32 s56, {scg}, 7
    s_add_u32 s55, s55, s56""")
    for tt in range(2):
        for dt in range(4):
            a(f"s_add_u32 s60, s55, {tt*16*896}")
            a(f"buffer_load_dwordx2 {vr(16+2*(tt*4+dt),2)}, v5, s[44:47], s60 offen offset:{32*dt}")
    a(f"""v_lshrrev_b32 v6, 1, v3
    v_lshl_add_u32 v6, v6, 5, v2
    v_lshlrev_b32 v6, 4, v6
    v_and_b32 v7, 1, v3
    v_lshl_add_u32 v6, v7, 3, v6
    s_mul_i32 s56, {sseg}, 28
    s_add_u32 s56, s56, s50
    s_lshl_b32 s56, s56, 10
    s_add_u32 s56, s56, {HB}
    v_mul_u32_u24 v7, 56, v2
    s_mul_i32 s57, {sseg}, 32*56
    s_lshl_b32 s58, {scg}, 3
    s_add_u32 s57, s57, s58
    s_add_u32 s57, s57, {STATS}
    v_cmp_eq_u32 s[58:59], 0, v3
    s_waitcnt vmcnt(0)""")
    for tt in range(2):
        H=40
        for dt in range(4):
            xb=16+2*(tt*4+dt)
            for r in range(4): a(f"v_accvgpr_read_b32 v{H+4*dt+r}, a{4*(dt*2+tt)+r}")
            a(f"v_cvt_pk_bf16_f32 v60, v{H+4*dt}, v{H+4*dt+1}")
            a(f"v_cvt_pk_bf16_f32 v61, v{H+4*dt+2}, v{H+4*dt+3}")
            a(f"v_lshlrev_b32 v62, 16, v60"); a(f"v_and_b32 v63, 0xffff0000, v60")
            a(f"v_lshlrev_b32 v64, 16, v61"); a(f"v_and_b32 v65, 0xffff0000, v61")
            a(f"v_lshlrev_b32 v66, 16, v{xb}"); a(f"v_and_b32 v67, 0xffff0000, v{xb}")
            a(f"v_lshlrev_b32 v68, 16, v{xb+1}"); a(f"v_and_b32 v69, 0xffff0000, v{xb+1}")
            for r in range(4): a(f"v_add_f32 v{62+r}, v{62+r}, v{66+r}")
            a(f"v_cvt_pk_bf16_f32 v60, v62, v63")
            a(f"v_cvt_pk_bf16_f32 v61, v64, v65")
            a(f"buffer_store_dwordx2 v[60:61], v6, s[36:39], s56 offen offset:{1024*dt+256*tt} sc1")
            a(f"v_lshlrev_b32 v{H+4*dt}, 16, v60"); a(f"v_and_b32 v{H+4*dt+1}, 0xffff0000, v60")
            a(f"v_lshlrev_b32 v{H+4*dt+2}, 16, v61"); a(f"v_and_b32 v{H+4*dt+3}, 0xffff0000, v61")
        a(f"v_add_f32 v70, v{H}, v{H+1}")
        for i in range(2,16): a(f"v_add_f32 v70, v70, v{H+i}")
        xlane_reduce(a,70,71,"v_add_f32")
        a("v_mul_f32 v70, 0x3c800000, v70")
        a(f"v_sub_f32 v72, v{H}, v70"); a("v_mul_f32 v71, v72, v72")
        for i in range(1,16):
            a(f"v_sub_f32 v72, v{H+i}, v70"); a("v_fmac_f32 v71, v72, v72")
        a("v_mov_b32 v74, v70")
        xlane_reduce(a,71,72,"v_add_f32")
        a("v_mov_b32 v75, v71")
        a("s_mov_b64 exec, s[58:59]")
        a(f"s_add_u32 s60, s57, {tt*16*56}")
        a(f"buffer_store_dwordx2 v[74:75], v7, s[36:39], s60 offen sc1")
        a("s_mov_b64 exec, -1")

def k4():
    a=Asm()
    a("s_cmp_ge_u32 s2, 112"); a("s_cbranch_scc1 K4_EXIT")
    prologue(a)
    a("""s_lshl_b32 s41, s2, 2
    s_add_u32 s41, s41, s40        ; task 0..447
    s_mul_i32 s42, s41, 9363
    s_lshr_b32 s42, s42, 16
    s_mul_i32 s43, s42, 7
    s_sub_u32 s43, s41, s43        ; cg""")
    t3v_body(a,"s42","s43")
    a.label("K4_EXIT"); a("s_endpgm")
    return a.text()

def f1_body(a, stb, sfb, NI):
    a(f"""v_lshlrev_b32 v4, 4, v1
    v_and_b32 v2, 31, v1
    v_lshrrev_b32 v3, 5, v1
    s_mul_i32 s56, {sfb}, 4*28*1024
    s_add_u32 s56, s56, {WGU}
    s_mul_i32 s57, {stb}, {NI*28*1024}
    s_add_u32 s57, s57, {HB}""")
    gemm_wave(a,4,NI,28,"s56",28*1024,"s57",28*1024,4,bufA=16,bufB=80,modsB="sc1")
    CSR=16
    a(f"""v_lshlrev_b32 v5, 4, v3
    s_lshl_b32 s58, {sfb}, 9               ; 128 fb * 4
    s_add_u32 s58, s58, {CS}""")
    a("s_add_u32 s59, s58, 16384")
    for mi in range(4):
        for j in range(4):
            a(f"buffer_load_dwordx4 {vr(CSR+(mi*4+j)*4,4)}, v5, s[36:39], s58 offen offset:{(32*mi+8*j)*4}")
            a(f"buffer_load_dwordx4 {vr(192+(mi*4+j)*4,4)}, v5, s[36:39], s59 offen offset:{(32*mi+8*j)*4}")
    ST=80
    a(f"""v_mul_u32_u24 v6, 56, v2
    s_mul_i32 s59, {stb}, {NI*32*56}
    s_add_u32 s59, s59, {STATS}""")
    for ni in range(NI):
        a(f"s_add_u32 s60, s59, {ni*32*56}")
        for k in range(3): a(f"buffer_load_dwordx4 {vr(ST+16*ni+4*k,4)}, v6, s[36:39], s60 offen offset:{16*k} sc1")
        a(f"buffer_load_dwordx2 {vr(ST+16*ni+12,2)}, v6, s[36:39], s60 offen offset:48 sc1")
    a(f"""v_lshlrev_b32 v7, 4, v2
    v_lshl_add_u32 v7, v3, 3, v7
    s_mul_i32 s61, {stb}, {NI*112}
    s_lshl_b32 s62, {sfb}, 2
    s_add_u32 s61, s61, s62
    s_lshl_b32 s61, s61, 10
    s_add_u32 s61, s61, {ACT}
    s_waitcnt vmcnt(0)""")
    for r in range(64): a(f"v_add_f32 v{CSR+r}, v{CSR+r}, v{192+r}")
    for ni in range(NI):
        st=ST+16*ni
        a(f"v_add_f32 v8, v{st}, v{st+2}")
        for k in range(2,7): a(f"v_add_f32 v8, v8, v{st+2*k}")
        a("v_mul_f32 v8, 0x3e124925, v8")
        a(f"v_add_f32 v9, v{st+1}, v{st+3}")
        for k in range(2,7): a(f"v_add_f32 v9, v9, v{st+2*k+1}")
        a("v_mov_b32 v10, 0")
        for k in range(7):
            a(f"v_sub_f32 v11, v{st+2*k}, v8"); a("v_fmac_f32 v10, v11, v11")
        a("v_fmac_f32 v9, 0x42800000, v10")
        a("v_mul_f32 v9, 0x3b124925, v9")
        a("v_add_f32 v9, 0x3727c5ac, v9")
        a("v_rsq_f32 v9, v9")
        a("s_nop 0")
        for mp in range(2):
            G=160; U=176
            acc_read(a,G,mp,ni,NI); acc_read(a,U,2+mp,ni,NI)
            for j in range(4):
                for r in range(4):
                    g=G+4*j+r; u=U+4*j+r
                    a(f"v_fma_f32 v{g}, -v8, v{CSR+(mp*4+j)*4+r}, v{g}")
                    a(f"v_fma_f32 v{u}, -v8, v{CSR+((2+mp)*4+j)*4+r}, v{u}")
                    a(f"v_mul_f32 v{g}, v{g}, v9")
                    a(f"v_mul_f32 v{u}, v{u}, v9")
                for r in (0,2):
                    g=G+4*j+r; u=U+4*j+r
                    a(f"v_cvt_pk_bf16_f32 v12, v{g}, v{g+1}")
                    a(f"v_cvt_pk_bf16_f32 v13, v{u}, v{u+1}")
                    a(f"v_lshlrev_b32 v{g}, 16, v12"); a(f"v_and_b32 v{g+1}, 0xffff0000, v12")
                    a(f"v_lshlrev_b32 v{u}, 16, v13"); a(f"v_and_b32 v{u+1}, 0xffff0000, v13")
                    a(f"v_max_f32 v{g}, 0, v{g}"); a(f"v_max_f32 v{g+1}, 0, v{g+1}")
                    a(f"v_mul_f32 v{g}, v{g}, v{u}"); a(f"v_mul_f32 v{g+1}, v{g+1}, v{u+1}")
                    a(f"v_cvt_pk_bf16_f32 v{14+r//2}, v{g}, v{g+1}")
                a(f"s_add_u32 s62, s61, {(ni*112+2*mp+(j>>1))*1024}")
                a(f"buffer_store_dwordx2 v[14:15], v7, s[36:39], s62 offen offset:{512*(j&1)} sc1")
                a("s_nop 0")

F1NI=4
def k5():
    a=Asm()
    n=28*(64//F1NI)//4
    a(f"s_cmp_ge_u32 s2, {n}"); a("s_cbranch_scc1 K5_EXIT")
    prologue(a)
    a("""s_lshl_b32 s41, s2, 2
    s_add_u32 s41, s41, s40
    s_mul_i32 s42, s41, 2341
    s_lshr_b32 s42, s42, 16
    s_mul_i32 s43, s42, 28
    s_sub_u32 s43, s41, s43        ; fb""")
    f1_body(a,"s42","s43",F1NI)
    a.label("K5_EXIT"); a("s_endpgm")
    return a.text(), n

def f2_body(a, stb, sdb, MI, NI):
    a(f"""v_lshlrev_b32 v4, 4, v1
    v_and_b32 v2, 31, v1
    v_lshrrev_b32 v3, 5, v1
    s_mul_i32 s56, {sdb}, {MI*112*1024}
    s_add_u32 s56, s56, {WDT}
    s_mul_i32 s57, {stb}, {NI*112*1024}
    s_add_u32 s57, s57, {ACT}""")
    gemm_wave(a,MI,NI,112,"s56",112*1024,"s57",112*1024,4,bufA=16,bufB=16+MI*16,modsB="sc1")
    srd(a,44,30,2048*896)
    a(f"""v_lshlrev_b32 v7, 4, v2
    v_lshl_add_u32 v7, v3, 3, v7
    s_mul_i32 s58, {stb}, {NI*28}
    s_mul_i32 s59, {sdb}, {2*MI}
    s_add_u32 s58, s58, s59
    s_lshl_b32 s58, s58, 10
    s_add_u32 s58, s58, {HB}
    v_mul_u32_u24 v6, 896, v2
    v_lshl_add_u32 v6, v3, 3, v6
    s_mul_i32 s59, {stb}, {NI*32*896}
    s_mul_i32 s61, {sdb}, {MI*64}
    s_add_u32 s59, s59, s61""")
    HR=16
    for ni in range(NI):
        for mi in range(MI):
            for j in range(4):
                a(f"s_add_u32 s60, s58, {(ni*28+2*mi+(j>>1))*1024}")
                a(f"buffer_load_dwordx2 {vr(HR+((ni*MI+mi)*4+j)*2,2)}, v7, s[36:39], s60 offen offset:{512*(j&1)} sc1")
    a("s_nop 7"); a("s_waitcnt vmcnt(0)")
    for ni in range(NI):
        for mi in range(MI):
            G=160
            acc_read(a,G,mi,ni,NI)
            for j in range(4):
                hb=HR+((ni*MI+mi)*4+j)*2
                g=G+4*j
                a(f"v_cvt_pk_bf16_f32 v12, v{g}, v{g+1}")
                a(f"v_cvt_pk_bf16_f32 v13, v{g+2}, v{g+3}")
                a("v_lshlrev_b32 v8, 16, v12"); a("v_and_b32 v9, 0xffff0000, v12")
                a("v_lshlrev_b32 v10, 16, v13"); a("v_and_b32 v11, 0xffff0000, v13")
                a(f"v_lshlrev_b32 v{g}, 16, v{hb}"); a(f"v_and_b32 v{g+1}, 0xffff0000, v{hb}")
                a(f"v_lshlrev_b32 v{g+2}, 16, v{hb+1}"); a(f"v_and_b32 v{g+3}, 0xffff0000, v{hb+1}")
                for r in range(4): a(f"v_add_f32 v{8+r}, v{8+r}, v{g+r}")
                a(f"v_cvt_pk_bf16_f32 v14, v8, v9")
                a(f"v_cvt_pk_bf16_f32 v15, v10, v11")
                a(f"s_add_u32 s60, s59, {ni*32*896}")
                a(f"buffer_store_dwordx2 v[14:15], v6, s[44:47], s60 offen offset:{64*mi+16*j}")
                a("s_nop 0")

F2MI=1; F2NI=2
def k6():
    a=Asm()
    nd=14//F2MI; nt=64//F2NI
    n=nd*nt//4
    a(f"s_cmp_ge_u32 s2, {n}"); a("s_cbranch_scc1 K6_EXIT")
    prologue(a)
    a(f"""s_lshl_b32 s41, s2, 2
    s_add_u32 s41, s41, s40
    s_mul_i32 s42, s41, 4682
    s_lshr_b32 s42, s42, 16
    s_mul_i32 s43, s42, 14
    s_sub_u32 s43, s41, s43        ; db""")
    assert nd==14
    f2_body(a,"s42","s43",F2MI,F2NI)
    a.label("K6_EXIT"); a("s_endpgm")
    return a.text(), n

def kernels():
    if not os.environ.get("SEPARATE"): return []
    t5,n5=k5(); t6,n6=k6()
    return [("k3_kernel",k3(),256,256,0,256,256),
            ("k4_kernel",k4(),112,256,0,512,256),
            ("k5_kernel",t5,n5,256,0,512,256),
            ("k6_kernel",t6,n6,256,0,512,256)]
```

```python
from gen import *
from gen4 import xlane_reduce
from gen3 import wait_flag, signal

def ldf(a, dst, soff, imm, mods=""):
    a(f"buffer_load_dwordx4 {dst}, v4, s[36:39], {soff} offen offset:{imm} {mods}")

def frag_loads(a, base_sreg, n, dstf, stride=1024, mods="", tmp="s60"):
    for i in range(n):
        off=i*stride
        if i==0 or (off//4096)!=((i-1)*stride//4096) or stride>=4096:
            a(f"s_add_u32 {tmp}, {base_sreg}, {(off//4096)*4096}")
        ldf(a, dstf(i), tmp, off%4096, mods)

def t3s(a, sseg, sh):
    a(f"""v_and_b32 v2, 15, v1
    v_lshrrev_b32 v3, 4, v1
    v_lshlrev_b32 v4, 4, v1
    v_and_b32 v5, 7, v2
    v_lshl_add_u32 v5, v3, 4, v5
    v_lshlrev_b32 v5, 4, v5                 ; ((j&7)+16g)*16
    s_mul_i32 s50, {sseg}, 7168
    s_add_u32 s50, s50, {MEMN}
    s_mul_i32 s51, {sseg}, 2*14*1024
    s_add_u32 s51, s51, {XNP}
    s_lshl_b32 s52, {sseg}, 5
    s_add_u32 s52, s52, {sh}
    s_mul_i32 s52, s52, 14*1024
    s_add_u32 s52, s52, {TX}
    s_add_u32 s53, s52, {16*14*1024}
    v_mov_b32 v8, 0
    s_lshr_b32 s46, {sseg}, 2
    s_lshl_b32 s46, s46, 7
    s_add_u32 s46, s46, {FLAGS+128*128}""")
    wait_flag(a,"TK_S_W2","s46",56)
    frag_loads(a,"s51",28,lambda i: ar(112+4*i,4))
    frag_loads(a,"s52",14,lambda i: ar(4*i,4),mods="sc1")
    frag_loads(a,"s53",14,lambda i: ar(56+4*i,4),mods="sc1")
    ACC=8
    a("s_waitcnt vmcnt(0)")
    for ks in range(14):
        for kt in (1,2):
            for tt in range(2):
                if kt==2 and tt==0: continue
                d=ACC+(kt*2+tt)*4
                c="0" if ks==0 else vr(d,4)
                a(f"v_mfma_f32_16x16x32_bf16 {vr(d,4)}, {ar(112+4*(14*(kt-1)+ks),4)}, {ar(56*tt+4*ks,4)}, {c}")
    a("v_mov_b32 v200, 0")
    a(f"s_lshl_b32 s46, {sseg}, 7")
    a(f"s_add_u32 s46, s46, {FLAGS+128*400}")
    a("v_mov_b32 v40, v8"); a("v_mov_b32 v41, v9")
    a("v_mov_b32 v8, 0")
    wait_flag(a,"TK_S_W1","s46",1)
    tstamp(a,1)
    for ks in range(14):
        a(f"s_add_u32 s60, s50, {(ks>>1)*1024+(ks&1)*128}")
        a(f"buffer_load_dwordx4 {vr(48+4*ks,4)}, v5, s[36:39], s60 offen sc1")
    for ks in range(14):
        a(f"s_waitcnt vmcnt({13-ks})")
        for tt in range(2):
            d=ACC+tt*4
            c="0" if ks==0 else vr(d,4)
            a(f"v_mfma_f32_16x16x32_bf16 {vr(d,4)}, {vr(48+4*ks,4)}, {ar(56*tt+4*ks,4)}, {c}")
    a("v_mov_b32 v6, 0xff7fffff")
    a("s_mov_b32 s53, 0x3fb8aa3b")
    a(f"""v_lshrrev_b32 v7, 1, v3
    v_lshl_add_u32 v7, v7, 4, v2
    v_lshlrev_b32 v7, 4, v7
    v_and_b32 v200, 1, v3
    v_lshl_add_u32 v7, v200, 3, v7
    s_and_b32 s54, {sh}, 3
    s_lshl_b32 s54, s54, 8
    v_lshlrev_b32 v201, 4, v2
    v_lshl_add_u32 v201, v3, 3, v201
    v_add_u32 v201, s54, v201
    s_lshl_b32 s55, {sseg}, 4
    s_add_u32 s55, s55, {sh}
    s_lshl_b32 s55, s55, 11
    s_add_u32 s55, s55, {PTX}
    s_lshl_b32 s56, {sseg}, 2
    s_lshr_b32 s57, {sh}, 2
    s_add_u32 s56, s56, s57
    s_lshl_b32 s56, s56, 11
    s_add_u32 s56, s56, {PTM}
    v_cmp_gt_u32 s[58:59], 2, v3
    v_lshlrev_b32 v33, 2, v3""")
    for tt in range(2):
        kts=(0,1) if tt==0 else (0,1,2)
        vals=[ACC+(kt*2+tt)*4+r for kt in kts for r in range(4)]
        for r in range(4): a(f"v_cndmask_b32 v{vals[r]}, v6, v{vals[r]}, s[58:59]")
        kt=tt+1
        for r in range(4):
            a(f"v_add_u32 v34, {r}, v33")
            a(f"v_cmp_le_u32 vcc, v34, v2")
            a("s_nop 1")
            a(f"v_cndmask_b32 v{ACC+(kt*2+tt)*4+r}, v6, v{ACC+(kt*2+tt)*4+r}, vcc")
        n=len(vals)
        a(f"v_max3_f32 v35, v{vals[0]}, v{vals[1]}, v{vals[2]}")
        i=3
        while i+1<n: a(f"v_max3_f32 v35, v35, v{vals[i]}, v{vals[i+1]}"); i+=2
        if i<n: a(f"v_max_f32 v35, v35, v{vals[i]}")
        xlane_reduce(a,35,36,"v_max_f32")
        a("v_mul_f32 v35, s53, v35")
        for v in vals: a(f"v_fma_f32 v{v}, v{v}, s53, -v35")
        for v in vals: a(f"v_exp_f32 v{v}, v{v}")
        a("s_nop 0")
        a(f"v_add_f32 v36, v{vals[0]}, v{vals[1]}")
        for v in vals[2:]: a(f"v_add_f32 v36, v36, v{v}")
        xlane_reduce(a,36,37,"v_add_f32")
        a("v_rcp_f32 v36, v36")
        a("s_nop 0")
        for v in vals: a(f"v_mul_f32 v{v}, v{v}, v36")
        for i,kt in enumerate(kts):
            a(f"v_cvt_pk_bf16_f32 v{38+2*kt}, v{vals[4*i]}, v{vals[4*i+1]}")
            a(f"v_cvt_pk_bf16_f32 v{39+2*kt}, v{vals[4*i+2]}, v{vals[4*i+3]}")
        if tt==0:
            a("v_mov_b32 v42, 0"); a("v_mov_b32 v43, 0")
        a(f"buffer_store_dwordx2 v[40:41], v7, s[36:39], s55 offen offset:{1024*tt} sc1")
        a(f"buffer_store_dwordx2 v[42:43], v7, s[36:39], s55 offen offset:{1024*tt+512} sc1")
        a("s_mov_b64 exec, s[58:59]")
        a(f"buffer_store_dwordx2 v[38:39], v201, s[36:39], s56 offen offset:{1024*tt} sc1")
        a("s_mov_b64 exec, -1")
        a("s_nop 1")
    a(f"s_lshl_b32 s46, {sseg}, 7")
    a(f"s_add_u32 s46, s46, {FLAGS+128*192}")
    signal(a,"s46")

def t3v(a, sseg, scg):
    a(f"""v_and_b32 v2, 15, v1
    v_lshrrev_b32 v3, 4, v1
    v_lshlrev_b32 v4, 4, v1
    s_lshl_b32 s50, {scg}, 2
    s_lshl_b32 s51, {sseg}, 2
    s_mul_i32 s51, s51, 28
    s_add_u32 s51, s51, s50
    s_lshl_b32 s51, s51, 10
    s_add_u32 s51, s51, {MB}
    s_lshl_b32 s52, {sseg}, 4
    s_mul_i32 s52, s52, 28
    s_add_u32 s52, s52, s50
    s_lshl_b32 s52, s52, 10
    s_add_u32 s52, s52, {VO}
    s_lshl_b32 s53, {sseg}, 13
    s_add_u32 s53, s53, {PTM}
    s_lshl_b32 s54, {sseg}, 15
    s_add_u32 s54, s54, {PTX}
    v_mov_b32 v8, 0
    s_lshr_b32 s46, {sseg}, 2
    s_lshl_b32 s46, s46, 7
    s_add_u32 s46, s46, {FLAGS}""")
    wait_flag(a,"TK_V_W2","s46",224)
    for h in range(16):
        a(f"s_add_u32 s60, s52, {h*28*1024}")
        for dt in range(4): ldf(a, ar((h*4+dt)*4,4), "s60", 1024*dt, "sc1")
    a(f"""v_mul_u32_u24 v5, 896, v2
    v_lshl_add_u32 v5, v3, 3, v5
    s_mul_i32 s55, {sseg}, 32*896
    s_lshl_b32 s56, {scg}, 7
    s_add_u32 s55, s55, s56
    s_mov_b32 s44, s8
    s_and_b32 s45, s9, 0xffff
    s_mov_b32 s46, {2048*896}
    s_mov_b32 s47, 0x00020000""")
    XR=240
    for tt in range(2):
        for dt in range(4):
            a(f"s_add_u32 s60, s55, {tt*16*896}")
            a(f"buffer_load_dwordx2 {vr(XR+2*(tt*4+dt),2)}, v5, s[44:47], s60 offen offset:{32*dt}")
    a(f"s_lshl_b32 s46, {sseg}, 7")
    a(f"s_add_u32 s46, s46, {FLAGS+128*192}")
    wait_flag(a,"TK_V_W1","s46",16)
    tstamp(a,1)
    frag_loads(a,"s54",32,lambda i: vr(48+4*i,4),mods="sc1")
    frag_loads(a,"s53",8,lambda i: vr(176+4*i,4),mods="sc1")
    ACC=16
    for h in range(16):
        a(f"s_waitcnt vmcnt({8+2*(15-h)})")
        for dt in range(4):
            for tt in range(2):
                acc=vr(ACC+4*(dt*2+tt),4)
                c="0" if h==0 else acc
                a(f"v_mfma_f32_16x16x32_bf16 {acc}, {ar((h*4+dt)*4,4)}, {vr(48+4*(2*h+tt),4)}, {c}")
    a("v_mov_b32 v8, 0")
    a(f"s_lshl_b32 s46, {sseg}, 7")
    a(f"s_add_u32 s46, s46, {FLAGS+128*32}")
    wait_flag(a,"TK_V_W3","s46",1)
    for hq in range(4):
        a(f"s_add_u32 s60, s51, {hq*28*1024}")
        for dt in range(4): ldf(a, vr(48+4*(hq*4+dt),4), "s60", 1024*dt, "sc1")
    for hq in range(4):
        a(f"s_waitcnt vmcnt({4*(3-hq)})")
        for dt in range(4):
            for tt in range(2):
                acc=vr(ACC+4*(dt*2+tt),4)
                a(f"v_mfma_f32_16x16x32_bf16 {acc}, {vr(48+4*(hq*4+dt),4)}, {vr(176+4*(2*hq+tt),4)}, {acc}")
    a(f"""v_lshrrev_b32 v6, 1, v3
    v_lshl_add_u32 v6, v6, 5, v2
    v_lshlrev_b32 v6, 4, v6
    v_and_b32 v7, 1, v3
    v_lshl_add_u32 v6, v7, 3, v6
    s_mul_i32 s56, {sseg}, 28
    s_add_u32 s56, s56, s50
    s_lshl_b32 s56, s56, 10
    s_add_u32 s56, s56, {HB}
    v_mul_u32_u24 v7, 56, v2
    s_mul_i32 s57, {sseg}, 32*56
    s_lshl_b32 s58, {scg}, 3
    s_add_u32 s57, s57, s58
    s_add_u32 s57, s57, {STATS}
    v_cmp_eq_u32 s[58:59], 0, v3""")
    for tt in range(2):
        H=120
        for dt in range(4):
            xb=XR+2*(tt*4+dt); A0=ACC+4*(dt*2+tt)
            a(f"v_cvt_pk_bf16_f32 v60, v{A0}, v{A0+1}")
            a(f"v_cvt_pk_bf16_f32 v61, v{A0+2}, v{A0+3}")
            a(f"v_lshlrev_b32 v62, 16, v60"); a(f"v_and_b32 v63, 0xffff0000, v60")
            a(f"v_lshlrev_b32 v64, 16, v61"); a(f"v_and_b32 v65, 0xffff0000, v61")
            a(f"v_lshlrev_b32 v66, 16, v{xb}"); a(f"v_and_b32 v67, 0xffff0000, v{xb}")
            a(f"v_lshlrev_b32 v68, 16, v{xb+1}"); a(f"v_and_b32 v69, 0xffff0000, v{xb+1}")
            for r in range(4): a(f"v_add_f32 v{62+r}, v{62+r}, v{66+r}")
            a(f"v_cvt_pk_bf16_f32 v{70+2*dt}, v62, v63")
            a(f"v_cvt_pk_bf16_f32 v{71+2*dt}, v64, v65")
            a(f"buffer_store_dwordx2 {vr(70+2*dt,2)}, v6, s[36:39], s56 offen offset:{1024*dt+256*tt} sc1")
            a(f"v_lshlrev_b32 v{H+4*dt}, 16, v{70+2*dt}"); a(f"v_and_b32 v{H+4*dt+1}, 0xffff0000, v{70+2*dt}")
            a(f"v_lshlrev_b32 v{H+4*dt+2}, 16, v{71+2*dt}"); a(f"v_and_b32 v{H+4*dt+3}, 0xffff0000, v{71+2*dt}")
        a(f"v_add_f32 v80, v{H}, v{H+1}")
        for i in range(2,16): a(f"v_add_f32 v80, v80, v{H+i}")
        xlane_reduce(a,80,81,"v_add_f32")
        a("v_mul_f32 v80, 0x3c800000, v80")
        a(f"v_sub_f32 v82, v{H}, v80"); a("v_mul_f32 v81, v82, v82")
        for i in range(1,16):
            a(f"v_sub_f32 v82, v{H+i}, v80"); a("v_fmac_f32 v81, v82, v82")
        a("v_mov_b32 v84, v80")
        xlane_reduce(a,81,82,"v_add_f32")
        a("v_mov_b32 v85, v81")
        a("s_mov_b64 exec, s[58:59]")
        a(f"s_add_u32 s60, s57, {tt*16*56}")
        a(f"buffer_store_dwordx2 v[84:85], v7, s[36:39], s60 offen sc1")
        a("s_mov_b64 exec, -1")
    a(f"s_lshl_b32 s46, {sseg}, 7")
    a(f"s_add_u32 s46, s46, {FLAGS+128*256}")
    signal(a,"s46")

def f1(a, sseg, sk):
    a(f"""v_lshlrev_b32 v4, 4, v1
    v_and_b32 v2, 31, v1
    v_lshrrev_b32 v3, 5, v1
    s_lshr_b32 s50, {sk}, 1                ; fb
    s_and_b32 s51, {sk}, 1                 ; half
    s_lshl_b32 s52, s50, 2
    s_add_u32 s52, s52, s51
    s_mul_i32 s53, s52, 28*1024
    s_add_u32 s53, s53, {WGU}
    s_add_u32 s54, s53, {2*28*1024}
    s_mul_i32 s55, {sseg}, 28*1024
    s_add_u32 s55, s55, {HB}""")
    frag_loads(a,"s53",28,lambda i: ar(4*i,4))
    frag_loads(a,"s54",28,lambda i: ar(112+4*i,4))
    a(f"""v_lshlrev_b32 v5, 4, v3
    s_lshl_b32 s58, s52, 7
    s_add_u32 s58, s58, {CS}
    s_add_u32 s59, s58, 16384""")
    CSR=176
    for g in range(2):
        for j in range(4):
            a(f"buffer_load_dwordx4 {vr(CSR+(g*4+j)*4,4)}, v5, s[36:39], s58 offen offset:{(64*g+8*j)*4}")
            a(f"buffer_load_dwordx4 {vr(CSR+32+(g*4+j)*4,4)}, v5, s[36:39], s59 offen offset:{(64*g+8*j)*4}")
    a("v_mov_b32 v8, 0")
    a(f"s_lshl_b32 s46, {sseg}, 7")
    a(f"s_add_u32 s46, s46, {FLAGS+128*256}")
    wait_flag(a,"TK_F1_W","s46",7)
    tstamp(a,1)
    frag_loads(a,"s55",28,lambda i: vr(48+4*i,4),mods="sc1")
    ST=160
    a(f"""v_mul_u32_u24 v6, 56, v2
    s_mul_i32 s60, {sseg}, 32*56
    s_add_u32 s60, s60, {STATS}""")
    for k in range(3): a(f"buffer_load_dwordx4 {vr(ST+4*k,4)}, v6, s[36:39], s60 offen offset:{16*k} sc1")
    a(f"buffer_load_dwordx2 {vr(ST+12,2)}, v6, s[36:39], s60 offen offset:48 sc1")
    G=16; U=32
    for ks in range(28):
        a(f"s_waitcnt vmcnt({4+27-ks})")
        a(f"v_mfma_f32_32x32x16_bf16 {vr(G,16)}, {ar(4*ks,4)}, {vr(48+4*ks,4)}, " + ("0" if ks==0 else vr(G,16)))
        a(f"v_mfma_f32_32x32x16_bf16 {vr(U,16)}, {ar(112+4*ks,4)}, {vr(48+4*ks,4)}, " + ("0" if ks==0 else vr(U,16)))
    a("s_waitcnt vmcnt(0)")
    for r in range(32): a(f"v_add_f32 v{CSR+r}, v{CSR+r}, v{CSR+32+r}")
    st=ST
    a(f"v_add_f32 v8, v{st}, v{st+2}")
    for k in range(2,7): a(f"v_add_f32 v8, v8, v{st+2*k}")
    a("v_mul_f32 v8, 0x3e124925, v8")
    a(f"v_add_f32 v9, v{st+1}, v{st+3}")
    for k in range(2,7): a(f"v_add_f32 v9, v9, v{st+2*k+1}")
    a("v_mov_b32 v10, 0")
    for k in range(7):
        a(f"v_sub_f32 v11, v{st+2*k}, v8"); a("v_fmac_f32 v10, v11, v11")
    a("v_fmac_f32 v9, 0x42800000, v10")
    a("v_mul_f32 v9, 0x3b124925, v9")
    a("v_add_f32 v9, 0x3727c5ac, v9")
    a("v_rsq_f32 v9, v9")
    a(f"""v_lshlrev_b32 v7, 4, v2
    v_lshl_add_u32 v7, v3, 3, v7
    s_mul_i32 s61, {sseg}, 112
    s_lshl_b32 s62, s50, 2
    s_add_u32 s61, s61, s62
    s_lshl_b32 s62, s51, 1
    s_add_u32 s61, s61, s62
    s_lshl_b32 s61, s61, 10
    s_add_u32 s61, s61, {ACT}""")
    for j in range(4):
        for r in range(4):
            g=G+4*j+r; u=U+4*j+r
            a(f"v_fma_f32 v{g}, -v8, v{CSR+j*4+r}, v{g}")
            a(f"v_fma_f32 v{u}, -v8, v{CSR+16+j*4+r}, v{u}")
            a(f"v_mul_f32 v{g}, v{g}, v9")
            a(f"v_mul_f32 v{u}, v{u}, v9")
        for r in (0,2):
            g=G+4*j+r; u=U+4*j+r
            a(f"v_cvt_pk_bf16_f32 v12, v{g}, v{g+1}")
            a(f"v_cvt_pk_bf16_f32 v13, v{u}, v{u+1}")
            a(f"v_lshlrev_b32 v{g}, 16, v12"); a(f"v_and_b32 v{g+1}, 0xffff0000, v12")
            a(f"v_lshlrev_b32 v{u}, 16, v13"); a(f"v_and_b32 v{u+1}, 0xffff0000, v13")
            a(f"v_max_f32 v{g}, 0, v{g}"); a(f"v_max_f32 v{g+1}, 0, v{g+1}")
            a(f"v_mul_f32 v{g}, v{g}, v{u}"); a(f"v_mul_f32 v{g+1}, v{g+1}, v{u+1}")
            a(f"v_cvt_pk_bf16_f32 v{48+2*j+r//2}, v{g}, v{g+1}")
        a(f"buffer_store_dwordx2 {vr(48+2*j,2)}, v7, s[36:39], s61 offen offset:{1024*(j>>1)+512*(j&1)} sc1")
    a(f"s_lshl_b32 s46, {sseg}, 7")
    a(f"s_add_u32 s46, s46, {FLAGS+128*320}")
    signal(a,"s46")

F2_LDS=141056
def f2(a, sseg, sk):
    a(f"""v_lshlrev_b32 v4, 4, v1
    v_and_b32 v2, 31, v1
    v_lshrrev_b32 v3, 5, v1
    s_lshr_b32 s50, {sk}, 2                ; db
    s_mul_i32 s53, s50, 112
    s_mul_i32 s51, s40, 28
    s_add_u32 s53, s53, s51
    s_lshl_b32 s53, s53, 10
    s_add_u32 s53, s53, {WDT}
    s_mul_i32 s55, {sseg}, 112
    s_add_u32 s55, s55, s51
    s_lshl_b32 s55, s55, 10
    s_add_u32 s55, s55, {ACT}""")
    frag_loads(a,"s53",28,lambda i: ar(4*i,4))
    a(f"""v_lshlrev_b32 v7, 4, v2
    v_lshl_add_u32 v7, v3, 3, v7
    s_mul_i32 s58, {sseg}, 28
    s_lshl_b32 s59, s50, 1
    s_add_u32 s58, s58, s59
    s_lshr_b32 s59, s40, 1
    s_add_u32 s58, s58, s59
    s_lshl_b32 s58, s58, 10
    s_and_b32 s59, s40, 1
    s_lshl_b32 s59, s59, 9
    s_add_u32 s58, s58, s59
    s_add_u32 s58, s58, {HB}
    v_mov_b32 v8, 0""")
    a(f"s_lshl_b32 s46, {sseg}, 7")
    a(f"s_add_u32 s46, s46, {FLAGS+128*320}")
    wait_flag(a,"TK_F2_W","s46",56)
    tstamp(a,1)
    frag_loads(a,"s55",28,lambda i: vr(48+4*i,4),mods="sc1")
    a("buffer_load_dwordx2 v[44:45], v7, s[36:39], s58 offen sc1")
    G=16
    for ks in range(28):
        a(f"s_waitcnt vmcnt({1+27-ks})")
        a(f"v_mfma_f32_32x32x16_bf16 {vr(G,16)}, {ar(4*ks,4)}, {vr(48+4*ks,4)}, " + ("0" if ks==0 else vr(G,16)))
    a(f"""v_lshlrev_b32 v5, 4, v1
    s_lshl_b32 s59, s40, 12
    s_add_u32 s59, s59, {F2_LDS}
    v_add_u32 v6, s59, v5
    s_lshl_b32 s59, s40, 10
    s_add_u32 s59, s59, {F2_LDS}
    v_add_u32 v5, s59, v5
    s_nop 7
    s_nop 3""")
    for j in range(4): a(f"ds_write_b128 v6, {vr(G+4*j,4)} offset:{1024*j}")
    a("s_waitcnt lgkmcnt(0)")
    a("s_barrier")
    for w in range(4): a(f"ds_read_b128 {vr(48+4*w,4)}, v5 offset:{4096*w}")
    a("s_waitcnt lgkmcnt(0)")
    a("s_barrier")
    for r in range(4):
        a(f"v_add_f32 v{48+r}, v{48+r}, v{52+r}")
        a(f"v_add_f32 v{56+r}, v{56+r}, v{60+r}")
        a(f"v_add_f32 v{48+r}, v{48+r}, v{56+r}")
    a("""v_cvt_pk_bf16_f32 v12, v48, v49
    v_cvt_pk_bf16_f32 v13, v50, v51
    v_lshlrev_b32 v8, 16, v12
    v_and_b32 v9, 0xffff0000, v12
    v_lshlrev_b32 v10, 16, v13
    v_and_b32 v11, 0xffff0000, v13
    s_waitcnt vmcnt(0)
    v_lshlrev_b32 v48, 16, v44
    v_and_b32 v49, 0xffff0000, v44
    v_lshlrev_b32 v50, 16, v45
    v_and_b32 v51, 0xffff0000, v45""")
    for r in range(4): a(f"v_add_f32 v{8+r}, v{8+r}, v{48+r}")
    a(f"""v_cvt_pk_bf16_f32 v14, v8, v9
    v_cvt_pk_bf16_f32 v15, v10, v11
    s_mov_b32 s44, s30
    s_and_b32 s45, s31, 0xffff
    s_mov_b32 s46, {2048*896}
    s_mov_b32 s47, 0x00020000
    v_mul_u32_u24 v6, 896, v2
    v_lshl_add_u32 v6, v3, 3, v6
    s_mul_i32 s59, {sseg}, 32*896
    s_lshl_b32 s61, s50, 6
    s_add_u32 s59, s59, s61
    s_lshl_b32 s61, s40, 4
    s_add_u32 s59, s59, s61
    buffer_store_dwordx2 v[14:15], v6, s[44:47], s59 offen""")

import os
PROF=int(os.environ.get("PROF","0"))
TS2=0x1760000
def tstamp(a, slot, kb=None):
    if PROF!=3: return
    if kb is None: kb=tstamp.kb
    tstamp.kb=kb
    a(f"""s_memrealtime s[70:71]
    s_waitcnt lgkmcnt(0)
    s_mul_i32 s72, s67, 136
    s_add_u32 s72, s72, s68
    s_add_u32 s72, s72, {kb}
    s_lshl_b32 s72, s72, 4
    s_add_u32 s72, s72, {TS2}
    s_mov_b64 exec, 1
    v_mov_b32 v250, s70
    v_mov_b32 v251, 0
    buffer_store_dword v250, v251, s[36:39], s72 offen offset:{4*slot}
    s_mov_b64 exec, -1""")
NT=136
def token_tasks(a):
    a.label("W_TOK")
    a("""s_cmp_lt_u32 s66, 128
    s_cbranch_scc1 TKP_S
    s_cmp_lt_u32 s66, 184
    s_cbranch_scc1 TKP_V
    s_cmp_lt_u32 s66, 520
    s_cbranch_scc1 TKP_F1
    s_cmp_lt_u32 s66, 856
    s_cbranch_scc1 TKP_F2
    s_endpgm""")
    a.label("TKP_S")
    a("""s_lshr_b32 s67, s66, 4
    s_and_b32 s68, s66, 15
    s_mov_b32 s69, 8""")
    a.label("TKL_S")
    tstamp(a,0,0)
    t3s(a,"s67","s68")
    tstamp(a,2,0)
    a("""s_add_u32 s67, s67, s69
    s_cmp_lt_u32 s67, 64
    s_cbranch_scc1 TKL_S
    s_endpgm""")
    a.label("TKP_V")
    a("""s_sub_u32 s66, s66, 128
    s_mul_i32 s67, s66, 9363
    s_lshr_b32 s67, s67, 16
    s_mul_i32 s68, s67, 7
    s_sub_u32 s68, s66, s68
    s_mov_b32 s69, 8""")
    a.label("TKL_V")
    tstamp(a,0,16)
    t3v(a,"s67","s68")
    tstamp(a,2,16)
    a("""s_add_u32 s67, s67, s69
    s_cmp_lt_u32 s67, 64
    s_cbranch_scc1 TKL_V
    s_endpgm""")
    for nm,base,fn,kb in (("F1",184,f1,24),("F2",520,f2,80)):
        a.label("TKP_"+nm)
        a(f"""s_sub_u32 s66, s66, {base}
        s_mul_i32 s67, s66, 1171
        s_lshr_b32 s67, s67, 16
        s_mul_i32 s68, s67, 56
        s_sub_u32 s68, s66, s68
        s_mov_b32 s69, 6""")
        a.label("TKL_"+nm)
        tstamp(a,0,kb)
        fn(a,"s67","s68")
        tstamp(a,2,kb)
        a(f"""s_add_u32 s67, s67, s69
        s_cmp_lt_u32 s67, 64
        s_cbranch_scc1 TKL_{nm}
        s_endpgm""")
```

```python
import sys
from layout import *
NAME="sequential_preLN__memory_aug_recurrent_mem_tr__glu_gated_reglu__prompt"

class Asm:
    def __init__(self): self.l=[]
    def __call__(self, s):
        for x in s.strip("\n").split("\n"): self.l.append("    "+x.strip())
    def label(self, s): self.l.append(s+":")
    def c(self, s): self.l.append("    ; "+s)
    def text(self): return "\n".join(self.l)+"\n"

def srd(a, r, p, nbytes, add=0):
    a(f"s_mov_b32 s{r}, s{p}")
    a(f"s_and_b32 s{r+1}, s{p+1}, 0xffff")
    a(f"s_mov_b32 s{r+2}, {nbytes:#x}")
    a(f"s_mov_b32 s{r+3}, 0x00020000")

def vr(b,n): return f"v[{b}:{b+n-1}]"
def ar(b,n): return f"a[{b}:{b+n-1}]"

def kernel_header(name):
    return f""".globl {name}
.p2align 8
.type {name},@function
{name}:
"""
def kernel_desc(name, vgpr, accum, sgpr=102):
    return f""".amdhsa_kernel {name}
  .amdhsa_next_free_vgpr {vgpr}
  .amdhsa_next_free_sgpr {sgpr}
  .amdhsa_accum_offset {accum}
  .amdhsa_group_segment_fixed_size 0
  .amdhsa_kernarg_size 112
  .amdhsa_user_sgpr_count 2
  .amdhsa_user_sgpr_kernarg_segment_ptr 1
  .amdhsa_system_sgpr_workgroup_id_x 1
.end_amdhsa_kernel
"""

def wave_sum(a, v):
    for m in ("row_shr:1","row_shr:2","row_shr:4","row_shr:8"):
        a("s_nop 1"); a(f"v_add_f32_dpp v{v}, v{v}, v{v} {m} row_mask:0xf bank_mask:0xf bound_ctrl:0")
    a("s_nop 1"); a(f"v_add_f32_dpp v{v}, v{v}, v{v} row_bcast:15 row_mask:0xa bank_mask:0xf")
    a("s_nop 1"); a(f"v_add_f32_dpp v{v}, v{v}, v{v} row_bcast:31 row_mask:0xc bank_mask:0xf")

def prologue(a):
    a("""s_load_dwordx16 s[8:23], s[0:1], 0
    s_load_dwordx8 s[24:31], s[0:1], 64
    s_load_dwordx4 s[32:35], s[0:1], 96
    v_lshrrev_b32 v2, 6, v0
    v_and_b32 v1, 63, v0
    s_nop 0
    v_readfirstlane_b32 s40, v2
    s_waitcnt lgkmcnt(0)""")
    srd(a, 36, 34, WS_BYTES)

N_AB=448; N_LN=129; N_TR=147; N_CS=56; N_INIT=16
K1_GRID=N_AB+N_LN+N_TR+N_CS+N_INIT
K1_LDS=36864+4*8448

def k1_ab(a):
    a.label("K1_AB")
    a("""s_cmp_ge_u32 s2, 224
    s_cselect_b32 s62, 1, 0
    s_cselect_b32 s63, 224, 0
    s_sub_u32 s2, s2, s63
    s_lshr_b32 s42, s2, 3
    s_mul_i32 s41, s42, 9363
    s_lshr_b32 s41, s41, 16
    s_mul_i32 s43, s41, 7
    s_sub_u32 s42, s42, s43          ; nb
    s_lshl_b32 s41, s41, 3
    s_and_b32 s43, s2, 7
    s_add_u32 s41, s41, s43          ; mat
    s_and_b32 s43, s41, 15           ; h
    s_lshr_b32 s48, s41, 4           ; isB
    v_and_b32 v2, 15, v1             ; l&15
    v_lshrrev_b32 v3, 4, v1          ; g
    s_cmp_eq_u32 s48, 0
    s_cselect_b32 s44, s12, s16
    s_cselect_b32 s45, s13, s17
    s_cselect_b32 s49, 0x3d800000, 1.0
    s_and_b32 s45, s45, 0xffff
    s_mov_b32 s46, 0x380000
    s_mov_b32 s47, 0x00020000""")
    a("""v_lshrrev_b32 v4, 5, v1
    s_lshl_b32 s50, s40, 4
    v_add_u32 v5, s50, v4
    v_lshlrev_b32 v5, 13, v5
    v_and_b32 v10, 31, v1
    v_lshl_add_u32 v5, v10, 4, v5
    s_lshl_b32 s51, s43, 9
    v_add_u32 v5, s51, v5
    s_mul_i32 s50, s40, 8448
    s_add_u32 s50, s50, 36864
    v_mul_u32_u24 v4, 528, v4
    v_lshl_add_u32 v4, v10, 4, v4
    v_add_u32 v4, s50, v4
    v_mul_u32_u24 v11, 528, v2
    v_lshl_add_u32 v11, v3, 4, v11
    v_add_u32 v11, s50, v11""")
    a("""v_lshrrev_b32 v6, 1, v3
    v_lshlrev_b32 v6, 9, v6             ; 32*(g>>1)*16
    v_lshl_add_u32 v6, v2, 4, v6
    v_and_b32 v7, 1, v3
    v_lshl_add_u32 v6, v7, 3, v6
    s_mul_i32 s52, s41, 14              ; mat*14 rt
    s_lshl_b32 s53, s42, 1
    s_add_u32 s52, s52, s53
    s_mul_i32 s52, s52, 28
    s_add_u32 s52, s52, s40             ; + w
    s_lshl_b32 s52, s52, 10
    s_add_u32 s52, s52, %d""" % WTA)
    def ld_stream(j):
        a(f"s_mul_i32 s53, s62, {4*64*8192}")
        a(f"s_add_u32 s53, s53, {64*8192*j}")
        for i in range(8):
            a(f"buffer_load_dwordx4 {vr(192+4*i,4)}, v5, s[44:47], s53 offen" + (f" offset:0" if i==0 else ""))
            if i<7: a("s_add_u32 s53, s53, 16384")
    a("s_cmp_eq_u32 s48, 0")
    a("s_cbranch_scc0 K1_AB_RESB")
    srd(a, 56, 14, 0x380000)
    a("""v_lshrrev_b32 v10, 5, v0            ; tid>>5 (0..7)
    v_and_b32 v12, 31, v0
    s_lshl_b32 s53, s42, 6
    v_add_u32 v13, s53, v10
    v_lshlrev_b32 v13, 13, v13
    v_lshl_add_u32 v13, v12, 4, v13
    v_add_u32 v13, s51, v13
    v_mul_u32_u24 v14, 528, v10
    v_lshl_add_u32 v14, v12, 4, v14""")
    for j in range(8):
        a(f"s_mov_b32 s53, {8*8192*j}")
        a(f"buffer_load_dwordx4 {vr(64+4*j,4)}, v13, s[56:59], s53 offen")
    ld_stream(0)
    for j in range(8):
        a(f"s_waitcnt vmcnt({8+7-j})")
        a(f"ds_write_b128 v14, {vr(64+4*j,4)} offset:{8*528*j}")
    a("""s_waitcnt lgkmcnt(0)
    s_barrier""")
    a("""v_lshrrev_b32 v10, 3, v2
    v_lshlrev_b32 v10, 4, v10
    v_bfe_u32 v12, v2, 1, 2
    v_lshl_add_u32 v10, v12, 2, v10
    v_and_b32 v12, 1, v2
    v_add_u32 v10, v10, v12
    v_mul_u32_u24 v10, 528, v10
    v_lshl_add_u32 v10, v3, 4, v10""")
    for nt in range(4):
        for ks in range(8):
            a(f"ds_read_b128 {vr(64+nt*32+ks*4,4)}, v10 offset:{(32*(nt&1)+2*(nt>>1))*528+64*ks}")
        a("s_waitcnt lgkmcnt(0)")
    a("s_branch K1_AB_MAIN")
    a.label("K1_AB_RESB")
    srd(a, 56, 18, 0x380000)
    a("""v_lshrrev_b32 v10, 3, v0       ; e0 = tid>>3 (0..31)
    v_and_b32 v12, 7, v0                ; piece
    s_lshl_b32 s53, s43, 8              ; h*256
    v_add_u32 v13, s53, v10
    v_mul_u32_u24 v13, 896, v13
    v_lshl_add_u32 v13, v12, 4, v13
    s_lshl_b32 s53, s42, 7              ; 128 nb
    v_add_u32 v13, s53, v13
    v_mul_u32_u24 v14, 144, v10
    v_lshl_add_u32 v14, v12, 4, v14""")
    for j in range(8):
        a(f"s_mov_b32 s53, {32*896*j}")
        a(f"buffer_load_dwordx4 {vr(64+4*j,4)}, v13, s[56:59], s53 offen")
    ld_stream(0)
    for j in range(8):
        a(f"s_waitcnt vmcnt({8+7-j})")
        a(f"ds_write_b128 v14, {vr(64+4*j,4)} offset:{32*144*j}")
    a("""s_waitcnt lgkmcnt(0)
    s_barrier""")
    a("""v_lshrrev_b32 v10, 2, v2
    v_lshl_add_u32 v10, v3, 3, v10
    v_mul_u32_u24 v10, 144, v10
    v_and_b32 v12, 3, v2
    v_lshl_add_u32 v10, v12, 3, v10""")
    for nt in range(4):
        for ks in range(8):
            for p in range(2):
                a(f"ds_read_b64_tr_b16 {vr(64+nt*32+ks*4+2*p,2)}, v10 offset:{(32*ks+4*p)*144+32*nt}")
        a("s_waitcnt lgkmcnt(0)")
    a.label("K1_AB_MAIN")
    a("s_lshl_b32 s63, s62, 14")
    a("s_add_u32 s52, s52, s63")
    for j in range(4):
        if j==3:
            a("s_cmp_eq_u32 s62, 0"); a("s_cbranch_scc0 K1_AB_END")
        a(f"s_waitcnt vmcnt({4 if j>0 else 0})")
        for i in range(8): a(f"ds_write_b128 v4, {vr(192+4*i,4)} offset:{2*528*i}")
        if j<3:
            a("s_nop 1")
            ld_stream(j+1)
        for ks in range(8): a(f"ds_read_b128 {vr(224+4*ks,4)}, v11 offset:{64*ks}")
        for ks in range(8):
            a(f"s_waitcnt lgkmcnt({7-ks})")
            for nt in range(4):
                c = "0" if ks==0 else vr(32+4*nt,4)
                a(f"v_mfma_f32_16x16x32_bf16 {vr(32+4*nt,4)}, {vr(224+4*ks,4)}, {vr(64+nt*32+ks*4,4)}, {c}")
        a("s_nop 7")
        for nt in range(4):
            for r in range(4): a(f"v_mul_f32 v{32+4*nt+r}, s49, v{32+4*nt+r}")
            a(f"v_cvt_pk_bf16_f32 v{48+2*nt}, v{32+4*nt}, v{33+4*nt}")
            a(f"v_cvt_pk_bf16_f32 v{49+2*nt}, v{34+4*nt}, v{35+4*nt}")
        for nt in range(4):
            a(f"s_add_u32 s53, s52, {(nt>>1)*28*1024 + 4096*j}")
            a(f"buffer_store_dwordx2 {vr(48+2*nt,2)}, v6, s[36:39], s53 offen offset:{256*(nt&1)}")
    a.label("K1_AB_END")
    a("s_endpgm")

def ln_rows(a, srd_in, in_off_v, nrows, outs, tag):
    pass

def k1_ln(a):
    a.label("K1_LN")
    a("s_sub_u32 s41, s2, %d" % N_AB)
    a("v_cmp_gt_u32 vcc, 56, v1")
    a("s_and_saveexec_b64 s[60:61], vcc")
    a("""v_lshlrev_b32 v2, 4, v1            ; lane*16
    v_lshrrev_b32 v3, 3, v1
    v_lshlrev_b32 v3, 7, v3
    v_and_b32 v4, 7, v1
    v_lshl_add_u32 v3, v4, 3, v3""")
    a("s_cmp_eq_u32 s41, 128")
    a("s_cbranch_scc1 K1_MEM0")
    srd(a, 44, 8, 2048*896)
    a("""s_lshl_b32 s42, s41, 4
    s_lshl_b32 s43, s40, 2
    s_add_u32 s42, s42, s43              ; row0
    s_mul_i32 s42, s42, 896""")
    R=4
    for r in range(R):
        a(f"buffer_load_dwordx4 {vr(8+4*r,4)}, v2, s[44:47], s42 offen offset:{896*r}")
    for r in range(R):
        a(f"s_waitcnt vmcnt({R-1-r})")
        b=32+8*r
        for j in range(4):
            a(f"v_lshlrev_b32 v{b+2*j}, 16, v{8+4*r+j}")
            a(f"v_and_b32 v{b+2*j+1}, 0xffff0000, v{8+4*r+j}")
        a(f"v_add_f32 v{24+r}, v{b}, v{b+1}")
        for j in range(2,8): a(f"v_add_f32 v{24+r}, v{24+r}, v{b+j}")
    a("s_mov_b64 exec, s[60:61]")
    a("v_cmp_gt_u32 vcc, 56, v1")
    for r in range(R):
        a("s_nop 1"); a(f"v_cndmask_b32 v{24+r}, 0, v{24+r}, vcc")
    for r in range(R): wave_sum(a, 24+r)
    a("s_nop 1")
    for r in range(R): a(f"v_readlane_b32 s{64+r}, v{24+r}, 63")
    a("s_mov_b32 s70, 0x3b124925")
    a("s_nop 1")
    for r in range(R):
        a(f"v_mov_b32 v{28+r}, s{64+r}")
        a(f"v_mul_f32 v{28+r}, s70, v{28+r}")
    for r in range(R):
        b=32+8*r
        a(f"v_sub_f32 v5, v{b}, v{28+r}")
        a(f"v_mul_f32 v{24+r}, v5, v5")
        for j in range(1,8):
            a(f"v_sub_f32 v5, v{b+j}, v{28+r}")
            a(f"v_fmac_f32 v{24+r}, v5, v5")
        a(f"v_cndmask_b32 v{24+r}, 0, v{24+r}, vcc")
    for r in range(R): wave_sum(a, 24+r)
    a("s_nop 1")
    for r in range(R): a(f"v_readlane_b32 s{64+r}, v{24+r}, 63")
    a("s_nop 1")
    for r in range(R):
        a(f"v_mov_b32 v{24+r}, s{64+r}")
        a(f"v_mul_f32 v{24+r}, s70, v{24+r}")
        a(f"v_cvt_pk_bf16_f32 v{28+r}, v{28+r}, v{28+r}")
        a(f"v_and_b32 v{28+r}, 0xffff0000, v{28+r}")
        a(f"v_cvt_pk_bf16_f32 v{24+r}, v{24+r}, v{24+r}")
        a(f"v_and_b32 v{24+r}, 0xffff0000, v{24+r}")
        a(f"v_add_f32 v{24+r}, 0x3727c5ac, v{24+r}")
        a(f"v_cvt_pk_bf16_f32 v{24+r}, v{24+r}, v{24+r}")
        a(f"v_and_b32 v{24+r}, 0xffff0000, v{24+r}")
        a(f"v_sqrt_f32 v{24+r}, v{24+r}")
        a("s_nop 0")
        a(f"v_cvt_pk_bf16_f32 v{24+r}, v{24+r}, v{24+r}")
        a(f"v_and_b32 v{24+r}, 0xffff0000, v{24+r}")
        a(f"v_rcp_f32 v{24+r}, v{24+r}")
        a("s_nop 0")
    a("s_and_saveexec_b64 s[60:61], vcc")
    a("""s_lshr_b32 s43, s41, 1             ; rt32 = wg'>>1  (16 rows per wg)
    s_mul_i32 s43, s43, 28*1024
    s_and_b32 s48, s41, 1
    s_lshl_b32 s48, s48, 4
    s_lshl_b32 s49, s40, 2
    s_add_u32 s48, s48, s49            ; row&31 of row0
    s_lshl_b32 s48, s48, 4
    s_add_u32 s43, s43, s48
    s_add_u32 s43, s43, %d
    v_lshrrev_b32 v6, 1, v1
    v_lshlrev_b32 v6, 10, v6
    v_and_b32 v7, 1, v1
    v_lshl_add_u32 v6, v7, 9, v6        ; XN voffset
    s_mul_i32 s48, s41, 14*1024         ; rt16 = wg'
    s_lshl_b32 s49, s40, 6              ; (4w)*16
    s_add_u32 s48, s48, s49
    s_add_u32 s48, s48, %d
    v_lshrrev_b32 v3, 3, v1             ; b
    v_lshlrev_b32 v3, 11, v3            ; 2 ks32 per b -> 2048
    v_bfe_u32 v4, v1, 1, 2              ; (j&7)>>1 = oq&3
    v_lshl_add_u32 v3, v4, 8, v3
    v_lshl_add_u32 v3, v7, 3, v3""" % (XN, XNP))
    for r in range(R):
        b=32+8*r
        for j in range(0,8,2):
            a(f"v_sub_f32 v{b+j}, v{b+j}, v{28+r}")
            a(f"v_sub_f32 v{b+j+1}, v{b+j+1}, v{28+r}")
            a(f"v_cvt_pk_bf16_f32 v5, v{b+j}, v{b+j+1}")
            a(f"v_lshlrev_b32 v{b+j}, 16, v5")
            a(f"v_and_b32 v{b+j+1}, 0xffff0000, v5")
            a(f"v_mul_f32 v{b+j}, v{b+j}, v{24+r}")
            a(f"v_mul_f32 v{b+j+1}, v{b+j+1}, v{24+r}")
            a(f"v_cvt_pk_bf16_f32 v{8+4*r+j//2}, v{b+j}, v{b+j+1}")
        a(f"buffer_store_dwordx4 {vr(8+4*r,4)}, v6, s[36:39], s43 offen offset:{16*r}")
        a(f"v_mov_b32 v{b}, v{8+4*r}")
        a(f"v_mov_b32 v{b+1}, v{8+4*r+2}")
        a(f"v_mov_b32 v{b+2}, v{8+4*r+1}")
        a(f"v_mov_b32 v{b+3}, v{8+4*r+3}")
        a(f"buffer_store_dwordx2 {vr(b,2)}, v3, s[36:39], s48 offen offset:{16*r}")
        a(f"buffer_store_dwordx2 {vr(b+2,2)}, v3, s[36:39], s48 offen offset:{16*r+1024}")
    a("s_endpgm")
    a.label("K1_MEM0")
    srd(a, 44, 10, 8*896)
    a("s_mul_i32 s42, s40, 1792")
    a("""v_lshrrev_b32 v3, 3, v1
    v_lshlrev_b32 v3, 10, v3             ; b*1024
    v_bfe_u32 v4, v1, 1, 2               ; g
    v_lshl_add_u32 v3, v4, 8, v3
    v_and_b32 v4, 1, v1
    v_lshl_add_u32 v3, v4, 3, v3
    s_lshl_b32 s49, s40, 5               ; i0*16 = 2w*16""")
    a("s_add_u32 s43, s49, %d" % MEMN)
    a("s_add_u32 s48, s49, %d" % MEMX)
    for r in range(2):
        a(f"buffer_load_dwordx4 {vr(8+4*r,4)}, v2, s[44:47], s42 offen offset:{896*r}")
    for r in range(2):
        b=32+8*r
        a(f"s_waitcnt vmcnt({1-r if r==0 else 4})")
        a(f"v_mov_b32 v{b}, v{8+4*r}")
        a(f"v_mov_b32 v{b+1}, v{8+4*r+2}")
        a(f"v_mov_b32 v{b+2}, v{8+4*r+1}")
        a(f"v_mov_b32 v{b+3}, v{8+4*r+3}")
        for so in ("s48","s43"):
            a(f"buffer_store_dwordx2 {vr(b,2)}, v3, s[36:39], {so} offen offset:{16*r}")
            a(f"buffer_store_dwordx2 {vr(b+2,2)}, v3, s[36:39], {so} offen offset:{16*r+128}")
    a("s_endpgm")

def k1_tr(a):
    a.label("K1_TR")
    a("s_sub_u32 s41, s2, %d" % (N_AB+N_LN))
    a("""s_lshl_b32 s41, s41, 2
    s_add_u32 s41, s41, s40
    s_mul_i32 s42, s41, 21400
    s_lshr_b32 s42, s42, 22
    s_mul_i32 s43, s42, 196
    s_sub_u32 s43, s41, s43            ; t in 0..195
    s_cmp_eq_u32 s42, 2
    s_cbranch_scc1 K1_TR_D""")
    a("""s_mul_i32 s48, s43, 2341
    s_lshr_b32 s48, s48, 16            ; kt = t/28
    s_mul_i32 s49, s48, 28
    s_sub_u32 s49, s43, s49            ; fb
    s_cmp_eq_u32 s42, 0
    s_cselect_b32 s44, s24, s26
    s_cselect_b32 s45, s25, s27
    s_and_b32 s45, s45, 0xffff
    s_mov_b32 s46, 0x188000
    s_mov_b32 s47, 0x00020000
    s_mov_b32 s50, 3584                ; src row stride
    s_mul_i32 s51, s48, 64*3584
    s_lshl_b32 s52, s49, 7
    s_add_u32 s51, s51, s52            ; src base offset
    s_mov_b32 s53, 28*1024             ; dst rt32 stride (KS=28)
    s_lshl_b32 s54, s49, 1
    s_add_u32 s54, s54, s42            ; 64-row block index
    s_mul_i32 s54, s54, 2*28*1024
    s_lshl_b32 s52, s48, 12            ; kt*4 ks16
    s_add_u32 s54, s54, s52
    s_add_u32 s54, s54, %d
    s_branch K1_TR_GO""" % WGU)
    a.label("K1_TR_D")
    a("""s_mul_i32 s48, s43, 9363
    s_lshr_b32 s48, s48, 16            ; ft
    s_mul_i32 s49, s48, 7
    s_sub_u32 s49, s43, s49            ; db""")
    srd(a, 44, 28, 0x188000)
    a("""s_mov_b32 s50, 896
    s_mul_i32 s51, s48, 64*896
    s_lshl_b32 s52, s49, 7
    s_add_u32 s51, s51, s52
    s_mov_b32 s53, 112*1024
    s_mul_i32 s54, s49, 2*112*1024
    s_lshl_b32 s52, s48, 12
    s_add_u32 s54, s54, s52
    s_add_u32 s54, s54, %d""" % WDT)
    a.label("K1_TR_GO")
    a("""v_lshrrev_b32 v2, 3, v1
    v_and_b32 v3, 7, v1
    v_mul_lo_u32 v4, v2, s50
    v_lshl_add_u32 v4, v3, 4, v4
    s_mul_i32 s55, s40, 64*144
    v_mul_u32_u24 v5, 144, v2
    v_lshl_add_u32 v5, v3, 4, v5
    v_add_u32 v5, s55, v5
    s_lshl_b32 s56, s50, 3""")
    for j in range(8):
        a(f"buffer_load_dwordx4 {vr(8+4*j,4)}, v4, s[44:47], s51 offen")
        if j<7: a("s_add_u32 s51, s51, s56")
    for j in range(8):
        a(f"s_waitcnt vmcnt({7-j})")
        a(f"ds_write_b128 v5, {vr(8+4*j,4)} offset:{8*144*j}")
    a("""v_and_b32 v2, 15, v1
    v_lshrrev_b32 v3, 4, v1
    v_lshrrev_b32 v6, 2, v2
    v_lshl_add_u32 v6, v3, 3, v6
    v_mul_u32_u24 v6, 144, v6
    v_and_b32 v7, 3, v2
    v_lshl_add_u32 v6, v7, 3, v6
    v_add_u32 v6, s55, v6
    v_lshrrev_b32 v7, 1, v3
    v_lshlrev_b32 v7, 10, v7               ; (g>>1) ks16
    v_and_b32 v8, 1, v3
    v_lshl_add_u32 v7, v8, 9, v7           ; 32*(g&1)*16
    v_lshl_add_u32 v7, v2, 4, v7           ; + c*16
    s_waitcnt lgkmcnt(0)""")
    for nt in range(4):
        for half in range(2):
            b=40+8*nt+4*half
            for p in range(2):
                a(f"ds_read_b64_tr_b16 {vr(b+2*p,2)}, v6 offset:{(32*half+4*p)*144+32*nt}")
    a("s_waitcnt lgkmcnt(0)")
    for nt in range(4):
        for half in range(2):
            b=40+8*nt+4*half
            a(f"buffer_store_dwordx4 {vr(b,4)}, v7, s[36:39], s54 offen offset:{2048*half+256*(nt&1)}")
        if nt==1: a("s_add_u32 s54, s54, s53")
    a("s_endpgm")

def k1_cs(a):
    a.label("K1_CS")
    a("s_sub_u32 s41, s2, %d" % (N_AB+N_LN+N_TR))
    a("""s_cmp_ge_u32 s41, 28
    s_cselect_b32 s50, 1, 0           ; khalf
    s_cselect_b32 s51, 28, 0
    s_sub_u32 s41, s41, s51
    s_cmp_ge_u32 s41, 14
    s_cselect_b32 s42, 1, 0
    s_cselect_b32 s43, 14, 0
    s_cselect_b32 s44, s26, s24
    s_cselect_b32 s45, s27, s25
    s_sub_u32 s43, s41, s43           ; fb128
    s_and_b32 s45, s45, 0xffff
    s_mov_b32 s46, 0x188000
    s_mov_b32 s47, 0x00020000
    v_lshlrev_b32 v2, 2, v1
    s_lshl_b32 s48, s50, 2
    s_add_u32 s48, s48, s40
    s_mul_i32 s48, s48, 56*3584
    s_lshl_b32 s49, s43, 8
    s_add_u32 s48, s48, s49
    v_mov_b32 v4, 0
    v_mov_b32 v5, 0""")
    for j in range(56):
        a(f"buffer_load_dword v{8+j}, v2, s[44:47], s48 offen")
        a("s_add_u32 s48, s48, 3584")
    for j in range(56):
        a(f"s_waitcnt vmcnt({55-j})")
        a(f"v_lshlrev_b32 v6, 16, v{8+j}")
        a(f"v_and_b32 v7, 0xffff0000, v{8+j}")
        a("v_add_f32 v4, v4, v6")
        a("v_add_f32 v5, v5, v7")
    a("""v_lshlrev_b32 v6, 3, v0
    ds_write_b64 v6, v[4:5]
    s_waitcnt lgkmcnt(0)
    s_barrier
    s_cmp_eq_u32 s40, 0
    s_cbranch_scc0 K1_CS_END
    ds_read_b64 v[8:9], v6 offset:512
    ds_read_b64 v[10:11], v6 offset:1024
    ds_read_b64 v[12:13], v6 offset:1536
    s_waitcnt lgkmcnt(0)
    v_add_f32 v4, v4, v8
    v_add_f32 v5, v5, v9
    v_add_f32 v4, v4, v10
    v_add_f32 v5, v5, v11
    v_add_f32 v4, v4, v12
    v_add_f32 v5, v5, v13""")
    a("""v_lshlrev_b32 v6, 1, v1          ; 2*lane (0..126)
    v_lshrrev_b32 v7, 6, v6               ; 0/1
    v_and_b32 v6, 63, v6
    v_lshl_add_u32 v6, v7, 7, v6          ; (f>>6 &1)*128 + (f&63)
    s_lshl_b32 s49, s43, 8                ; fb128*2*128
    s_lshl_b32 s51, s42, 6
    s_add_u32 s49, s49, s51
    v_add_u32 v6, s49, v6
    v_lshlrev_b32 v6, 2, v6
    s_mul_i32 s49, s50, 16384
    s_add_u32 s49, s49, %d
    buffer_store_dwordx2 v[4:5], v6, s[36:39], s49 offen""" % CS)
    a.label("K1_CS_END")
    a("s_endpgm")

def k1_init(a):
    a.label("K1_INIT")
    a("s_sub_u32 s41, s2, %d" % (N_AB+N_LN+N_TR+N_CS))
    a("""v_mov_b32 v4, -1
    v_mov_b32 v5, -1
    v_mov_b32 v6, -1
    v_mov_b32 v7, -1
    v_lshlrev_b32 v2, 4, v0
    s_mul_i32 s42, s41, 28672
    s_add_u32 s42, s42, %d""" % (MEMX+7168))
    for j in range(7): a(f"buffer_store_dwordx4 v[4:7], v2, s[36:39], s42 offen"); a("s_add_u32 s42, s42, 4096")
    a("s_mul_i32 s42, s41, 40960")
    a("s_add_u32 s42, s42, %d" % PX)
    for j in range(10): a(f"buffer_store_dwordx4 v[4:7], v2, s[36:39], s42 offen"); a("s_add_u32 s42, s42, 4096")
    a("""v_mov_b32 v8, 0
    v_mov_b32 v9, 0
    v_mov_b32 v10, 0
    v_mov_b32 v11, 0
    s_lshl_b32 s42, s41, 12
    s_add_u32 s42, s42, %d
    v_add_u32 v12, s42, v2
    v_cmp_eq_u32 vcc, %d, v12
    s_nop 1
    v_cndmask_b32 v8, 0, 1, vcc
    buffer_store_dwordx4 v[8:11], v2, s[36:39], s42 offen
    s_endpgm""" % (FLAGS, FLAGS+128*400))

def k1():
    a=Asm()
    a(f"s_cmp_ge_u32 s2, {K1_GRID}")
    a("s_cbranch_scc1 K1_EXIT")
    prologue(a)
    a(f"s_cmp_lt_u32 s2, {N_AB}"); a("s_cbranch_scc1 K1_AB")
    a(f"s_cmp_lt_u32 s2, {N_AB+N_LN}"); a("s_cbranch_scc1 K1_LN")
    a(f"s_cmp_lt_u32 s2, {N_AB+N_LN+N_TR}"); a("s_cbranch_scc1 K1_TR")
    a(f"s_cmp_lt_u32 s2, {N_AB+N_LN+N_TR+N_CS}"); a("s_cbranch_scc1 K1_CS")
    a("s_branch K1_INIT")
    a.label("K1_EXIT"); a("s_endpgm")
    import os
    only=os.environ.get("K1ONLY","")
    for nm,fn in (("AB",k1_ab),("LN",k1_ln),("TR",k1_tr),("CS",k1_cs),("INIT",k1_init)):
        if only and nm!=only:
            a.label("K1_"+nm); a("s_endpgm")
        else: fn(a)
    return a.text()

def build(kernels):
    hdr = open("cdna_kernels/%s.s.ref"%NAME).read().split("\n")
    top=[]
    for line in hdr:
        if line.startswith("; @launch") or line.startswith("; Override") or line.startswith("; grid="): continue
        if not line.startswith(";"): break
        top.append(line)
    out="\n".join(top)+"\n"
    for (name,text,grid,block,lds,vg,ac) in kernels:
        out+=f"; @launch kernel={name} grid=({grid},1,1) block=({block},1,1) lds={lds}\n"
    out+='.amdgcn_target "amdgcn-amd-amdhsa--gfx950"\n.text\n'
    seen=set()
    for (name,text,grid,block,lds,vg,ac) in kernels:
        if name in seen: continue
        seen.add(name)
        out+=kernel_header(name)+text
    out+='.section .rodata,"a"\n'
    seen=set()
    for (name,text,grid,block,lds,vg,ac) in kernels:
        if name in seen: continue
        seen.add(name)
        out+=".p2align 6\n"+kernel_desc(name,vg,ac)
    return out

if __name__=="__main__":
    ks=[("k1_kernel",k1(),K1_GRID,256,K1_LDS,256,256)]
    try:
        import gen2
        ks+=gen2.kernels()
    except ImportError:
        pass
    open("cdna_kernels/%s.s"%NAME,"w").write(build(ks))
```

```python
import sys
from layout import *
NAME="sequential_preLN__memory_aug_recurrent_mem_tr__glu_gated_reglu__prompt"

class Asm:
    def __init__(self): self.l=[]
    def __call__(self, s):
        for x in s.strip("\n").split("\n"): self.l.append("    "+x.strip())
    def label(self, s): self.l.append(s+":")
    def c(self, s): self.l.append("    ; "+s)
    def text(self): return "\n".join(self.l)+"\n"

def srd(a, r, p, nbytes, add=0):
    a(f"s_mov_b32 s{r}, s{p}")
    a(f"s_and_b32 s{r+1}, s{p+1}, 0xffff")
    a(f"s_mov_b32 s{r+2}, {nbytes:#x}")
    a(f"s_mov_b32 s{r+3}, 0x00020000")

def vr(b,n): return f"v[{b}:{b+n-1}]"
def ar(b,n): return f"a[{b}:{b+n-1}]"

def kernel_header(name):
    return f""".globl {name}
.p2align 8
.type {name},@function
{name}:
"""
def kernel_desc(name, vgpr, accum, sgpr=102):
    return f""".amdhsa_kernel {name}
  .amdhsa_next_free_vgpr {vgpr}
  .amdhsa_next_free_sgpr {sgpr}
  .amdhsa_accum_offset {accum}
  .amdhsa_group_segment_fixed_size 0
  .amdhsa_kernarg_size 112
  .amdhsa_user_sgpr_count 2
  .amdhsa_user_sgpr_kernarg_segment_ptr 1
  .amdhsa_system_sgpr_workgroup_id_x 1
.end_amdhsa_kernel
"""

def wave_sum(a, v):
    for m in ("row_shr:1","row_shr:2","row_shr:4","row_shr:8"):
        a("s_nop 1"); a(f"v_add_f32_dpp v{v}, v{v}, v{v} {m} row_mask:0xf bank_mask:0xf bound_ctrl:0")
    a("s_nop 1"); a(f"v_add_f32_dpp v{v}, v{v}, v{v} row_bcast:15 row_mask:0xa bank_mask:0xf")
    a("s_nop 1"); a(f"v_add_f32_dpp v{v}, v{v}, v{v} row_bcast:31 row_mask:0xc bank_mask:0xf")

def prologue(a):
    a("""s_load_dwordx16 s[8:23], s[0:1], 0
    s_load_dwordx8 s[24:31], s[0:1], 64
    s_load_dwordx4 s[32:35], s[0:1], 96
    v_lshrrev_b32 v2, 6, v0
    v_and_b32 v1, 63, v0
    s_nop 0
    v_readfirstlane_b32 s40, v2
    s_waitcnt lgkmcnt(0)""")
    srd(a, 36, 34, WS_BYTES)

N_AB=448; N_LN=129; N_TR=0; N_CS=0; N_INIT=16
K1_GRID=N_AB+N_LN+N_TR+N_CS+N_INIT
K1_LDS=36864+4*8448

def k1_ab(a):
    a.label("K1_AB")
    a("""s_cmp_ge_u32 s2, 224
    s_cselect_b32 s62, 1, 0
    s_cselect_b32 s63, 224, 0
    s_sub_u32 s2, s2, s63
    s_lshr_b32 s42, s2, 3
    s_mul_i32 s41, s42, 9363
    s_lshr_b32 s41, s41, 16
    s_mul_i32 s43, s41, 7
    s_sub_u32 s42, s42, s43          ; nb
    s_lshl_b32 s41, s41, 3
    s_and_b32 s43, s2, 7
    s_add_u32 s41, s41, s43          ; mat
    s_and_b32 s43, s41, 15           ; h
    s_lshr_b32 s48, s41, 4           ; isB
    v_and_b32 v2, 15, v1             ; l&15
    v_lshrrev_b32 v3, 4, v1          ; g
    s_cmp_eq_u32 s48, 0
    s_cselect_b32 s44, s12, s16
    s_cselect_b32 s45, s13, s17
    s_cselect_b32 s49, 0x3d800000, 1.0
    s_and_b32 s45, s45, 0xffff
    s_mov_b32 s46, 0x380000
    s_mov_b32 s47, 0x00020000""")
    a("""v_lshrrev_b32 v4, 5, v1
    s_lshl_b32 s50, s40, 4
    v_add_u32 v5, s50, v4
    v_lshlrev_b32 v5, 13, v5
    v_and_b32 v10, 31, v1
    v_lshl_add_u32 v5, v10, 4, v5
    s_lshl_b32 s51, s43, 9
    v_add_u32 v5, s51, v5
    s_mul_i32 s50, s40, 8448
    s_add_u32 s50, s50, 36864
    v_mul_u32_u24 v4, 528, v4
    v_lshl_add_u32 v4, v10, 4, v4
    v_add_u32 v4, s50, v4
    v_mul_u32_u24 v11, 528, v2
    v_lshl_add_u32 v11, v3, 4, v11
    v_add_u32 v11, s50, v11""")
    a("""v_lshrrev_b32 v6, 1, v3
    v_lshlrev_b32 v6, 9, v6             ; 32*(g>>1)*16
    v_lshl_add_u32 v6, v2, 4, v6
    v_and_b32 v7, 1, v3
    v_lshl_add_u32 v6, v7, 3, v6
    s_mul_i32 s52, s41, 14              ; mat*14 rt
    s_lshl_b32 s53, s42, 1
    s_add_u32 s52, s52, s53
    s_mul_i32 s52, s52, 28
    s_add_u32 s52, s52, s40             ; + w
    s_lshl_b32 s52, s52, 10
    s_add_u32 s52, s52, %d""" % WTA)
    def ld_stream(j):
        a(f"s_mul_i32 s53, s62, {4*64*8192}")
        a(f"s_add_u32 s53, s53, {64*8192*j}")
        for i in range(8):
            a(f"buffer_load_dwordx4 {vr(192+4*i,4)}, v5, s[44:47], s53 offen" + (f" offset:0" if i==0 else ""))
            if i<7: a("s_add_u32 s53, s53, 16384")
    a("s_cmp_eq_u32 s48, 0")
    a("s_cbranch_scc0 K1_AB_RESB")
    srd(a, 56, 14, 0x380000)
    a("""v_lshrrev_b32 v10, 5, v0            ; tid>>5 (0..7)
    v_and_b32 v12, 31, v0
    s_lshl_b32 s53, s42, 6
    v_add_u32 v13, s53, v10
    v_lshlrev_b32 v13, 13, v13
    v_lshl_add_u32 v13, v12, 4, v13
    v_add_u32 v13, s51, v13
    v_mul_u32_u24 v14, 528, v10
    v_lshl_add_u32 v14, v12, 4, v14""")
    for j in range(8):
        a(f"s_mov_b32 s53, {8*8192*j}")
        a(f"buffer_load_dwordx4 {vr(64+4*j,4)}, v13, s[56:59], s53 offen")
    ld_stream(0)
    for j in range(8):
        a(f"s_waitcnt vmcnt({8+7-j})")
        a(f"ds_write_b128 v14, {vr(64+4*j,4)} offset:{8*528*j}")
    a("""s_waitcnt lgkmcnt(0)
    s_barrier""")
    a("""v_lshrrev_b32 v10, 3, v2
    v_lshlrev_b32 v10, 4, v10
    v_bfe_u32 v12, v2, 1, 2
    v_lshl_add_u32 v10, v12, 2, v10
    v_and_b32 v12, 1, v2
    v_add_u32 v10, v10, v12
    v_mul_u32_u24 v10, 528, v10
    v_lshl_add_u32 v10, v3, 4, v10""")
    for nt in range(4):
        for ks in range(8):
            a(f"ds_read_b128 {vr(64+nt*32+ks*4,4)}, v10 offset:{(32*(nt&1)+2*(nt>>1))*528+64*ks}")
        a("s_waitcnt lgkmcnt(0)")
    a("s_branch K1_AB_MAIN")
    a.label("K1_AB_RESB")
    srd(a, 56, 18, 0x380000)
    a("""v_lshrrev_b32 v10, 3, v0       ; e0 = tid>>3 (0..31)
    v_and_b32 v12, 7, v0                ; piece
    s_lshl_b32 s53, s43, 8              ; h*256
    v_add_u32 v13, s53, v10
    v_mul_u32_u24 v13, 896, v13
    v_lshl_add_u32 v13, v12, 4, v13
    s_lshl_b32 s53, s42, 7              ; 128 nb
    v_add_u32 v13, s53, v13
    v_mul_u32_u24 v14, 144, v10
    v_lshl_add_u32 v14, v12, 4, v14""")
    for j in range(8):
        a(f"s_mov_b32 s53, {32*896*j}")
        a(f"buffer_load_dwordx4 {vr(64+4*j,4)}, v13, s[56:59], s53 offen")
    ld_stream(0)
    for j in range(8):
        a(f"s_waitcnt vmcnt({8+7-j})")
        a(f"ds_write_b128 v14, {vr(64+4*j,4)} offset:{32*144*j}")
    a("""s_waitcnt lgkmcnt(0)
    s_barrier""")
    a("""v_lshrrev_b32 v10, 2, v2
    v_lshl_add_u32 v10, v3, 3, v10
    v_mul_u32_u24 v10, 144, v10
    v_and_b32 v12, 3, v2
    v_lshl_add_u32 v10, v12, 3, v10""")
    for nt in range(4):
        for ks in range(8):
            for p in range(2):
                a(f"ds_read_b64_tr_b16 {vr(64+nt*32+ks*4+2*p,2)}, v10 offset:{(32*ks+4*p)*144+32*nt}")
        a("s_waitcnt lgkmcnt(0)")
    a.label("K1_AB_MAIN")
    a("s_lshl_b32 s63, s62, 14")
    a("s_add_u32 s52, s52, s63")
    for j in range(4):
        if j==3:
            a("s_cmp_eq_u32 s62, 0"); a("s_cbranch_scc0 K1_AB_END")
        a(f"s_waitcnt vmcnt({4 if j>0 else 0})")
        for i in range(8): a(f"ds_write_b128 v4, {vr(192+4*i,4)} offset:{2*528*i}")
        if j<3:
            a("s_nop 1")
            ld_stream(j+1)
        for ks in range(8): a(f"ds_read_b128 {vr(224+4*ks,4)}, v11 offset:{64*ks}")
        for ks in range(8):
            a(f"s_waitcnt lgkmcnt({7-ks})")
            for nt in range(4):
                c = "0" if ks==0 else vr(32+4*nt,4)
                a(f"v_mfma_f32_16x16x32_bf16 {vr(32+4*nt,4)}, {vr(224+4*ks,4)}, {vr(64+nt*32+ks*4,4)}, {c}")
        a("s_nop 7")
        for nt in range(4):
            for r in range(4): a(f"v_mul_f32 v{32+4*nt+r}, s49, v{32+4*nt+r}")
            a(f"v_cvt_pk_bf16_f32 v{48+2*nt}, v{32+4*nt}, v{33+4*nt}")
            a(f"v_cvt_pk_bf16_f32 v{49+2*nt}, v{34+4*nt}, v{35+4*nt}")
        for nt in range(4):
            a(f"s_add_u32 s53, s52, {(nt>>1)*28*1024 + 4096*j}")
            a(f"buffer_store_dwordx2 {vr(48+2*nt,2)}, v6, s[36:39], s53 offen offset:{256*(nt&1)}")
    a.label("K1_AB_END")
    a("s_endpgm")

def ln_rows(a, srd_in, in_off_v, nrows, outs, tag):
    pass

def k1_ln(a):
    a.label("K1_LN")
    a("s_sub_u32 s41, s2, %d" % N_AB)
    a("v_cmp_gt_u32 vcc, 56, v1")
    a("s_and_saveexec_b64 s[60:61], vcc")
    a("""v_lshlrev_b32 v2, 4, v1            ; lane*16
    v_lshrrev_b32 v3, 3, v1
    v_lshlrev_b32 v3, 7, v3
    v_and_b32 v4, 7, v1
    v_lshl_add_u32 v3, v4, 3, v3""")
    a("s_cmp_eq_u32 s41, 128")
    a("s_cbranch_scc1 K1_MEM0")
    srd(a, 44, 8, 2048*896)
    a("""s_lshl_b32 s42, s41, 4
    s_lshl_b32 s43, s40, 2
    s_add_u32 s42, s42, s43              ; row0
    s_mul_i32 s42, s42, 896""")
    R=4
    for r in range(R):
        a(f"buffer_load_dwordx4 {vr(8+4*r,4)}, v2, s[44:47], s42 offen offset:{896*r}")
    for r in range(R):
        a(f"s_waitcnt vmcnt({R-1-r})")
        b=32+8*r
        for j in range(4):
            a(f"v_lshlrev_b32 v{b+2*j}, 16, v{8+4*r+j}")
            a(f"v_and_b32 v{b+2*j+1}, 0xffff0000, v{8+4*r+j}")
        a(f"v_add_f32 v{24+r}, v{b}, v{b+1}")
        for j in range(2,8): a(f"v_add_f32 v{24+r}, v{24+r}, v{b+j}")
    a("s_mov_b64 exec, s[60:61]")
    a("v_cmp_gt_u32 vcc, 56, v1")
    for r in range(R):
        a("s_nop 1"); a(f"v_cndmask_b32 v{24+r}, 0, v{24+r}, vcc")
    for r in range(R): wave_sum(a, 24+r)
    a("s_nop 1")
    for r in range(R): a(f"v_readlane_b32 s{64+r}, v{24+r}, 63")
    a("s_mov_b32 s70, 0x3b124925")
    a("s_nop 1")
    for r in range(R):
        a(f"v_mov_b32 v{28+r}, s{64+r}")
        a(f"v_mul_f32 v{28+r}, s70, v{28+r}")
    for r in range(R):
        b=32+8*r
        a(f"v_sub_f32 v5, v{b}, v{28+r}")
        a(f"v_mul_f32 v{24+r}, v5, v5")
        for j in range(1,8):
            a(f"v_sub_f32 v5, v{b+j}, v{28+r}")
            a(f"v_fmac_f32 v{24+r}, v5, v5")
        a(f"v_cndmask_b32 v{24+r}, 0, v{24+r}, vcc")
    for r in range(R): wave_sum(a, 24+r)
    a("s_nop 1")
    for r in range(R): a(f"v_readlane_b32 s{64+r}, v{24+r}, 63")
    a("s_nop 1")
    for r in range(R):
        a(f"v_mov_b32 v{24+r}, s{64+r}")
        a(f"v_mul_f32 v{24+r}, s70, v{24+r}")
        a(f"v_cvt_pk_bf16_f32 v{28+r}, v{28+r}, v{28+r}")
        a(f"v_and_b32 v{28+r}, 0xffff0000, v{28+r}")
        a(f"v_cvt_pk_bf16_f32 v{24+r}, v{24+r}, v{24+r}")
        a(f"v_and_b32 v{24+r}, 0xffff0000, v{24+r}")
        a(f"v_add_f32 v{24+r}, 0x3727c5ac, v{24+r}")
        a(f"v_cvt_pk_bf16_f32 v{24+r}, v{24+r}, v{24+r}")
        a(f"v_and_b32 v{24+r}, 0xffff0000, v{24+r}")
        a(f"v_sqrt_f32 v{24+r}, v{24+r}")
        a("s_nop 0")
        a(f"v_cvt_pk_bf16_f32 v{24+r}, v{24+r}, v{24+r}")
        a(f"v_and_b32 v{24+r}, 0xffff0000, v{24+r}")
        a(f"v_rcp_f32 v{24+r}, v{24+r}")
        a("s_nop 0")
    a("s_and_saveexec_b64 s[60:61], vcc")
    a("""s_lshr_b32 s43, s41, 1             ; rt32 = wg'>>1  (16 rows per wg)
    s_mul_i32 s43, s43, 28*1024
    s_and_b32 s48, s41, 1
    s_lshl_b32 s48, s48, 4
    s_lshl_b32 s49, s40, 2
    s_add_u32 s48, s48, s49            ; row&31 of row0
    s_lshl_b32 s48, s48, 4
    s_add_u32 s43, s43, s48
    s_add_u32 s43, s43, %d
    v_lshrrev_b32 v6, 1, v1
    v_lshlrev_b32 v6, 10, v6
    v_and_b32 v7, 1, v1
    v_lshl_add_u32 v6, v7, 9, v6        ; XN voffset
    s_mul_i32 s48, s41, 14*1024         ; rt16 = wg'
    s_lshl_b32 s49, s40, 6              ; (4w)*16
    s_add_u32 s48, s48, s49
    s_add_u32 s48, s48, %d
    v_lshrrev_b32 v3, 3, v1             ; b
    v_lshlrev_b32 v3, 11, v3            ; 2 ks32 per b -> 2048
    v_bfe_u32 v4, v1, 1, 2              ; (j&7)>>1 = oq&3
    v_lshl_add_u32 v3, v4, 8, v3
    v_lshl_add_u32 v3, v7, 3, v3""" % (XN, XNP))
    for r in range(R):
        b=32+8*r
        for j in range(0,8,2):
            a(f"v_sub_f32 v{b+j}, v{b+j}, v{28+r}")
            a(f"v_sub_f32 v{b+j+1}, v{b+j+1}, v{28+r}")
            a(f"v_cvt_pk_bf16_f32 v5, v{b+j}, v{b+j+1}")
            a(f"v_lshlrev_b32 v{b+j}, 16, v5")
            a(f"v_and_b32 v{b+j+1}, 0xffff0000, v5")
            a(f"v_mul_f32 v{b+j}, v{b+j}, v{24+r}")
            a(f"v_mul_f32 v{b+j+1}, v{b+j+1}, v{24+r}")
            a(f"v_cvt_pk_bf16_f32 v{8+4*r+j//2}, v{b+j}, v{b+j+1}")
        a(f"buffer_store_dwordx4 {vr(8+4*r,4)}, v6, s[36:39], s43 offen offset:{16*r}")
        a(f"v_mov_b32 v{b}, v{8+4*r}")
        a(f"v_mov_b32 v{b+1}, v{8+4*r+2}")
        a(f"v_mov_b32 v{b+2}, v{8+4*r+1}")
        a(f"v_mov_b32 v{b+3}, v{8+4*r+3}")
        a(f"buffer_store_dwordx2 {vr(b,2)}, v3, s[36:39], s48 offen offset:{16*r}")
        a(f"buffer_store_dwordx2 {vr(b+2,2)}, v3, s[36:39], s48 offen offset:{16*r+1024}")
    a("s_endpgm")
    a.label("K1_MEM0")
    srd(a, 44, 10, 8*896)
    a("s_mul_i32 s42, s40, 1792")
    a("""v_lshrrev_b32 v3, 3, v1
    v_lshlrev_b32 v3, 10, v3             ; b*1024
    v_bfe_u32 v4, v1, 1, 2               ; g
    v_lshl_add_u32 v3, v4, 8, v3
    v_and_b32 v4, 1, v1
    v_lshl_add_u32 v3, v4, 3, v3
    s_lshl_b32 s49, s40, 5               ; i0*16 = 2w*16""")
    a("s_add_u32 s43, s49, %d" % MEMN)
    a("s_add_u32 s48, s49, %d" % MEMX)
    for r in range(2):
        a(f"buffer_load_dwordx4 {vr(8+4*r,4)}, v2, s[44:47], s42 offen offset:{896*r}")
    for r in range(2):
        b=32+8*r
        a(f"s_waitcnt vmcnt({1-r if r==0 else 4})")
        a(f"v_mov_b32 v{b}, v{8+4*r}")
        a(f"v_mov_b32 v{b+1}, v{8+4*r+2}")
        a(f"v_mov_b32 v{b+2}, v{8+4*r+1}")
        a(f"v_mov_b32 v{b+3}, v{8+4*r+3}")
        for so in ("s48","s43"):
            a(f"buffer_store_dwordx2 {vr(b,2)}, v3, s[36:39], {so} offen offset:{16*r}")
            a(f"buffer_store_dwordx2 {vr(b+2,2)}, v3, s[36:39], {so} offen offset:{16*r+128}")
    a("s_endpgm")

def k1_tr(a, k2=False):
    if not k2:
        a.label("K1_TR")
        a("s_sub_u32 s41, s2, %d" % (N_AB+N_LN))
    a("""s_lshl_b32 s41, s41, 2
    s_add_u32 s41, s41, s40
    s_mul_i32 s42, s41, 21400
    s_lshr_b32 s42, s42, 22
    s_mul_i32 s43, s42, 196
    s_sub_u32 s43, s41, s43            ; t in 0..195
    s_cmp_eq_u32 s42, 2
    s_cbranch_scc1 K1_TR_D""")
    a("""s_mul_i32 s48, s43, 2341
    s_lshr_b32 s48, s48, 16            ; kt = t/28
    s_mul_i32 s49, s48, 28
    s_sub_u32 s49, s43, s49            ; fb
    s_cmp_eq_u32 s42, 0
    s_cselect_b32 s44, s24, s26
    s_cselect_b32 s45, s25, s27
    s_and_b32 s45, s45, 0xffff
    s_mov_b32 s46, 0x188000
    s_mov_b32 s47, 0x00020000
    s_mov_b32 s50, 3584                ; src row stride
    s_mul_i32 s51, s48, 64*3584
    s_lshl_b32 s52, s49, 7
    s_add_u32 s51, s51, s52            ; src base offset
    s_mov_b32 s53, 28*1024             ; dst rt32 stride (KS=28)
    s_lshl_b32 s54, s49, 1
    s_add_u32 s54, s54, s42            ; 64-row block index
    s_mul_i32 s54, s54, 2*28*1024
    s_lshl_b32 s52, s48, 12            ; kt*4 ks16
    s_add_u32 s54, s54, s52
    s_add_u32 s54, s54, %d
    s_branch K1_TR_GO""" % WGU)
    a.label("K1_TR_D")
    a("""s_mul_i32 s48, s43, 9363
    s_lshr_b32 s48, s48, 16            ; ft
    s_mul_i32 s49, s48, 7
    s_sub_u32 s49, s43, s49            ; db""")
    srd(a, 44, 28, 0x188000)
    a("""s_mov_b32 s50, 896
    s_mul_i32 s51, s48, 64*896
    s_lshl_b32 s52, s49, 7
    s_add_u32 s51, s51, s52
    s_mov_b32 s53, 112*1024
    s_mul_i32 s54, s49, 2*112*1024
    s_lshl_b32 s52, s48, 12
    s_add_u32 s54, s54, s52
    s_add_u32 s54, s54, %d""" % WDT)
    a.label("K1_TR_GO")
    a("""v_lshrrev_b32 v2, 3, v1
    v_and_b32 v3, 7, v1
    v_mul_lo_u32 v4, v2, s50
    v_lshl_add_u32 v4, v3, 4, v4
    s_mul_i32 s55, s40, 64*144
    v_mul_u32_u24 v5, 144, v2
    v_lshl_add_u32 v5, v3, 4, v5
    v_add_u32 v5, s55, v5
    s_lshl_b32 s56, s50, 3""")
    for j in range(8):
        a(f"buffer_load_dwordx4 {vr(8+4*j,4)}, v4, s[44:47], s51 offen")
        if j<7: a("s_add_u32 s51, s51, s56")
    for j in range(8):
        a(f"s_waitcnt vmcnt({7-j})")
        a(f"ds_write_b128 v5, {vr(8+4*j,4)} offset:{8*144*j}")
    a("""v_and_b32 v2, 15, v1
    v_lshrrev_b32 v3, 4, v1
    v_lshrrev_b32 v6, 2, v2
    v_lshl_add_u32 v6, v3, 3, v6
    v_mul_u32_u24 v6, 144, v6
    v_and_b32 v7, 3, v2
    v_lshl_add_u32 v6, v7, 3, v6
    v_add_u32 v6, s55, v6
    v_lshrrev_b32 v7, 1, v3
    v_lshlrev_b32 v7, 10, v7               ; (g>>1) ks16
    v_and_b32 v8, 1, v3
    v_lshl_add_u32 v7, v8, 9, v7           ; 32*(g&1)*16
    v_lshl_add_u32 v7, v2, 4, v7           ; + c*16
    s_waitcnt lgkmcnt(0)""")
    for nt in range(4):
        for half in range(2):
            b=40+8*nt+4*half
            for p in range(2):
                a(f"ds_read_b64_tr_b16 {vr(b+2*p,2)}, v6 offset:{(32*half+4*p)*144+32*nt}")
    a("s_waitcnt lgkmcnt(0)")
    for nt in range(4):
        for half in range(2):
            b=40+8*nt+4*half
            a(f"buffer_store_dwordx4 {vr(b,4)}, v7, s[36:39], s54 offen offset:{2048*half+256*(nt&1)}" + (" sc1" if k2 else ""))
        if nt==1: a("s_add_u32 s54, s54, s53")
    if not k2: a("s_endpgm")

def k1_cs(a, k2=False):
    if not k2:
        a.label("K1_CS")
        a("s_sub_u32 s41, s2, %d" % (N_AB+N_LN+N_TR))
    a("""s_cmp_ge_u32 s41, 28
    s_cselect_b32 s50, 1, 0           ; khalf
    s_cselect_b32 s51, 28, 0
    s_sub_u32 s41, s41, s51
    s_cmp_ge_u32 s41, 14
    s_cselect_b32 s42, 1, 0
    s_cselect_b32 s43, 14, 0
    s_cselect_b32 s44, s26, s24
    s_cselect_b32 s45, s27, s25
    s_sub_u32 s43, s41, s43           ; fb128
    s_and_b32 s45, s45, 0xffff
    s_mov_b32 s46, 0x188000
    s_mov_b32 s47, 0x00020000
    v_lshlrev_b32 v2, 2, v1
    s_lshl_b32 s48, s50, 2
    s_add_u32 s48, s48, s40
    s_mul_i32 s48, s48, 56*3584
    s_lshl_b32 s49, s43, 8
    s_add_u32 s48, s48, s49
    v_mov_b32 v4, 0
    v_mov_b32 v5, 0""")
    for j in range(56):
        a(f"buffer_load_dword v{8+j}, v2, s[44:47], s48 offen")
        a("s_add_u32 s48, s48, 3584")
    for j in range(56):
        a(f"s_waitcnt vmcnt({55-j})")
        a(f"v_lshlrev_b32 v6, 16, v{8+j}")
        a(f"v_and_b32 v7, 0xffff0000, v{8+j}")
        a("v_add_f32 v4, v4, v6")
        a("v_add_f32 v5, v5, v7")
    a("""v_lshlrev_b32 v6, 3, v0
    ds_write_b64 v6, v[4:5]
    s_waitcnt lgkmcnt(0)
    s_barrier
    s_cmp_eq_u32 s40, 0
    s_cbranch_scc0 K1_CS_END
    ds_read_b64 v[8:9], v6 offset:512
    ds_read_b64 v[10:11], v6 offset:1024
    ds_read_b64 v[12:13], v6 offset:1536
    s_waitcnt lgkmcnt(0)
    v_add_f32 v4, v4, v8
    v_add_f32 v5, v5, v9
    v_add_f32 v4, v4, v10
    v_add_f32 v5, v5, v11
    v_add_f32 v4, v4, v12
    v_add_f32 v5, v5, v13""")
    a("""v_lshlrev_b32 v6, 1, v1          ; 2*lane (0..126)
    v_lshrrev_b32 v7, 6, v6               ; 0/1
    v_and_b32 v6, 63, v6
    v_lshl_add_u32 v6, v7, 7, v6          ; (f>>6 &1)*128 + (f&63)
    s_lshl_b32 s49, s43, 8                ; fb128*2*128
    s_lshl_b32 s51, s42, 6
    s_add_u32 s49, s49, s51
    v_add_u32 v6, s49, v6
    v_lshlrev_b32 v6, 2, v6
    s_mul_i32 s49, s50, 16384
    s_add_u32 s49, s49, %d
    buffer_store_dwordx2 v[4:5], v6, s[36:39], s49 offen sc1""" % CS)
    a.label("K1_CS_END")
    if not k2: a("s_endpgm")

def k1_init(a):
    a.label("K1_INIT")
    a("s_sub_u32 s41, s2, %d" % (N_AB+N_LN+N_TR+N_CS))
    a("""v_mov_b32 v4, -1
    v_mov_b32 v5, -1
    v_mov_b32 v6, -1
    v_mov_b32 v7, -1
    v_lshlrev_b32 v2, 4, v0
    s_mul_i32 s42, s41, 28672
    s_add_u32 s42, s42, %d""" % (MEMX+7168))
    for j in range(7): a(f"buffer_store_dwordx4 v[4:7], v2, s[36:39], s42 offen"); a("s_add_u32 s42, s42, 4096")
    a("s_mul_i32 s42, s41, 40960")
    a("s_add_u32 s42, s42, %d" % PX)
    for j in range(10): a(f"buffer_store_dwordx4 v[4:7], v2, s[36:39], s42 offen"); a("s_add_u32 s42, s42, 4096")
    a("""v_mov_b32 v8, 0
    v_mov_b32 v9, 0
    v_mov_b32 v10, 0
    v_mov_b32 v11, 0
    s_lshl_b32 s42, s41, 12
    s_add_u32 s42, s42, %d
    v_add_u32 v12, s42, v2
    v_cmp_eq_u32 vcc, %d, v12
    s_nop 1
    v_cndmask_b32 v8, 0, 1, vcc
    buffer_store_dwordx4 v[8:11], v2, s[36:39], s42 offen
    s_endpgm""" % (FLAGS, FLAGS+128*400))

def k1():
    a=Asm()
    a(f"s_cmp_ge_u32 s2, {K1_GRID}")
    a("s_cbranch_scc1 K1_EXIT")
    prologue(a)
    a(f"s_cmp_lt_u32 s2, {N_AB}"); a("s_cbranch_scc1 K1_AB")
    a(f"s_cmp_lt_u32 s2, {N_AB+N_LN}"); a("s_cbranch_scc1 K1_LN")
    a("s_branch K1_INIT")
    a.label("K1_EXIT"); a("s_endpgm")
    import os
    only=os.environ.get("K1ONLY","")
    for nm,fn in (("AB",k1_ab),("LN",k1_ln),("INIT",k1_init)):
        if (only and nm not in only.split(",")):
            a.label("K1_"+nm); a("s_endpgm")
        else: fn(a)
    return a.text()

def build(kernels):
    hdr = open("cdna_kernels/%s.s.ref"%NAME).read().split("\n")
    top=[]
    for line in hdr:
        if line.startswith("; @launch") or line.startswith("; Override") or line.startswith("; grid="): continue
        if not line.startswith(";"): break
        top.append(line)
    out="\n".join(top)+"\n"
    for (name,text,grid,block,lds,vg,ac) in kernels:
        out+=f"; @launch kernel={name} grid=({grid},1,1) block=({block},1,1) lds={lds}\n"
    out+='.amdgcn_target "amdgcn-amd-amdhsa--gfx950"\n.text\n'
    seen=set()
    for (name,text,grid,block,lds,vg,ac) in kernels:
        if name in seen: continue
        seen.add(name)
        out+=kernel_header(name)+text
    out+='.section .rodata,"a"\n'
    seen=set()
    for (name,text,grid,block,lds,vg,ac) in kernels:
        if name in seen: continue
        seen.add(name)
        out+=".p2align 6\n"+kernel_desc(name,vg,ac)
    return out

if __name__=="__main__":
    ks=[("k1_kernel",k1(),K1_GRID,256,K1_LDS,256,256)]
    try:
        import gen2
        ks+=gen2.kernels()
    except ImportError:
        pass
    open("cdna_kernels/%s.s"%NAME,"w").write(build(ks))
```

```python
from gen import *
import os
NSTEPS=int(os.environ.get("NSTEPS","63"))

def spin_guard(a):
    a("s_sub_u32 s99, s99, 1")
    a("s_cbranch_scc1 K2_ABORT")

def poll_mem(a, tag, soff, va, vb, d0, d1, tmp):
    a.label(tag)
    spin_guard(a)
    a(f"buffer_load_dwordx4 {vr(d0,4)}, v{va}, s[36:39], {soff} offen sc1")
    a(f"buffer_load_dwordx4 {vr(d1,4)}, v{vb}, s[36:39], {soff} offen sc1")
    a("s_waitcnt vmcnt(0)")
    a(f"v_max3_u32 v{tmp}, v{d0}, v{d0+1}, v{d0+2}")
    a(f"v_max3_u32 v{tmp}, v{tmp}, v{d0+3}, v{d1}")
    a(f"v_max3_u32 v{tmp}, v{tmp}, v{d1+1}, v{d1+2}")
    a(f"v_max_u32 v{tmp}, v{tmp}, v{d1+3}")
    a(f"v_cmp_eq_u32 vcc, -1, v{tmp}")
    a(f"s_cbranch_vccnz {tag}")

PROF=int(os.environ.get("PROF","0"))
STAMPS=0x1720000
def stamp(a,k):
    if PROF not in (1,2): return
    a(f"""s_memtime s[70:71]
    s_waitcnt lgkmcnt(0)
    s_sub_u32 s72, s70, s73
    s_add_u32 s{80+k}, s{80+k}, s72
    s_mov_b32 s73, s70""")
TSB=0x1740000
def rt(a, ev):
    if PROF!=3: return
    rt.n+=1
    a(f"""s_cmp_eq_u32 s40, 0
    s_cbranch_scc0 RT_{rt.n}
    s_memrealtime s[70:71]
    s_waitcnt lgkmcnt(0)
    s_lshl_b32 s72, s59, 4
    s_add_u32 s72, s72, s77
    s_mov_b64 s[74:75], exec
    s_mov_b64 exec, 1
    v_mov_b32 v11, s70
    v_mov_b32 v10, 0
    buffer_store_dword v11, v10, s[36:39], s72 offen offset:{4*ev}
    s_mov_b64 exec, s[74:75]""")
    a.label(f"RT_{rt.n}")
rt.n=0
def rt_init(a, base):
    if PROF!=3: return
    a(f"""s_add_u32 s77, s42, {base}
    s_lshl_b32 s77, s77, 10
    s_add_u32 s77, s77, {TSB}
    s_mov_b64 exec, 1
    v_mov_b32 v11, s78
    v_mov_b32 v10, 0
    buffer_store_dword v11, v10, s[36:39], s77 offen offset:12
    v_mov_b32 v11, s80
    buffer_store_dword v11, v10, s[36:39], s77 offen offset:28
    s_mov_b64 exec, -1""")
def stamp_init(a):
    if PROF not in (1,2): return
    for k in range(16): a(f"s_mov_b32 s{80+k}, 0")
    a("s_memtime s[70:71]"); a("s_waitcnt lgkmcnt(0)"); a("s_mov_b32 s73, s70")
def stamp_dump(a, base_add):
    if PROF not in (1,2): return
    a(f"""s_add_u32 s74, s42, {base_add}
    s_lshl_b32 s74, s74, 2
    s_add_u32 s74, s74, s40
    s_lshl_b32 s74, s74, 6
    s_add_u32 s74, s74, {STAMPS}
    s_mov_b64 exec, 1
    v_mov_b32 v2, 0""")
    for k in range(16):
        a(f"v_mov_b32 v3, s{80+k}")
        a(f"buffer_store_dword v3, v2, s[36:39], s74 offen offset:{4*k}")
    a("s_mov_b64 exec, -1")

AOP=16; IDX=44; ACC=48
def wfrag(i):
    return ar(8*i,8) if i<32 else vr(176+8*(i-32),8)
def wfrag_half(i,h):
    return ar(8*i+4*h,4) if i<32 else vr(176+8*(i-32)+4*h,4)

class LdsQ:
    def __init__(self,a): self.a=a; self.n=0; self.done=0
    def issue(self, s): self.a(s); self.n+=1; return self.n
    def wait(self, op):
        if op<=self.done: return
        k=self.n-op
        self.a(f"s_waitcnt lgkmcnt({min(k,15)})") if k<=15 else None
        assert k<=15
        self.done=op
    def wait_all(self):
        self.a("s_waitcnt lgkmcnt(0)"); self.done=self.n

def chain_common_setup(a):
    a("""v_and_b32 v2, 15, v1
    v_lshrrev_b32 v3, 4, v1
    v_lshlrev_b32 v4, 4, v1                 ; lane*16
    v_lshlrev_b32 v5, 4, v0                 ; chunk t
    v_add_u32 v6, 4096, v5
    v_cmp_gt_u32 vcc, 192, v0
    s_nop 1
    v_cndmask_b32 v6, v5, v6, vcc           ; chunk t+256 (or t)
    v_mov_b32 v%d, 0x4444
    v_mov_b32 v9, 0xeeee
    v_cmp_gt_u32 vcc, 8, v2
    s_nop 1
    v_cndmask_b32 v%d, v9, v%d, vcc""" % (IDX,IDX,IDX))

def poll_mem2(a, tag, soff, A, B, tmp, lds_base, addrs=(5,6), C=None, slp=0):
    n=len(addrs)
    sets=[A,B]+([C] if C is not None else [])
    K=len(sets)
    def issue(R):
        for k,v in enumerate(addrs): a(f"buffer_load_dwordx4 {vr(R+4*k,4)}, v{v}, s[36:39], {soff} offen sc1")
    def check(R):
        regs=[R+i for i in range(4*n)]
        a(f"v_max3_u32 v{tmp}, v{regs[0]}, v{regs[1]}, v{regs[2]}")
        i=3
        while i+1<len(regs): a(f"v_max3_u32 v{tmp}, v{tmp}, v{regs[i]}, v{regs[i+1]}"); i+=2
        if i<len(regs): a(f"v_max_u32 v{tmp}, v{tmp}, v{regs[i]}")
        a(f"v_cmp_eq_u32 vcc, -1, v{tmp}")
    np_=int(os.environ.get("PNOP","2" if K==2 else "1"))
    for i,R in enumerate(sets):
        issue(R)
        if i<K-1:
            for _ in range(np_): a("s_nop 15")
    a.label(tag)
    spin_guard(a)
    if PROF in (1,2): a("s_add_u32 s89, s89, 63")
    for i,R in enumerate(sets):
        a(f"s_waitcnt vmcnt({n*(K-1)})")
        check(R)
        a(f"s_cbranch_vccz {tag}_D{i}")
        if slp: a(f"s_sleep {slp}")
        issue(R)
    a(f"s_branch {tag}")
    for i,R in enumerate(sets):
        a.label(f"{tag}_D{i}")
        for k,v in enumerate(addrs): a(f"ds_write_b128 v{v}, {vr(R+4*k,4)} offset:{lds_base}")
        if i<K-1: a(f"s_branch {tag}_J")
    a.label(f"{tag}_J")
    a("s_waitcnt lgkmcnt(0)")
    a("s_barrier")

def load_wtile(a, soff_sreg, vlane, frags, ldsinfo=None):
    for b in range(7):
        a(f"s_add_u32 s60, {soff_sreg}, {4096*b}")
        if frags is not None:
            a(f"buffer_load_dwordx4 {wfrag_half(frags[b],0)}, v{vlane}, s[36:39], s60 offen")
            a(f"buffer_load_dwordx4 {wfrag_half(frags[b],1)}, v{vlane}, s[36:39], s60 offen offset:2048")
        else:
            va, boff, tmp = ldsinfo
            a(f"buffer_load_dwordx4 {vr(tmp+8*b,4)}, v{vlane}, s[36:39], s60 offen")
            a(f"buffer_load_dwordx4 {vr(tmp+8*b+4,4)}, v{vlane}, s[36:39], s60 offen offset:2048")
    if frags is None:
        va, boff, tmp = ldsinfo
        a("s_waitcnt vmcnt(0)")
        for b in range(7):
            a(f"ds_write_b128 v{va}, {vr(tmp+8*b,4)} offset:{boff+2048*b}")
            a(f"ds_write_b128 v{va}, {vr(tmp+8*b+4,4)} offset:{boff+2048*b+1024}")
        a("s_waitcnt lgkmcnt(0)")

TT_RS=32
S_MEM=0; S_TT=7168; S_RED=S_TT+4*3584; RED_RS=272; RED_W=16*RED_RS; S_WL=S_RED+4*RED_W+64; S_KST=S_WL+4*14336
KX=76; KM=108; TOP=124; SACC=132; WLT=144
def score(a):
    a.label("K2_SCORE")
    if PROF==3: a("s_memrealtime s[80:81]"); a("s_waitcnt lgkmcnt(0)")
    chain_common_setup(a)
    a("""s_mul_i32 s48, s40, 112
    s_and_b32 s49, s40, 1
    s_lshl_b32 s50, s49, 4
    s_add_u32 s50, s48, s50              ; qa
    s_cmp_eq_u32 s49, 0
    s_cselect_b32 s51, 96, 0
    s_add_u32 s51, s48, s51              ; qs
    s_mul_i32 s52, s42, 14*28*1024
    s_add_u32 s52, s52, %d               ; head base""" % WTA)
    a("""v_lshrrev_b32 v9, 1, v3
    v_lshlrev_b32 v9, 10, v9
    v_and_b32 v10, 1, v3
    v_lshl_add_u32 v9, v10, 9, v9
    v_lshl_add_u32 v9, v2, 4, v9
    s_mul_i32 s53, s40, 14336
    s_add_u32 s53, s53, %d
    v_add_u32 v12, s53, v4               ; WL lds addr""" % S_WL)
    for u in range(7):
        if u<6: a(f"s_add_u32 s54, s50, {16*u}")
        else: a("s_mov_b32 s54, s51")
        a("""s_lshr_b32 s55, s54, 5
        s_mul_i32 s55, s55, 28*1024
        s_and_b32 s56, s54, 31
        s_lshl_b32 s56, s56, 4
        s_add_u32 s55, s55, s56
        s_add_u32 s55, s55, s52""")
        if u<6: load_wtile(a, "s55", 9, [7*u+b for b in range(7)])
        else: load_wtile(a, "s55", 9, None, (12, 0, 48))
    a("""s_mul_i32 s53, s40, 3584
    s_add_u32 s53, s53, %d
    v_bfe_u32 v10, v2, 1, 2
    v_xor_b32 v10, v10, v3
    v_lshlrev_b32 v13, 5, v2
    v_lshl_add_u32 v13, v10, 3, v13
    v_add_u32 v13, s53, v13               ; TT write addr""" % S_TT)
    a("""v_lshrrev_b32 v10, 2, v2              ; r
    v_and_b32 v11, 3, v2                  ; cc
    v_lshl_add_u32 v14, v3, 3, v10        ; 8g + r
    v_lshlrev_b32 v14, 5, v14
    v_add_u32 v14, s53, v14
    v_lshrrev_b32 v15, 1, v10             ; r>>1
    v_xor_b32 v15, v15, v11               ; cc ^ (r>>1)          (p=0)
    v_xor_b32 v11, 2, v15                 ; cc ^ (2 + (r>>1))    (p=1)
    v_lshl_add_u32 v15, v15, 3, v14       ; addr p=0
    v_lshl_add_u32 v14, v11, 3, v14
    v_add_u32 v14, 128, v14""")
    a("""s_lshl_b32 s53, s49, 9
    v_subrev_u32 v160, s53, v15
    v_subrev_u32 v161, s53, v14
    v_lshrrev_b32 v10, 1, v3
    v_cmp_eq_u32 s[64:65], s49, v10
    s_nop 1
    v_cndmask_b32 v160, v15, v160, s[64:65]
    v_cndmask_b32 v161, v14, v161, s[64:65]
    v_cndmask_b32 v45, 0, -1, s[64:65]    ; and-mask""")
    a("""v_and_b32 v10, 7, v2
    v_lshl_add_u32 v10, v3, 4, v10
    v_lshlrev_b32 v10, 4, v10""")
    for m in range(4):
        if m<3: a(f"s_lshr_b32 s53, s50, 5\ns_add_u32 s53, s53, {m}")
        else: a("s_lshr_b32 s53, s51, 5")
        a(f"""s_lshr_b32 s54, s53, 1
        s_lshl_b32 s54, s54, 10
        s_and_b32 s55, s53, 1
        s_lshl_b32 s55, s55, 7
        s_add_u32 s54, s54, s55
        v_add_u32 v{162+m}, s54, v10""")
    a("""s_lshr_b32 s53, s50, 5
    s_lshl_b32 s53, s53, 10
    v_add_u32 v166, s53, v4
    s_lshr_b32 s53, s51, 5
    s_lshl_b32 s53, s53, 10
    v_add_u32 v167, s53, v4""")
    a("""s_mul_i32 s53, s40, %d
    s_add_u32 s53, s53, %d
    v_mul_u32_u24 v168, %d, v2
    v_lshl_add_u32 v168, v3, 4, v168
    v_add_u32 v168, s53, v168""" % (RED_W,S_RED,RED_RS))
    a("""v_add_u32 v10, 2, v2
    v_cmp_gt_u32 vcc, 2, v2
    s_nop 1
    v_cndmask_b32 v10, v10, v2, vcc
    v_min_u32 v10, 11, v10
    v_and_b32 v11, 1, v3
    s_lshl_b32 s53, s40, 1
    v_add_u32 v11, s53, v11               ; i
    v_mul_u32_u24 v169, %d, v11
    v_lshl_add_u32 v169, v10, 4, v169
    v_add_u32 v169, %d, v169              ; RED read addr
    v_subrev_u32 v10, 2, v2               ; q-2
    v_lshrrev_b32 v170, 1, v10
    v_lshlrev_b32 v170, 7, v170
    v_lshl_add_u32 v170, v11, 4, v170
    v_and_b32 v10, 1, v10
    v_lshl_add_u32 v170, v10, 3, v170     ; x part offset
    v_lshlrev_b32 v10, 6, v2
    v_lshl_add_u32 v10, v11, 3, v10
    v_add_u32 v10, 512, v10               ; mem part offset
    v_cmp_gt_u32 vcc, 2, v2
    s_nop 1
    v_cndmask_b32 v170, v170, v10, vcc
    s_mul_i32 s53, s42, 640
    v_add_u32 v170, s53, v170             ; P store voffset
    v_cmp_gt_u32 s[62:63], 10, v2
    v_cmp_gt_u32 vcc, 32, v1
    s_and_b64 s[62:63], s[62:63], vcc
    v_mov_b32 v46, 0xff7fffff
    s_mov_b32 s68, 0x3fb8aa3b""" % (RED_RS,S_RED))
    a(f"""s_lshl_b32 s76, s40, 13
    s_add_u32 s76, s76, {S_KST}
    v_add_u32 v171, s76, v4""")
    def dma_kx_list():
        out=[]
        for kt in range(2):
            for m in range(4):
                def f(kt=kt,m=m):
                    a(f"s_add_u32 m0, s76, {4096*kt+1024*m - (1024*m if m<3 else 0)}")
                    a(f"s_add_u32 s61, s56, {14*1024*kt}")
                    if m<3: a(f"buffer_load_dwordx4 v166, s[36:39], s61 offen offset:{1024*m} lds")
                    else: a(f"buffer_load_dwordx4 v167, s[36:39], s61 offen lds")
                out.append(f)
        return out
    def rd_kx():
        for kt in range(2):
            for m in range(4):
                a(f"ds_read_b128 {vr(KX+16*kt+4*m,4)}, v171 offset:{4096*kt+1024*m}")
    a(f"s_mov_b32 s56, {XNP}")
    a(f"s_mov_b32 s57, {MEMX}")
    a(f"s_mov_b32 s58, {PX}")
    a("s_mov_b32 s59, 0")
    for f in dma_kx_list(): f()
    a("s_waitcnt vmcnt(0)")
    rd_kx()
    a("s_waitcnt lgkmcnt(0)")
    a(f"s_add_u32 s56, s56, {2*14*1024}")
    for f in dma_kx_list(): f()
    a("s_barrier")
    stamp_init(a); rt_init(a,0)
    a.label("SC_LOOP")
    L=LdsQ(a)
    wl={}
    def rd_wl(k):
        buf=WLT+8*(k&1)
        L.issue(f"ds_read_b128 {vr(buf,4)}, v12 offset:{2048*k}")
        wl[k]=L.issue(f"ds_read_b128 {vr(buf+4,4)}, v12 offset:{2048*k+1024}")
    rd_wl(0); rd_wl(1)
    for r in range(28): a(f"v_mov_b32 v{ACC+r}, 0")
    poll_mem2(a, "SC_POLL", "s57", KM, KM+8, 47, S_MEM, C=(TOP if os.environ.get("K3") else None))
    L.done=L.n
    stamp(a,0); rt(a,0)
    aop={}
    for b in range(7): aop[b]=L.issue(f"ds_read_b128 {vr(AOP+4*b,4)}, v4 offset:{S_MEM+1024*b}")
    order=[(u,b) for b in range(2) for u in range(6)]+[(u,b) for u in range(6) for b in range(2,7)]
    seq=[]; k=0; nr=0
    for (u,b) in order:
        seq.append(("r",u,b)); nr+=1
        if nr%4==0 and k<7: seq.append(("l",6,k)); k+=1
    assert k==7 and len(seq)==49
    last={}
    for n,(t,u,b) in enumerate(seq): last[u]=n
    acts={}
    def at(n,f): acts.setdefault(n,[]).append(f)
    trd={}; kmr=[None]; first=[True]
    def km_read():
        a("s_waitcnt vmcnt(0)")
        for m in range(4): kmr[0]=L.issue(f"ds_read_b128 {vr(KM+4*m,4)}, v{162+m} offset:{S_MEM}")
    def cvt_write(u):
        def f():
            a(f"v_cvt_pk_bf16_f32 v{ACC+4*u}, v{ACC+4*u}, v{ACC+4*u+1}")
            a(f"v_cvt_pk_bf16_f32 v{ACC+4*u+1}, v{ACC+4*u+2}, v{ACC+4*u+3}")
            L.issue(f"ds_write_b64 v13, {vr(ACC+4*u,2)} offset:{512*u}")
        return f
    def tr_read(m):
        def f():
            t=TOP+4*(m&1) if m<3 else 172
            if m<3:
                L.issue(f"ds_read_b64_tr_b16 {vr(t,2)}, v15 offset:{1024*m}")
                trd[m]=L.issue(f"ds_read_b64_tr_b16 {vr(t+2,2)}, v14 offset:{1024*m}")
            else:
                L.issue(f"ds_read_b64_tr_b16 {vr(t,2)}, v160 offset:3072")
                trd[m]=L.issue(f"ds_read_b64_tr_b16 {vr(t+2,2)}, v161 offset:3072")
        return f
    def s_mask(m):
        def f():
            t=172
            L.wait(trd[m])
            for r in range(4): a(f"v_and_b32 v{t+r}, v45, v{t+r}")
        return f
    def s_mfma(m):
        def f():
            t=TOP+4*(m&1) if m<3 else 172
            L.wait(kmr[0]); L.wait(trd[m])
            for kt in range(3):
                A = vr(KM+4*m,4) if kt==0 else vr(KX+16*(kt-1)+4*m,4)
                c = "0" if first[0] else vr(SACC+4*kt,4)
                a(f"v_mfma_f32_16x16x32_bf16 {vr(SACC+4*kt,4)}, {A}, {vr(t,4)}, {c}")
            first[0]=False
        return f
    at(10, km_read)
    for u in range(7):
        if u!=5: at(last[u]+3, cvt_write(u))
    at(last[1]+4, tr_read(0)); at(last[1]+9, s_mfma(0))
    at(last[3]+4, tr_read(1)); at(last[3]+9, s_mfma(1))
    p6=last[6]+4
    at(p6, tr_read(3)); at(p6+6, s_mask(3)); at(p6+8, s_mfma(3))
    assert p6+8 < len(seq), (p6,len(seq))
    for n,(t,u,b) in enumerate(seq):
        if t=="r":
            L.wait(aop[b])
            a(f"v_smfmac_f32_16x16x64_bf16 {vr(ACC+4*u,4)}, {vr(AOP+4*b,4)}, {wfrag(7*u+b)}, v{IDX}")
        else:
            L.wait(wl[b])
            a(f"v_smfmac_f32_16x16x64_bf16 {vr(ACC+24,4)}, {vr(AOP+4*b,4)}, {vr(WLT+8*(b&1),8)}, v{IDX}")
            if b+2<7: rd_wl(b+2)
        for f in acts.get(n,[]): f()
    assert max(acts)<len(seq)
    stamp(a,2)
    a(f"s_add_u32 s56, s56, {2*14*1024}")
    a("s_nop 6")
    cvt_write(5)(); tr_read(2)(); s_mfma(2)()
    a("s_nop 7")
    for kt in range(3): a(f"ds_write_b128 v168, {vr(SACC+4*kt,4)} offset:{64*kt}")
    a("s_waitcnt lgkmcnt(0)")
    stamp(a,4)
    a("s_barrier")
    stamp(a,5)
    T=ACC
    q=lambda k: (T+4*k if k<7 else TOP)
    for w in range(4):
        for hf in range(2):
            a(f"ds_read_b128 {vr(q(2*w+hf),4)}, v169 offset:{RED_W*w+8*RED_RS*hf}")
    def pka(d,x,y):
        for h in (0,2): a(f"v_pk_add_f32 {vr(d+h,2)}, {vr(x+h,2)}, {vr(y+h,2)}")
    a("s_waitcnt lgkmcnt(4)")
    pka(q(0),q(0),q(1)); pka(q(2),q(2),q(3)); pka(q(0),q(0),q(2))
    a("s_waitcnt lgkmcnt(0)")
    pka(q(4),q(4),q(5)); pka(q(6),q(6),q(7)); pka(q(4),q(4),q(6)); pka(q(0),q(0),q(4))
    a(f"v_max3_f32 v{T+4}, v{T}, v{T+1}, v{T+2}")
    a(f"v_max_f32 v{T+4}, v{T+4}, v{T+3}")
    a(f"v_cndmask_b32 v{T+4}, v46, v{T+4}, s[62:63]")
    for rr in (1,2,4,8):
        a("s_nop 1"); a(f"v_max_f32_dpp v{T+4}, v{T+4}, v{T+4} row_ror:{rr} row_mask:0xf bank_mask:0xf")
    a(f"v_mul_f32 v{T+4}, s68, v{T+4}")
    for r in range(4): a(f"v_fma_f32 v{T+r}, v{T+r}, s68, -v{T+4}")
    for r in range(4): a(f"v_exp_f32 v{T+r}, v{T+r}")
    a("s_nop 0")
    a(f"v_add_f32 v{T+5}, v{T}, v{T+1}")
    a(f"v_add_f32 v{T+6}, v{T+2}, v{T+3}")
    a(f"v_add_f32 v{T+5}, v{T+5}, v{T+6}")
    a(f"v_cndmask_b32 v{T+5}, 0, v{T+5}, s[62:63]")
    for rr in (1,2,4,8):
        a("s_nop 1"); a(f"v_add_f32_dpp v{T+5}, v{T+5}, v{T+5} row_ror:{rr} row_mask:0xf bank_mask:0xf")
    a(f"v_rcp_f32 v{T+5}, v{T+5}")
    a("s_nop 0")
    for r in range(4): a(f"v_mul_f32 v{T+r}, v{T+r}, v{T+5}")
    a(f"v_cvt_pk_bf16_f32 v{T+6}, v{T}, v{T+1}")
    a(f"v_cvt_pk_bf16_f32 v{T+7}, v{T+2}, v{T+3}")
    a(f"v_min_u32 v{T+6}, 0xfffffffe, v{T+6}")
    a(f"v_min_u32 v{T+7}, 0xfffffffe, v{T+7}")
    a("s_mov_b64 exec, s[62:63]")
    a(f"buffer_store_dwordx2 {vr(T+6,2)}, v170, s[36:39], s58 offen")
    a("s_mov_b64 exec, -1")
    stamp(a,6); rt(a,1)
    a("s_waitcnt vmcnt(1)")
    rd_kx()
    a("s_waitcnt lgkmcnt(0)")
    for f in dma_kx_list(): f()
    a("""s_add_u32 s57, s57, 7168
    s_add_u32 s58, s58, 10240
    s_add_u32 s59, s59, 1
    s_cmp_lt_u32 s59, %d
    s_cbranch_scc1 SC_LOOP""" % NSTEPS)
    stamp_dump(a,0)
    a("s_endpgm")

V_MEM=0; V_P=0; V_PART=10240; PART_RS=144; PART_W=8*PART_RS; V_WL=V_PART+4*PART_W+64; V_ZST=V_WL+4*28672
ZX=80; PXR=112; PMR=128; OACC=136; VWLT=144; VT=160; ZB=144
def value(a):
    a.label("K2_VALUE")
    if PROF==3: a("s_memrealtime s[80:81]"); a("s_waitcnt lgkmcnt(0)")
    chain_common_setup(a)
    a("""v_lshrrev_b32 v9, 1, v3
    v_lshlrev_b32 v9, 10, v9
    v_and_b32 v10, 1, v3
    v_lshl_add_u32 v9, v10, 9, v9
    v_lshl_add_u32 v9, v2, 4, v9
    s_mul_i32 s53, s40, 28672
    s_add_u32 s53, s53, %d
    v_add_u32 v12, s53, v4              ; WL lds addr""" % V_WL)
    for hh in range(4):
        for ct in range(2):
            a(f"""s_lshl_b32 s54, s40, 2
            s_add_u32 s54, s54, {hh}
            s_mul_i32 s54, s54, 14
            s_add_u32 s54, s54, s42
            s_mul_i32 s55, s54, 28*1024
            s_add_u32 s55, s55, {WTB+256*ct}""")
            t=2*hh+ct
            if t<6: load_wtile(a,"s55",9,[7*t+b for b in range(7)])
            else: load_wtile(a,"s55",9,None,(12,14336*(t-6),48))
    a("""v_and_b32 v10, 7, v2
    s_mul_i32 s53, s40, 2560
    v_lshlrev_b32 v13, 7, v3
    v_lshl_add_u32 v13, v10, 4, v13
    v_add_u32 v13, s53, v13              ; P x part: g*128 + i*16
    v_and_b32 v11, 1, v3
    v_lshlrev_b32 v14, 6, v11
    v_lshl_add_u32 v14, v10, 3, v14
    v_add_u32 v14, s53, v14
    v_add_u32 v14, 512, v14
    v_add_u32 v7, 8192, v5
    v_cmp_gt_u32 vcc, 128, v0
    s_nop 1
    v_cndmask_b32 v7, v5, v7, vcc
    v_add_u32 v8, 4096, v5               ; P chunk t+256""")
    a("""v_and_b32 v10, 7, v2
    v_mul_u32_u24 v%d, %d, v10
    v_lshl_add_u32 v%d, v3, 4, v%d
    s_mul_i32 s53, s40, %d
    s_add_u32 s53, s53, %d
    v_add_u32 v%d, s53, v%d
    v_cmp_gt_u32 s[64:65], 8, v2""" % (VT,PART_RS,VT,VT,PART_W,V_PART,VT,VT))
    a("""v_and_b32 v10, 1, v3
    s_lshl_b32 s53, s40, 1
    v_add_u32 v10, s53, v10              ; i
    v_mul_u32_u24 v%d, %d, v10
    v_lshl_add_u32 v%d, v2, 3, v%d
    v_add_u32 v%d, %d, v%d""" % (VT+1,PART_RS,VT+1,VT+1,VT+1,V_PART,VT+1))
    a("""v_and_b32 v11, 1, v2
    v_lshl_add_u32 v%d, v11, 3, v10
    v_lshrrev_b32 v11, 3, v2
    v_lshl_add_u32 v%d, v11, 4, v%d
    v_lshlrev_b32 v%d, 4, v%d
    v_bfe_u32 v11, v2, 1, 2
    v_lshl_add_u32 v%d, v11, 2, v%d
    s_lshr_b32 s53, s42, 1
    s_lshl_b32 s53, s53, 10
    s_and_b32 s54, s42, 1
    s_lshl_b32 s54, s54, 9
    s_add_u32 s53, s53, s54
    v_add_u32 v%d, s53, v%d
    v_cmp_gt_u32 s[62:63], 32, v1""" % ((VT+2,)*9))
    a("""v_lshlrev_b32 v%d, 4, v2
    v_and_b32 v11, 1, v3
    v_lshl_add_u32 v%d, v11, 3, v%d
    v_lshrrev_b32 v11, 1, v3
    v_lshl_add_u32 v%d, v11, 2, v%d""" % ((VT+3,)*5))
    a(f"""s_mul_i32 s66, s40, 28*1024
    s_lshl_b32 s53, s42, 11
    s_add_u32 s66, s66, s53
    s_add_u32 s66, s66, {MBL}
    s_lshl_b32 s53, s40, 2
    s_mul_i32 s56, s53, 28*1024
    s_lshl_b32 s53, s42, 11
    s_add_u32 s56, s56, s53
    s_add_u32 s56, s56, {VO}
    s_mov_b32 s57, {MEMX}
    s_mov_b32 s58, {PX}
    s_mov_b32 s59, 0
    s_mov_b32 s67, {FLAGS}
    v_mov_b32 v{VT+4}, 0""")
    a(f"""s_lshl_b32 s76, s40, 13
    s_add_u32 s76, s76, {V_ZST}
    v_add_u32 v{VT+6}, s76, v4
    s_mul_i32 s53, s40, {PART_W}
    s_add_u32 s53, s53, {V_PART}
    v_add_u32 v10, s53, v{VT+3}
    v_mov_b32 v15, v10
    v_add_u32 v11, s53, v4
    v_mov_b32 v9, v11""")
    def dma_zx_list():
        out=[]
        for hh in range(4):
            for ct in range(2):
                def f(hh=hh,ct=ct):
                    a(f"s_add_u32 m0, s76, {2048*hh}")
                    a(f"s_add_u32 s61, s56, {28*1024*hh}")
                    a(f"buffer_load_dwordx4 v4, s[36:39], s61 offen offset:{1024*ct} lds")
                out.append(f)
        return out
    def rd_zx():
        for hh in range(4):
            for ct in range(2):
                a(f"ds_read_b128 {vr(ZX+8*hh+4*ct,4)}, v{VT+6} offset:{2048*hh+1024*ct}")
    def wait_vo(tag):
        a.label(tag)
        spin_guard(a)
        a(f"buffer_load_dword v{VT+7}, v{VT+4}, s[36:39], s67 offen sc1")
        a("s_waitcnt vmcnt(0)")
        a(f"v_cmp_gt_u32 vcc, 224, v{VT+7}")
        a(f"s_cbranch_vccnz {tag}")
        a("s_add_u32 s67, s67, 128")
    wait_vo("VA_WVO0")
    for f in dma_zx_list(): f()
    a("s_waitcnt vmcnt(0)")
    rd_zx()
    a("s_waitcnt lgkmcnt(0)")
    a(f"s_add_u32 s56, s56, {16*28*1024}")
    a("s_barrier")
    stamp_init(a); rt_init(a,16)
    SEL=172
    a("""v_and_b32 v10, 7, v2                   ; key
    v_lshrrev_b32 v11, 3, v2               ; hd'
    v_lshrrev_b32 v16, 2, v10              ; key>>2
    v_and_b32 v17, 1, v3
    v_cmp_eq_u32 vcc, v16, v17             ; cond
    v_and_b32 v16, 3, v10
    v_lshl_add_u32 v16, v11, 2, v16
    v_and_b32 v17, 1, v16
    v_lshlrev_b32 v17, 4, v17
    v_mov_b32 v18, 0x3f80
    v_lshlrev_b32 v18, v17, v18
    v_cndmask_b32 v18, 0, v18, vcc
    v_lshrrev_b32 v16, 1, v16""")
    for r in range(4):
        a(f"v_cmp_eq_u32 vcc, {r}, v16")
        a("s_nop 1")
        a(f"v_cndmask_b32 v{SEL+r}, 0, v18, vcc")
    a(f"""v_lshrrev_b32 v10, 1, v3
    v_lshl_add_u32 v10, v10, 4, v2
    v_lshlrev_b32 v10, 4, v10
    v_and_b32 v11, 1, v3
    v_lshl_add_u32 v{VT+3}, v11, 3, v10""")
    a.label("VA_LOOP")
    L=LdsQ(a)
    wl={}
    def rd_wl(k):
        buf=VWLT+8*(k&1)
        off=14336*(k//7)+2048*(k%7)
        L.issue(f"ds_read_b128 {vr(buf,4)}, v12 offset:{off}")
        wl[k]=L.issue(f"ds_read_b128 {vr(buf+4,4)}, v12 offset:{off+1024}")
    rd_wl(0); rd_wl(1)
    for r in range(32): a(f"v_mov_b32 v{ACC+r}, 0")
    poll_mem2(a, "VA_POLL", "s57", PXR, PXR+8, VT+7, V_MEM, C=(PMR if os.environ.get("K3") else None), slp=int(os.environ.get("VSLEEP","0")))
    L.done=L.n
    stamp(a,0); rt(a,0)
    aop={}
    for b in range(7): aop[b]=L.issue(f"ds_read_b128 {vr(AOP+4*b,4)}, v4 offset:{V_MEM+1024*b}")
    a("""s_and_b32 s60, s59, 3
    s_cmp_eq_u32 s60, 3
    s_cbranch_scc0 VA_NOW
    s_cmp_ge_u32 s59, 60
    s_cbranch_scc1 VA_NOW""")
    wait_vo("VA_WVO")
    a.label("VA_NOW")
    dz=dma_zx_list()
    k=0; nr=0
    for t in range(6):
        for b in range(7):
            L.wait(aop[b])
            a(f"v_smfmac_f32_16x16x64_bf16 {vr(ACC+4*t,4)}, {vr(AOP+4*b,4)}, {wfrag(7*t+b)}, v{IDX}")
            nr+=1
            if nr%4==2 and dz: dz.pop(0)()
            if nr%3==0:
                L.wait(wl[k])
                a(f"v_smfmac_f32_16x16x64_bf16 {vr(ACC+4*(6+k//7),4)}, {vr(AOP+4*(k%7),4)}, {vr(VWLT+8*(k&1),8)}, v{IDX}")
                if k+2<14: rd_wl(k+2)
                k+=1
    assert k==14
    a("s_nop 7")
    stamp(a,3)
    for pp in range(2):
        for ct in range(2):
            x=ACC+4*(4*pp+ct); y=ACC+4*(4*pp+2+ct)
            a(f"v_cvt_pk_bf16_f32 v{x}, v{x}, v{x+1}")
            a(f"v_cvt_pk_bf16_f32 v{x+1}, v{x+2}, v{x+3}")
            a(f"v_cvt_pk_bf16_f32 v{x+2}, v{y}, v{y+1}")
            a(f"v_cvt_pk_bf16_f32 v{x+3}, v{y+2}, v{y+3}")
    a("s_nop 1")
    for pp in range(2):
        for ct in range(2):
            x=ACC+4*(4*pp+ct); y=ACC+4*(4*pp+2+ct)
            a(f"v_mfma_f32_16x16x32_bf16 {vr(y,4)}, {vr(SEL,4)}, {vr(x,4)}, 0")
    a("s_nop 4")
    for pp in range(2):
        for ct in range(2):
            y=ACC+4*(4*pp+2+ct)
            a(f"v_cvt_pk_bf16_f32 v{y}, v{y}, v{y+1}")
            a(f"v_cvt_pk_bf16_f32 v{y+1}, v{y+2}, v{y+3}")
    a(f"s_cmp_eq_u32 s59, {NSTEPS}")
    a("s_cbranch_scc1 VA_LASTX")
    for pp in range(2):
        for ct in range(2):
            y=ACC+4*(4*pp+2+ct)
            a(f"buffer_store_dwordx2 {vr(y,2)}, v{VT+3}, s[36:39], s66 offen offset:{1024*ct+512*pp}")
    a(f"s_add_u32 s66, s66, {4*28*1024}")
    stamp(a,4)
    if PROF==2:
        a("s_waitcnt vmcnt(4)")
        stamp(a,11)
        a("s_waitcnt vmcnt(0)")
        stamp(a,12)
    a("s_barrier")
    poll_mem2(a, "VA_POLLP", "s58", PXR, AOP, VT+7, V_P, addrs=(5,8,7), C=(AOP+12 if os.environ.get("K3") else None))
    a("s_waitcnt vmcnt(3)")
    for hh in range(4):
        a(f"ds_read_b128 {vr(ZB+4*hh,4)}, v13 offset:{V_P+640*hh}")
        a(f"ds_read_b64 {vr(PMR+2*hh,2)}, v14 offset:{V_P+640*hh}")
    fst=[True,True]
    for hh in range(4):
        a(f"s_waitcnt lgkmcnt({6-2*hh})")
        for ct in range(2):
            c="0" if fst[ct] else vr(OACC+4*ct,4); fst[ct]=False
            a(f"v_mfma_f32_16x16x32_bf16 {vr(OACC+4*ct,4)}, {vr(ZX+8*hh+4*ct,4)}, {vr(ZB+4*hh,4)}, {c}")
    for pp in range(2):
        for ct in range(2):
            a(f"v_mfma_f32_16x16x32_bf16 {vr(OACC+4*ct,4)}, {vr(ACC+4*(4*pp+ct),4)}, {vr(PMR+4*pp,4)}, {vr(OACC+4*ct,4)}")
    a.label("VA_PJ")
    stamp(a,5); rt(a,1)
    a(f"""s_add_u32 s57, s57, 7168
    s_add_u32 s56, s56, {16*28*1024}
    s_add_u32 s58, s58, 10240
    s_add_u32 s59, s59, 1
    s_mov_b64 exec, s[64:65]
    s_nop 2""")
    for ct in range(2): a(f"ds_write_b128 v{VT}, {vr(OACC+4*ct,4)} offset:{64*ct}")
    a("s_mov_b64 exec, -1")
    a("s_waitcnt lgkmcnt(0)")
    a("s_barrier")
    stamp(a,6)
    T=ZX
    for w in range(4): a(f"ds_read_b64 {vr(T+2*w,2)}, v{VT+1} offset:{PART_W*w}")
    a("s_waitcnt lgkmcnt(2)")
    a(f"v_pk_add_f32 {vr(T,2)}, {vr(T,2)}, {vr(T+2,2)}")
    a("s_waitcnt lgkmcnt(0)")
    a(f"v_pk_add_f32 {vr(T+4,2)}, {vr(T+4,2)}, {vr(T+6,2)}")
    a(f"v_pk_add_f32 {vr(T,2)}, {vr(T,2)}, {vr(T+4,2)}")
    a(f"v_cvt_pk_bf16_f32 v{VT+5}, v{T}, v{T+1}")
    a(f"v_min_u32 v{VT+5}, 0xfffffffe, v{VT+5}")
    a("s_mov_b64 exec, s[62:63]")
    a(f"buffer_store_dword v{VT+5}, v{VT+2}, s[36:39], s57 offen")
    a("s_mov_b64 exec, -1")
    s59fix=True
    stamp(a,7); rt(a,2)
    a("s_waitcnt vmcnt(1)")
    rd_zx()
    stamp(a,8)
    a("s_branch VA_LOOP")
    a.label("VA_LASTX")
    a(f"s_add_u32 s66, s66, {MB-MBL}")
    for pp in range(2):
        for ct in range(2):
            y=ACC+4*(4*pp+2+ct)
            a(f"buffer_store_dwordx2 {vr(y,2)}, v{VT+3}, s[36:39], s66 offen offset:{1024*ct+512*pp} sc1")
    a(f"""s_waitcnt vmcnt(0)
    s_barrier
    s_cmp_eq_u32 s40, 0
    s_cbranch_scc0 VA_END
    s_mov_b64 exec, 1
    v_mov_b32 v10, 0
    v_mov_b32 v11, 1
    s_mov_b32 s60, {FLAGS+128*(32+63)}
    buffer_atomic_add v11, v10, s[36:39], s60 offen
    s_mov_b64 exec, -1""")
    a.label("VA_END")
    stamp_dump(a,16)
    a("s_endpgm")

def helper(a):
    a.label("K2_HELPER")
    a("""v_lshlrev_b32 v5, 4, v0                 ; chunk t
    v_add_u32 v6, 4096, v5
    v_cmp_gt_u32 vcc, 192, v0
    s_nop 1
    v_cndmask_b32 v6, v5, v6, vcc
    v_lshlrev_b32 v4, 4, v1
    s_mul_i32 s48, s40, 28672               ; wave's 28 KB part
    s_mul_i32 s49, s42, %d
    s_add_u32 s48, s48, s49
    s_add_u32 s56, s48, %d                  ; src
    s_add_u32 s58, s48, %d                  ; dst
    s_mul_i32 s49, s42, 7168
    s_add_u32 s57, s49, %d                  ; MEMX[s+1]
    s_mov_b32 s59, s42
    s_lshl_b32 s49, s42, 7
    s_add_u32 s67, s49, %d                  ; CH flags
    v_mov_b32 v7, 0
    v_mov_b32 v8, 1""" % (4*28*1024, MBL, MB, MEMX+7168, FLAGS+128*32))
    rt_init(a,30)
    a.label("HE_LOOP")
    a.label("HE_POLL")
    spin_guard(a)
    a("""buffer_load_dwordx4 v[16:19], v5, s[36:39], s57 offen sc1
    buffer_load_dwordx4 v[20:23], v6, s[36:39], s57 offen sc1
    s_waitcnt vmcnt(0)
    v_max3_u32 v9, v16, v17, v18
    v_max3_u32 v9, v9, v19, v20
    v_max3_u32 v9, v9, v21, v22
    v_max_u32 v9, v9, v23
    v_cmp_eq_u32 vcc, -1, v9
    s_cbranch_vccz HE_POK
    s_sleep %s
    s_branch HE_POLL""" % os.environ.get("HSLEEP","6"))
    a.label("HE_POK")
    a("s_barrier")
    a(f"s_add_u32 s61, s57, {MEMN-MEMX}")
    a("buffer_store_dwordx4 v[16:19], v5, s[36:39], s61 offen sc1")
    a("buffer_store_dwordx4 v[20:23], v6, s[36:39], s61 offen sc1")
    for j in range(28):
        a(f"s_add_u32 s60, s56, {1024*(j&~3)}")
        a(f"buffer_load_dwordx4 {vr(32+4*j,4)}, v4, s[36:39], s60 offen offset:{1024*(j&3)} sc1")
    a("s_waitcnt vmcnt(28)")
    a("""s_barrier
    s_cmp_eq_u32 s40, 0
    s_cbranch_scc0 HE_NOM
    s_mov_b64 exec, 1
    s_add_u32 s60, s67, %d
    buffer_atomic_add v8, v7, s[36:39], s60 offen
    s_mov_b64 exec, -1""" % (128*(400+1-32)))
    a.label("HE_NOM")
    for j in range(28):
        a(f"s_waitcnt vmcnt(27)")
        a(f"s_add_u32 s60, s58, {1024*(j&~3)}")
        a(f"buffer_store_dwordx4 {vr(32+4*j,4)}, v4, s[36:39], s60 offen offset:{1024*(j&3)} sc1")
    a("""s_waitcnt vmcnt(0)
    s_barrier
    s_cmp_eq_u32 s40, 0
    s_cbranch_scc0 HE_NOF
    s_mov_b64 exec, 1
    buffer_atomic_add v8, v7, s[36:39], s67 offen
    s_mov_b64 exec, -1""")
    a.label("HE_NOF")
    rt(a,0)
    a(f"""s_add_u32 s56, s56, {2*4*28*1024}
    s_add_u32 s58, s58, {2*4*28*1024}
    s_add_u32 s57, s57, {2*7168}
    s_add_u32 s67, s67, 256
    s_add_u32 s59, s59, 2
    s_cmp_lt_u32 s59, 63
    s_cbranch_scc1 HE_LOOP
    s_endpgm""")

def k2():
    a=Asm()
    a("s_cmp_ge_u32 s2, 256"); a("s_cbranch_scc1 K2_EXIT")
    if PROF==3: a("s_memrealtime s[78:79]")
    prologue(a)
    srd(a,44,32,256)
    a("s_mov_b32 s99, 3000000")
    a("""s_getreg_b32 s41, hwreg(HW_REG_XCC_ID)
    s_and_b32 s41, s41, 7
    s_cmp_eq_u32 s40, 0
    s_cbranch_scc0 K2_WAITROLE
    s_mov_b64 exec, 1
    s_lshl_b32 s48, s41, 7
    s_add_u32 s48, s48, 24196864
    s_mov_b32 s49, 24198144
    v_mov_b32 v2, 0
    v_mov_b32 v3, 1
    buffer_atomic_add v3, v2, s[36:39], s48 offen sc0
    s_waitcnt vmcnt(0)
    v_cmp_eq_u32 vcc, 31, v3
    s_cbranch_vccz K2_POLLCH
    v_mov_b32 v4, s41
    v_add_u32 v4, 1, v4
    v_mov_b32 v5, 0
    buffer_atomic_cmpswap v[4:5], v2, s[36:39], s49 offen
    s_waitcnt vmcnt(0)""")
    a.label("K2_POLLCH")
    spin_guard(a)
    a("""buffer_load_dword v4, v2, s[36:39], s49 offen sc1
    s_waitcnt vmcnt(0)
    v_cmp_eq_u32 vcc, 0, v4
    s_cbranch_vccnz K2_POLLCH
    v_mov_b32 v2, 0
    v_mov_b32 v6, v3
    v_mov_b32 v7, v4
    ds_write_b64 v2, v[6:7]
    s_waitcnt lgkmcnt(0)
    s_mov_b64 exec, -1""")
    a.label("K2_WAITROLE")
    a("""s_barrier
    v_mov_b32 v2, 0
    ds_read_b64 v[4:5], v2
    s_waitcnt lgkmcnt(0)
    v_readfirstlane_b32 s42, v4
    v_readfirstlane_b32 s43, v5
    s_barrier
    s_sub_u32 s43, s43, 1
    s_cmp_eq_u32 s41, s43
    s_cbranch_scc0 K2_WORKER
    s_cmp_lt_u32 s42, 16
    s_cbranch_scc1 K2_SCORE
    s_cmp_lt_u32 s42, 30
    s_cbranch_scc0 K2_H0
    s_sub_u32 s42, s42, 16
    s_branch K2_VALUE""")
    a.label("K2_H0")
    a("""s_cmp_lt_u32 s42, 32
    s_cbranch_scc0 K2_WORKER
    s_sub_u32 s42, s42, 30
    s_branch K2_HELPER""")
    a.label("K2_EXIT"); a("s_endpgm")
    a.label("K2_ABORT")
    srd(a,44,32,256)
    a("""s_mov_b64 exec, 1
    v_mov_b32 v2, 60
    v_mov_b32 v3, 1
    buffer_atomic_add v3, v2, s[44:47], 0 offen
    s_endpgm""")
    if os.environ.get("NOCHAIN"):
        for nm in ("K2_SCORE","K2_VALUE","K2_HELPER"): a.label(nm); a("s_endpgm")
    else:
        score(a); value(a); helper(a)
    a.label("K2_WORKER")
    try:
        import gen3
        gen3.worker(a)
    except ImportError:
        a("s_endpgm")
    return a.text()

def kernels():
    ks=[("k2_kernel",k2(),256,256,V_ZST+32768,512,256)]
    try:
        import gen3
        ks+=gen3.kernels()
    except ImportError: pass
    return ks
```

```python
from gen import *
import os

def gemm_wave(a, MI, NI, KS, sA, strideA, sB, strideB, vlane, bufA, bufB, modsB="", modsA="", CH=4):
    nch=KS//CH
    assert KS%CH==0
    tmp="s60"
    def ldA(mi,c):
        for k in range(CH):
            off=(c*CH+k)*1024
            a(f"s_add_u32 {tmp}, {sA}, {mi*strideA+(off//4096)*4096}")
            a(f"buffer_load_dwordx4 {vr(bufA+(mi*CH+k)*4,4)}, v{vlane}, s[36:39], {tmp} offen offset:{off%4096} {modsA}")
    def ldB(ni,c):
        for k in range(CH):
            off=(c*CH+k)*1024
            a(f"s_add_u32 {tmp}, {sB}, {ni*strideB+(off//4096)*4096}")
            a(f"buffer_load_dwordx4 {vr(bufB+((c&1)*NI*CH+ni*CH+k)*4,4)}, v{vlane}, s[36:39], {tmp} offen offset:{off%4096} {modsB}")
    q=[]
    def issue(tag,n): q.extend([tag]*n)
    def wait(tag):
        idx=max(i for i,t in enumerate(q) if t==tag)
        n=len(q)-1-idx
        a(f"s_waitcnt vmcnt({min(n,63)})")
    for ni in range(NI): ldB(ni,0); issue(("B",0),CH)
    for mi in range(MI): ldA(mi,0); issue(("A",mi,0),CH)
    for c in range(nch):
        if c+1<nch:
            pass
        for mi in range(MI):
            if mi==0: wait(("B",c))
            wait(("A",mi,c))
            for k in range(CH):
                for ni in range(NI):
                    acc=ar(16*(mi*NI+ni),16)
                    cc="0" if (c==0 and k==0) else acc
                    a(f"v_mfma_f32_32x32x16_bf16 {acc}, {vr(bufA+(mi*CH+k)*4,4)}, {vr(bufB+((c&1)*NI*CH+ni*CH+k)*4,4)}, {cc}")
            if c+1<nch:
                per=-(-NI//min(MI,2))
                for ni in range(mi*per, min(NI,(mi+1)*per)):
                    ldB(ni,c+1); issue(("B",c+1),CH)
                ldA(mi,c+1); issue(("A",mi,c+1),CH)

def gemm_wg(a, KS, sA, strideA, sB, strideB, modsA="", modsB="", tag="G", lds0=0, MI=4, NI=4):
    CH=4; nch=KS//CH; assert KS%CH==0
    ABY=2*MI*CH*1024; BBY=2*NI*CH*1024; STG=ABY+BBY
    nA=(2*MI)//4; nB=(2*NI)//4
    a(f"""s_mul_i32 s62, s40, {nA*strideA}
    s_add_u32 s62, s62, {sA}
    s_mul_i32 s63, s40, {nB*strideB}
    s_add_u32 s63, s63, {sB}
    s_mul_i32 s64, s40, {nA*CH*1024}
    s_add_u32 s64, s64, {lds0}
    s_mul_i32 s65, s40, {nB*CH*1024}
    s_add_u32 s65, s65, {lds0+ABY}
    s_lshr_b32 s60, s40, 1
    s_mul_i32 s60, s60, {MI*CH*1024}
    s_add_u32 s60, s60, {lds0}
    v_add_u32 v12, s60, v4
    s_and_b32 s60, s40, 1
    s_mul_i32 s60, s60, {NI*CH*1024}
    s_add_u32 s60, s60, {lds0+ABY}
    v_add_u32 v13, s60, v4
    v_add_u32 v14, {STG}, v12
    v_add_u32 v15, {STG}, v13""")
    def dma(c):
        st=(c&1)*STG
        for r in range(nA):
            a(f"s_add_u32 m0, s64, {st+r*CH*1024}")
            a(f"s_add_u32 s60, s62, {r*strideA+c*CH*1024}")
            for k in range(CH): a(f"buffer_load_dwordx4 v4, s[36:39], s60 offen offset:{1024*k} lds {modsA}")
        for r in range(nB):
            a(f"s_add_u32 m0, s65, {st+r*CH*1024}")
            a(f"s_add_u32 s60, s63, {r*strideB+c*CH*1024}")
            for k in range(CH): a(f"buffer_load_dwordx4 v4, s[36:39], s60 offen offset:{1024*k} lds {modsB}")
    FA=16; FB=FA+2*MI*4
    def rd(c,k,set_):
        va,vb=(12,13) if (c&1)==0 else (14,15)
        for mi in range(MI): a(f"ds_read_b128 {vr(FA+(set_*MI+mi)*4,4)}, v{va} offset:{(mi*CH+k)*1024}")
        for ni in range(NI): a(f"ds_read_b128 {vr(FB+(set_*NI+ni)*4,4)}, v{vb} offset:{(ni*CH+k)*1024}")
    a("s_barrier")
    dma(0)
    for c in range(nch):
        a("s_waitcnt vmcnt(0)")
        a("s_barrier")
        rd(c,0,0)
        if c+1<nch: dma(c+1)
        for k in range(CH):
            if k+1<CH:
                rd(c,k+1,(k+1)&1)
                a(f"s_waitcnt lgkmcnt({MI+NI})")
            else:
                a("s_waitcnt lgkmcnt(0)")
            for mi in range(MI):
                for ni in range(NI):
                    acc=ar(16*(mi*NI+ni),16)
                    cc="0" if (c==0 and k==0) else acc
                    if os.environ.get("NOMFMA") and not (c==0 and k==0): continue
                    a(f"v_mfma_f32_32x32x16_bf16 {acc}, {vr(FA+((k&1)*MI+mi)*4,4)}, {vr(FB+((k&1)*NI+ni)*4,4)}, {cc}")

def acc_read(a, dst, mi, ni, NI, n=16):
    for r in range(n): a(f"v_accvgpr_read_b32 v{dst+r}, a{16*(mi*NI+ni)+r}")

def vo_epilogue(a, MI, NI, srb, sct, inc):
    a("v_lshl_add_u32 v7, v5, 10, v6")
    a("s_nop 7"); a("s_nop 7")
    for ni in range(NI):
        a(f"""s_mul_i32 s58, {sct}, {NI}
        s_add_u32 s58, s58, {ni}
        s_mul_i32 s59, s58, 4682
        s_lshr_b32 s59, s59, 16            ; h = R/14
        s_mul_i32 s61, s59, 14
        s_sub_u32 s61, s58, s61            ; dt32
        s_mul_i32 s59, s59, 28
        s_lshl_b32 s61, s61, 1
        s_add_u32 s59, s59, s61
        s_mul_i32 s61, {srb}, {MI*16*28}
        s_add_u32 s59, s59, s61
        s_lshl_b32 s59, s59, 10
        s_add_u32 s59, s59, {VO}""")
        for mi in range(MI):
            acc_read(a, 16, mi, ni, NI)
            for j in range(4):
                a(f"v_cvt_pk_bf16_f32 v{32+2*j}, v{16+4*j}, v{17+4*j}")
                a(f"v_cvt_pk_bf16_f32 v{33+2*j}, v{18+4*j}, v{19+4*j}")
            a(f"s_add_u32 s61, s59, {mi*16*28*1024}")
            for j in range(0 if os.environ.get('NOST') else 4):
                a(f"buffer_store_dwordx2 {vr(32+2*j,2)}, v7, s[36:39], s61 offen offset:{256*j} sc1")
    a(f"""s_waitcnt vmcnt(0)
    s_mul_i32 s58, {srb}, {MI}
    s_lshr_b32 s58, s58, 2
    s_lshl_b32 s58, s58, 7
    s_add_u32 s58, s58, {FLAGS}
    s_mov_b64 exec, 1
    v_mov_b32 v8, 0
    v_mov_b32 v9, {inc}
    buffer_atomic_add v9, v8, s[36:39], s58 offen
    s_mov_b64 exec, -1""")

NQ=7
W_BCAST=140000
def wait_flag(a, tag, sidx_expr_reg, target):
    a.label(tag)
    a("s_sub_u32 s99, s99, 1"); a("s_cbranch_scc1 K2_ABORT")
    a(f"buffer_load_dword v9, v8, s[36:39], {sidx_expr_reg} offen sc1")
    a("s_waitcnt vmcnt(0)")
    a("v_readfirstlane_b32 s47, v9")
    a(f"s_cmp_ge_u32 s47, {target}")
    a(f"s_cbranch_scc1 {tag}_OK")
    a("s_sleep 8")
    a(f"s_branch {tag}")
    a.label(tag+"_OK")

def signal(a, soff):
    a(f"""s_waitcnt vmcnt(0)
    s_mov_b64 exec, 1
    v_mov_b32 v8, 0
    v_mov_b32 v9, 1
    buffer_atomic_add v9, v8, s[36:39], {soff} offen
    s_mov_b64 exec, -1""")

def token_tasks(a):
    import gen4
    a.label("W_TOK")
    a.label("TK_LOOP")
    a(f"""s_cmp_ge_u32 s66, {64*65}
    s_cbranch_scc1 TK_END
    s_mul_i32 s67, s66, 64528
    s_lshr_b32 s67, s67, 22            ; seg = G/65
    s_mul_i32 s68, s67, 65
    s_sub_u32 s68, s66, s68            ; k
    v_mov_b32 v8, 0
    s_lshl_b32 s69, s67, 7             ; seg*128
    s_cmp_lt_u32 s68, 16
    s_cbranch_scc1 TK_S
    s_cmp_lt_u32 s68, 23
    s_cbranch_scc1 TK_V
    s_cmp_lt_u32 s68, 51
    s_cbranch_scc1 TK_F1
    s_branch TK_F2""")
    a.label("TK_S")
    a(f"s_add_u32 s46, s69, {FLAGS+128*400}")
    wait_flag(a,"TK_S_W1","s46",1)
    a(f"""s_lshr_b32 s46, s67, 2
    s_lshl_b32 s46, s46, 7
    s_add_u32 s46, s46, {FLAGS+128*128}""")
    wait_flag(a,"TK_S_W2","s46",56)
    gen4.t3s_body(a,"s67","s68","TK")
    a(f"s_add_u32 s46, s69, {FLAGS+128*192}")
    signal(a,"s46")
    a("s_branch TK_NEXT")
    a.label("TK_V")
    a("s_sub_u32 s68, s68, 16")
    a(f"s_add_u32 s46, s69, {FLAGS+128*192}")
    wait_flag(a,"TK_V_W1","s46",16)
    a(f"""s_lshr_b32 s46, s67, 2
    s_lshl_b32 s46, s46, 7
    s_add_u32 s46, s46, {FLAGS}""")
    wait_flag(a,"TK_V_W2","s46",224)
    a(f"s_add_u32 s46, s69, {FLAGS+128*32}")
    wait_flag(a,"TK_V_W3","s46",1)
    gen4.t3v_body(a,"s67","s68")
    a(f"s_add_u32 s46, s69, {FLAGS+128*256}")
    signal(a,"s46")
    a("s_branch TK_NEXT")
    a.label("TK_F1")
    a("s_sub_u32 s68, s68, 23")
    a(f"s_add_u32 s46, s69, {FLAGS+128*256}")
    wait_flag(a,"TK_F1_W","s46",7)
    gen4.f1_body(a,"s67","s68",1)
    a(f"s_add_u32 s46, s69, {FLAGS+128*320}")
    signal(a,"s46")
    a("s_branch TK_NEXT")
    a.label("TK_F2")
    a("s_sub_u32 s68, s68, 51")
    a(f"s_add_u32 s46, s69, {FLAGS+128*320}")
    wait_flag(a,"TK_F2_W","s46",28)
    gen4.f2_body(a,"s67","s68",1,1)
    a.label("TK_NEXT")
    a("""s_add_u32 s66, s66, 896
    s_branch TK_LOOP""")
    a.label("TK_END")
    a("s_endpgm")

def worker(a):
    a("s_cmp_eq_u32 s40, 0")
    a("s_cbranch_scc0 W_TB")
    a(f"""s_mov_b64 exec, 1
    s_mov_b32 s50, {FLAGS+128*121}
    v_mov_b32 v8, 0
    v_mov_b32 v9, 1
    buffer_atomic_add v9, v8, s[36:39], s50 offen sc0
    s_waitcnt vmcnt(0)
    v_mov_b32 v8, {W_BCAST+16}
    ds_write_b32 v8, v9
    s_waitcnt lgkmcnt(0)
    s_mov_b64 exec, -1""")
    a.label("W_TB")
    a(f"""s_barrier
    v_mov_b32 v8, {W_BCAST+16}
    ds_read_b32 v9, v8
    s_waitcnt lgkmcnt(0)
    v_readfirstlane_b32 s66, v9
    s_lshl_b32 s66, s66, 2
    s_add_u32 s66, s66, s40""")
    a("""s_cmp_gt_u32 s41, s43
    s_cselect_b32 s90, 1, 0
    s_sub_u32 s90, s41, s90
    s_min_u32 s90, s90, 6
    s_mov_b32 s91, 0
    v_lshlrev_b32 v4, 4, v1            ; lane*16
    v_and_b32 v2, 31, v1
    v_lshrrev_b32 v3, 5, v1            ; hi""")
    a("""v_lshrrev_b32 v5, 4, v2
    v_and_b32 v6, 15, v2
    v_lshlrev_b32 v6, 4, v6
    v_lshl_add_u32 v6, v3, 3, v6""")
    a.label("W_NEXT")
    a("""v_lshlrev_b32 v4, 4, v1
    v_and_b32 v2, 31, v1
    v_lshrrev_b32 v3, 5, v1
    v_lshrrev_b32 v5, 4, v2
    v_and_b32 v6, 15, v2
    v_lshlrev_b32 v6, 4, v6
    v_lshl_add_u32 v6, v3, 3, v6""")
    a("s_cmp_eq_u32 s40, 0")
    a("s_cbranch_scc0 W_BC")
    a(f"""s_mov_b64 exec, 1
    s_lshl_b32 s50, s90, 7
    s_add_u32 s50, s50, {FLAGS+128*100}
    v_mov_b32 v8, 0
    v_mov_b32 v9, 117
    s_cmp_eq_u32 s91, 0
    s_cbranch_scc1 W_ATOM
    buffer_load_dword v9, v8, s[36:39], s50 offen sc1
    s_waitcnt vmcnt(0)
    v_readfirstlane_b32 s51, v9
    s_cmp_lt_u32 s51, 117
    s_cbranch_scc0 W_WR""")
    a.label("W_ATOM")
    a("""v_mov_b32 v9, 1
    buffer_atomic_add v9, v8, s[36:39], s50 offen sc0
    s_waitcnt vmcnt(0)""")
    a.label("W_WR")
    a(f"""v_mov_b32 v8, {W_BCAST}
    ds_write_b32 v8, v9
    s_waitcnt lgkmcnt(0)
    s_mov_b64 exec, -1""")
    a.label("W_BC")
    a(f"""s_barrier
    v_mov_b32 v8, {W_BCAST}
    ds_read_b32 v9, v8
    s_waitcnt lgkmcnt(0)
    v_readfirstlane_b32 s51, v9
    s_barrier
    s_cmp_lt_u32 s51, 117
    s_cbranch_scc1 W_GOT
    s_add_u32 s90, s90, 1
    s_cmp_ge_u32 s90, 7
    s_cselect_b32 s90, 0, s90
    s_add_u32 s91, s91, 1
    s_cmp_lt_u32 s91, 7
    s_cbranch_scc1 W_NEXT
    s_branch W_TOK""")
    a.label("W_GOT")
    a("s_cmp_lt_u32 s51, 32")
    a("s_cbranch_scc1 W_VS")
    a("s_cmp_lt_u32 s51, 61")
    a("s_cbranch_scc1 W_PREP")
    a("s_sub_u32 s51, s51, 29")
    a("""s_sub_u32 s53, s51, 24
    s_mov_b32 s52, 0
    s_cmp_lt_u32 s51, 56
    s_cbranch_scc1 W_DEC
    s_sub_u32 s53, s51, 56
    s_mov_b32 s52, 1""")
    a.label("W_DEC")
    a("""s_lshr_b32 s54, s53, 2             ; rb256
    s_and_b32 s53, s53, 3
    s_lshl_b32 s55, s90, 2
    s_add_u32 s55, s55, s53            ; ct256 (0..27)
    s_mul_i32 s56, s54, 8*28*1024      ; XN offset
    s_add_u32 s56, s56, %d
    s_mul_i32 s57, s55, 8*28*1024      ; W rows
    s_cmp_eq_u32 s52, 0
    s_cbranch_scc0 W_T""" % XN)
    a(f"s_add_u32 s57, s57, {WTB}")
    gemm_wg(a,28,"s56",28*1024,"s57",28*1024)
    a("""s_lshl_b32 s54, s54, 1
    s_lshr_b32 s58, s40, 1
    s_add_u32 s54, s54, s58
    s_lshl_b32 s55, s55, 1
    s_and_b32 s58, s40, 1
    s_add_u32 s55, s55, s58""")
    vo_epilogue(a,4,4,"s54","s55",4)
    a("s_branch W_NEXT")
    a.label("W_PREP")
    a("""s_sub_u32 s51, s51, 32
    s_cmp_lt_u32 s51, 21
    s_cbranch_scc0 W_PCS
    s_mul_i32 s41, s90, 21
    s_add_u32 s41, s41, s51""")
    a("s_barrier")
    k1_tr(a, k2=True)
    a("s_branch W_PDONE")
    a.label("W_PCS")
    a("""s_sub_u32 s51, s51, 21
    s_lshl_b32 s41, s90, 3
    s_add_u32 s41, s41, s51""")
    a("s_barrier")
    k1_cs(a, k2=True)
    a.label("W_PDONE")
    a(f"""s_waitcnt vmcnt(0)
    s_barrier
    s_cmp_eq_u32 s40, 0
    s_cbranch_scc0 W_NEXT
    s_mov_b64 exec, 1
    s_mov_b32 s58, {FLAGS+128*122}
    v_mov_b32 v8, 0
    v_mov_b32 v9, 1
    buffer_atomic_add v9, v8, s[36:39], s58 offen
    s_mov_b64 exec, -1
    s_branch W_NEXT""")
    a.label("W_VS")
    a("""s_lshr_b32 s54, s51, 3             ; rb128
    s_and_b32 s53, s51, 7
    s_lshl_b32 s55, s90, 3
    s_add_u32 s55, s55, s53            ; ct128
    s_mul_i32 s56, s54, 4*28*1024
    s_add_u32 s56, s56, %d
    s_mul_i32 s57, s55, 4*28*1024
    s_add_u32 s57, s57, %d""" % (XN, WTB))
    gemm_wg(a,28,"s56",28*1024,"s57",28*1024,MI=2,NI=2)
    a("""s_lshr_b32 s59, s54, 0
    s_lshl_b32 s54, s54, 1
    s_lshr_b32 s58, s40, 1
    s_add_u32 s54, s54, s58
    s_lshl_b32 s55, s55, 1
    s_and_b32 s58, s40, 1
    s_add_u32 s55, s55, s58""")
    vo_epilogue(a,2,2,"s54","s55",1)
    a("s_branch W_NEXT")
    a.label("W_T")
    a(f"s_add_u32 s57, s57, {WTA}")
    gemm_wg(a,28,"s57",28*1024,"s56",28*1024)
    a("""s_lshl_b32 s54, s54, 1
    s_and_b32 s58, s40, 1
    s_add_u32 s54, s54, s58
    s_lshl_b32 s55, s55, 1
    s_lshr_b32 s58, s40, 1
    s_add_u32 s55, s55, s58""")
    a("""v_mul_u32_u24 v7, 16*14*1024, v5
    v_add_u32 v7, v7, v6""")
    a("s_nop 7"); a("s_nop 7")
    for mi in range(4):
        a(f"""s_lshl_b32 s58, s55, 2
        s_add_u32 s58, s58, {mi}
        s_mul_i32 s59, s58, 4682
        s_lshr_b32 s59, s59, 16            ; h
        s_mul_i32 s61, s59, 14
        s_sub_u32 s61, s58, s61            ; ks32
        s_mul_i32 s59, s59, 14
        s_add_u32 s59, s59, s61
        s_lshl_b32 s61, s54, 3
        s_mul_i32 s61, s61, 16*14
        s_add_u32 s59, s59, s61
        s_lshl_b32 s59, s59, 10
        s_add_u32 s59, s59, {TX}""")
        for ni in range(4):
            acc_read(a, 16, mi, ni, 4)
            for j in range(4):
                a(f"v_cvt_pk_bf16_f32 v{32+2*j}, v{16+4*j}, v{17+4*j}")
                a(f"v_cvt_pk_bf16_f32 v{33+2*j}, v{18+4*j}, v{19+4*j}")
            a(f"s_add_u32 s61, s59, {ni*2*16*14*1024}")
            for j in range(0 if os.environ.get('NOST') else 4):
                a(f"buffer_store_dwordx2 {vr(32+2*j,2)}, v7, s[36:39], s61 offen offset:{256*j} sc1")
    a(f"""s_waitcnt vmcnt(0)
    s_lshl_b32 s58, s54, 7
    s_add_u32 s58, s58, {FLAGS+128*128}
    s_mov_b64 exec, 1
    v_mov_b32 v8, 0
    v_mov_b32 v9, 1
    buffer_atomic_add v9, v8, s[36:39], s58 offen
    s_mov_b64 exec, -1
    s_branch W_NEXT""")
    import gen5
    gen5.token_tasks(a)

def kernels():
    try:
        import gen4
        return gen4.kernels()
    except ImportError:
        return []
```

```python
from gen import *
from gen4 import xlane_reduce
from gen3 import wait_flag, signal

def ldf(a, dst, soff, imm, mods=""):
    a(f"buffer_load_dwordx4 {dst}, v4, s[36:39], {soff} offen offset:{imm} {mods}")

def frag_loads(a, base_sreg, n, dstf, stride=1024, mods="", tmp="s60"):
    for i in range(n):
        off=i*stride
        if i==0 or (off//4096)!=((i-1)*stride//4096) or stride>=4096:
            a(f"s_add_u32 {tmp}, {base_sreg}, {(off//4096)*4096}")
        ldf(a, dstf(i), tmp, off%4096, mods)

def t3s(a, sseg, sh):
    a(f"""v_and_b32 v2, 15, v1
    v_lshrrev_b32 v3, 4, v1
    v_lshlrev_b32 v4, 4, v1
    v_and_b32 v5, 7, v2
    v_lshl_add_u32 v5, v3, 4, v5
    v_lshlrev_b32 v5, 4, v5                 ; ((j&7)+16g)*16
    s_mul_i32 s50, {sseg}, 7168
    s_add_u32 s50, s50, {MEMN}
    s_mul_i32 s51, {sseg}, 2*14*1024
    s_add_u32 s51, s51, {XNP}
    s_lshl_b32 s52, {sseg}, 5
    s_add_u32 s52, s52, {sh}
    s_mul_i32 s52, s52, 14*1024
    s_add_u32 s52, s52, {TX}
    s_add_u32 s53, s52, {16*14*1024}
    v_mov_b32 v8, 0
    s_lshr_b32 s46, {sseg}, 2
    s_lshl_b32 s46, s46, 7
    s_add_u32 s46, s46, {FLAGS+128*128}""")
    wait_flag(a,"TK_S_W2","s46",56)
    frag_loads(a,"s51",28,lambda i: ar(112+4*i,4))
    frag_loads(a,"s52",14,lambda i: ar(4*i,4),mods="sc1")
    frag_loads(a,"s53",14,lambda i: ar(56+4*i,4),mods="sc1")
    ACC=8
    a("s_waitcnt vmcnt(0)")
    for ks in range(14):
        for kt in (1,2):
            for tt in range(2):
                if kt==2 and tt==0: continue
                d=ACC+(kt*2+tt)*4
                c="0" if ks==0 else vr(d,4)
                a(f"v_mfma_f32_16x16x32_bf16 {vr(d,4)}, {ar(112+4*(14*(kt-1)+ks),4)}, {ar(56*tt+4*ks,4)}, {c}")
    a("v_mov_b32 v200, 0")
    a(f"s_lshl_b32 s46, {sseg}, 7")
    a(f"s_add_u32 s46, s46, {FLAGS+128*400}")
    a("v_mov_b32 v40, v8"); a("v_mov_b32 v41, v9")
    a("v_mov_b32 v8, 0")
    wait_flag(a,"TK_S_W1","s46",1)
    tstamp(a,1)
    for ks in range(14):
        a(f"s_add_u32 s60, s50, {(ks>>1)*1024+(ks&1)*128}")
        a(f"buffer_load_dwordx4 {vr(48+4*ks,4)}, v5, s[36:39], s60 offen sc1")
    for ks in range(14):
        a(f"s_waitcnt vmcnt({13-ks})")
        for tt in range(2):
            d=ACC+tt*4
            c="0" if ks==0 else vr(d,4)
            a(f"v_mfma_f32_16x16x32_bf16 {vr(d,4)}, {vr(48+4*ks,4)}, {ar(56*tt+4*ks,4)}, {c}")
    a("v_mov_b32 v6, 0xff7fffff")
    a("s_mov_b32 s53, 0x3fb8aa3b")
    a(f"""v_lshrrev_b32 v7, 1, v3
    v_lshl_add_u32 v7, v7, 4, v2
    v_lshlrev_b32 v7, 4, v7
    v_and_b32 v200, 1, v3
    v_lshl_add_u32 v7, v200, 3, v7
    s_and_b32 s54, {sh}, 3
    s_lshl_b32 s54, s54, 8
    v_lshlrev_b32 v201, 4, v2
    v_lshl_add_u32 v201, v3, 3, v201
    v_add_u32 v201, s54, v201
    s_lshl_b32 s55, {sseg}, 4
    s_add_u32 s55, s55, {sh}
    s_lshl_b32 s55, s55, 11
    s_add_u32 s55, s55, {PTX}
    s_lshl_b32 s56, {sseg}, 2
    s_lshr_b32 s57, {sh}, 2
    s_add_u32 s56, s56, s57
    s_lshl_b32 s56, s56, 11
    s_add_u32 s56, s56, {PTM}
    v_cmp_gt_u32 s[58:59], 2, v3
    v_lshlrev_b32 v33, 2, v3""")
    for tt in range(2):
        kts=(0,1) if tt==0 else (0,1,2)
        vals=[ACC+(kt*2+tt)*4+r for kt in kts for r in range(4)]
        for r in range(4): a(f"v_cndmask_b32 v{vals[r]}, v6, v{vals[r]}, s[58:59]")
        kt=tt+1
        for r in range(4):
            a(f"v_add_u32 v34, {r}, v33")
            a(f"v_cmp_le_u32 vcc, v34, v2")
            a("s_nop 1")
            a(f"v_cndmask_b32 v{ACC+(kt*2+tt)*4+r}, v6, v{ACC+(kt*2+tt)*4+r}, vcc")
        n=len(vals)
        a(f"v_max3_f32 v35, v{vals[0]}, v{vals[1]}, v{vals[2]}")
        i=3
        while i+1<n: a(f"v_max3_f32 v35, v35, v{vals[i]}, v{vals[i+1]}"); i+=2
        if i<n: a(f"v_max_f32 v35, v35, v{vals[i]}")
        xlane_reduce(a,35,36,"v_max_f32")
        a("v_mul_f32 v35, s53, v35")
        for v in vals: a(f"v_fma_f32 v{v}, v{v}, s53, -v35")
        for v in vals: a(f"v_exp_f32 v{v}, v{v}")
        a("s_nop 0")
        a(f"v_add_f32 v36, v{vals[0]}, v{vals[1]}")
        for v in vals[2:]: a(f"v_add_f32 v36, v36, v{v}")
        xlane_reduce(a,36,37,"v_add_f32")
        a("v_rcp_f32 v36, v36")
        a("s_nop 0")
        for v in vals: a(f"v_mul_f32 v{v}, v{v}, v36")
        for i,kt in enumerate(kts):
            a(f"v_cvt_pk_bf16_f32 v{38+2*kt}, v{vals[4*i]}, v{vals[4*i+1]}")
            a(f"v_cvt_pk_bf16_f32 v{39+2*kt}, v{vals[4*i+2]}, v{vals[4*i+3]}")
        if tt==0:
            a("v_mov_b32 v42, 0"); a("v_mov_b32 v43, 0")
        a(f"buffer_store_dwordx2 v[40:41], v7, s[36:39], s55 offen offset:{1024*tt} sc1")
        a(f"buffer_store_dwordx2 v[42:43], v7, s[36:39], s55 offen offset:{1024*tt+512} sc1")
        a("s_mov_b64 exec, s[58:59]")
        a(f"buffer_store_dwordx2 v[38:39], v201, s[36:39], s56 offen offset:{1024*tt} sc1")
        a("s_mov_b64 exec, -1")
        a("s_nop 1")
    a(f"s_lshl_b32 s46, {sseg}, 7")
    a(f"s_add_u32 s46, s46, {FLAGS+128*192}")
    signal(a,"s46")

def t3v(a, sseg, scg):
    a(f"""v_and_b32 v2, 15, v1
    v_lshrrev_b32 v3, 4, v1
    v_lshlrev_b32 v4, 4, v1
    s_lshl_b32 s50, {scg}, 2
    s_lshl_b32 s51, {sseg}, 2
    s_mul_i32 s51, s51, 28
    s_add_u32 s51, s51, s50
    s_lshl_b32 s51, s51, 10
    s_add_u32 s51, s51, {MB}
    s_lshl_b32 s52, {sseg}, 4
    s_mul_i32 s52, s52, 28
    s_add_u32 s52, s52, s50
    s_lshl_b32 s52, s52, 10
    s_add_u32 s52, s52, {VO}
    s_lshl_b32 s53, {sseg}, 13
    s_add_u32 s53, s53, {PTM}
    s_lshl_b32 s54, {sseg}, 15
    s_add_u32 s54, s54, {PTX}
    v_mov_b32 v8, 0
    s_lshr_b32 s46, {sseg}, 2
    s_lshl_b32 s46, s46, 7
    s_add_u32 s46, s46, {FLAGS}""")
    wait_flag(a,"TK_V_W2","s46",224)
    for h in range(16):
        a(f"s_add_u32 s60, s52, {h*28*1024}")
        for dt in range(4): ldf(a, ar((h*4+dt)*4,4), "s60", 1024*dt, "sc1")
    a(f"""v_mul_u32_u24 v5, 896, v2
    v_lshl_add_u32 v5, v3, 3, v5
    s_mul_i32 s55, {sseg}, 32*896
    s_lshl_b32 s56, {scg}, 7
    s_add_u32 s55, s55, s56
    s_mov_b32 s44, s8
    s_and_b32 s45, s9, 0xffff
    s_mov_b32 s46, {2048*896}
    s_mov_b32 s47, 0x00020000""")
    XR=240
    for tt in range(2):
        for dt in range(4):
            a(f"s_add_u32 s60, s55, {tt*16*896}")
            a(f"buffer_load_dwordx2 {vr(XR+2*(tt*4+dt),2)}, v5, s[44:47], s60 offen offset:{32*dt}")
    a(f"s_lshl_b32 s46, {sseg}, 7")
    a(f"s_add_u32 s46, s46, {FLAGS+128*192}")
    wait_flag(a,"TK_V_W1","s46",16)
    tstamp(a,1)
    frag_loads(a,"s54",32,lambda i: vr(48+4*i,4),mods="sc1")
    frag_loads(a,"s53",8,lambda i: vr(176+4*i,4),mods="sc1")
    ACC=16
    for h in range(16):
        a(f"s_waitcnt vmcnt({8+2*(15-h)})")
        for dt in range(4):
            for tt in range(2):
                acc=vr(ACC+4*(dt*2+tt),4)
                c="0" if h==0 else acc
                a(f"v_mfma_f32_16x16x32_bf16 {acc}, {ar((h*4+dt)*4,4)}, {vr(48+4*(2*h+tt),4)}, {c}")
    a("v_mov_b32 v8, 0")
    a(f"s_lshl_b32 s46, {sseg}, 7")
    a(f"s_add_u32 s46, s46, {FLAGS+128*32}")
    a(f"s_cmp_eq_u32 {sseg}, 63")
    a("s_cselect_b32 s45, 14, 1")
    wait_flag(a,"TK_V_W3","s46","s45")
    for hq in range(4):
        a(f"s_add_u32 s60, s51, {hq*28*1024}")
        for dt in range(4): ldf(a, vr(48+4*(hq*4+dt),4), "s60", 1024*dt, "sc1")
    for hq in range(4):
        a(f"s_waitcnt vmcnt({4*(3-hq)})")
        for dt in range(4):
            for tt in range(2):
                acc=vr(ACC+4*(dt*2+tt),4)
                a(f"v_mfma_f32_16x16x32_bf16 {acc}, {vr(48+4*(hq*4+dt),4)}, {vr(176+4*(2*hq+tt),4)}, {acc}")
    a(f"""v_lshrrev_b32 v6, 1, v3
    v_lshl_add_u32 v6, v6, 5, v2
    v_lshlrev_b32 v6, 4, v6
    v_and_b32 v7, 1, v3
    v_lshl_add_u32 v6, v7, 3, v6
    s_mul_i32 s56, {sseg}, 28
    s_add_u32 s56, s56, s50
    s_lshl_b32 s56, s56, 10
    s_add_u32 s56, s56, {HB}
    v_mul_u32_u24 v7, 56, v2
    s_mul_i32 s57, {sseg}, 32*56
    s_lshl_b32 s58, {scg}, 3
    s_add_u32 s57, s57, s58
    s_add_u32 s57, s57, {STATS}
    v_cmp_eq_u32 s[58:59], 0, v3""")
    for tt in range(2):
        H=120
        for dt in range(4):
            xb=XR+2*(tt*4+dt); A0=ACC+4*(dt*2+tt)
            a(f"v_cvt_pk_bf16_f32 v60, v{A0}, v{A0+1}")
            a(f"v_cvt_pk_bf16_f32 v61, v{A0+2}, v{A0+3}")
            a(f"v_lshlrev_b32 v62, 16, v60"); a(f"v_and_b32 v63, 0xffff0000, v60")
            a(f"v_lshlrev_b32 v64, 16, v61"); a(f"v_and_b32 v65, 0xffff0000, v61")
            a(f"v_lshlrev_b32 v66, 16, v{xb}"); a(f"v_and_b32 v67, 0xffff0000, v{xb}")
            a(f"v_lshlrev_b32 v68, 16, v{xb+1}"); a(f"v_and_b32 v69, 0xffff0000, v{xb+1}")
            for r in range(4): a(f"v_add_f32 v{62+r}, v{62+r}, v{66+r}")
            a(f"v_cvt_pk_bf16_f32 v{70+2*dt}, v62, v63")
            a(f"v_cvt_pk_bf16_f32 v{71+2*dt}, v64, v65")
            a(f"buffer_store_dwordx2 {vr(70+2*dt,2)}, v6, s[36:39], s56 offen offset:{1024*dt+256*tt} sc1")
            a(f"v_lshlrev_b32 v{H+4*dt}, 16, v{70+2*dt}"); a(f"v_and_b32 v{H+4*dt+1}, 0xffff0000, v{70+2*dt}")
            a(f"v_lshlrev_b32 v{H+4*dt+2}, 16, v{71+2*dt}"); a(f"v_and_b32 v{H+4*dt+3}, 0xffff0000, v{71+2*dt}")
        a(f"v_add_f32 v80, v{H}, v{H+1}")
        for i in range(2,16): a(f"v_add_f32 v80, v80, v{H+i}")
        xlane_reduce(a,80,81,"v_add_f32")
        a("v_mul_f32 v80, 0x3c800000, v80")
        a(f"v_sub_f32 v82, v{H}, v80"); a("v_mul_f32 v81, v82, v82")
        for i in range(1,16):
            a(f"v_sub_f32 v82, v{H+i}, v80"); a("v_fmac_f32 v81, v82, v82")
        a("v_mov_b32 v84, v80")
        xlane_reduce(a,81,82,"v_add_f32")
        a("v_mov_b32 v85, v81")
        a("s_mov_b64 exec, s[58:59]")
        a(f"s_add_u32 s60, s57, {tt*16*56}")
        a(f"buffer_store_dwordx2 v[84:85], v7, s[36:39], s60 offen sc1")
        a("s_mov_b64 exec, -1")
    a(f"s_lshl_b32 s46, {sseg}, 7")
    a(f"s_add_u32 s46, s46, {FLAGS+128*256}")
    signal(a,"s46")

def f1(a, sseg, sk):
    a(f"""v_lshlrev_b32 v4, 4, v1
    v_and_b32 v2, 31, v1
    v_lshrrev_b32 v3, 5, v1
    s_lshr_b32 s50, {sk}, 1                ; fb
    s_and_b32 s51, {sk}, 1                 ; half
    s_lshl_b32 s52, s50, 2
    s_add_u32 s52, s52, s51
    s_mul_i32 s53, s52, 28*1024
    s_add_u32 s53, s53, {WGU}
    s_add_u32 s54, s53, {2*28*1024}
    s_mul_i32 s55, {sseg}, 28*1024
    s_add_u32 s55, s55, {HB}""")
    frag_loads(a,"s53",28,lambda i: ar(4*i,4))
    frag_loads(a,"s54",28,lambda i: ar(112+4*i,4))
    a(f"""v_lshlrev_b32 v5, 4, v3
    s_lshl_b32 s58, s52, 7
    s_add_u32 s58, s58, {CS}
    s_add_u32 s59, s58, 16384""")
    CSR=176
    for g in range(2):
        for j in range(4):
            a(f"buffer_load_dwordx4 {vr(CSR+(g*4+j)*4,4)}, v5, s[36:39], s58 offen offset:{(64*g+8*j)*4}")
            a(f"buffer_load_dwordx4 {vr(CSR+32+(g*4+j)*4,4)}, v5, s[36:39], s59 offen offset:{(64*g+8*j)*4}")
    a("v_mov_b32 v8, 0")
    a(f"s_lshl_b32 s46, {sseg}, 7")
    a(f"s_add_u32 s46, s46, {FLAGS+128*256}")
    wait_flag(a,"TK_F1_W","s46",7)
    tstamp(a,1)
    frag_loads(a,"s55",28,lambda i: vr(48+4*i,4),mods="sc1")
    ST=160
    a(f"""v_mul_u32_u24 v6, 56, v2
    s_mul_i32 s60, {sseg}, 32*56
    s_add_u32 s60, s60, {STATS}""")
    for k in range(3): a(f"buffer_load_dwordx4 {vr(ST+4*k,4)}, v6, s[36:39], s60 offen offset:{16*k} sc1")
    a(f"buffer_load_dwordx2 {vr(ST+12,2)}, v6, s[36:39], s60 offen offset:48 sc1")
    G=16; U=32
    for ks in range(28):
        a(f"s_waitcnt vmcnt({4+27-ks})")
        a(f"v_mfma_f32_32x32x16_bf16 {vr(G,16)}, {ar(4*ks,4)}, {vr(48+4*ks,4)}, " + ("0" if ks==0 else vr(G,16)))
        a(f"v_mfma_f32_32x32x16_bf16 {vr(U,16)}, {ar(112+4*ks,4)}, {vr(48+4*ks,4)}, " + ("0" if ks==0 else vr(U,16)))
    a("s_waitcnt vmcnt(0)")
    for r in range(32): a(f"v_add_f32 v{CSR+r}, v{CSR+r}, v{CSR+32+r}")
    st=ST
    a(f"v_add_f32 v8, v{st}, v{st+2}")
    for k in range(2,7): a(f"v_add_f32 v8, v8, v{st+2*k}")
    a("v_mul_f32 v8, 0x3e124925, v8")
    a(f"v_add_f32 v9, v{st+1}, v{st+3}")
    for k in range(2,7): a(f"v_add_f32 v9, v9, v{st+2*k+1}")
    a("v_mov_b32 v10, 0")
    for k in range(7):
        a(f"v_sub_f32 v11, v{st+2*k}, v8"); a("v_fmac_f32 v10, v11, v11")
    a("v_fmac_f32 v9, 0x42800000, v10")
    a("v_mul_f32 v9, 0x3b124925, v9")
    a("v_add_f32 v9, 0x3727c5ac, v9")
    a("v_rsq_f32 v9, v9")
    a(f"""v_lshlrev_b32 v7, 4, v2
    v_lshl_add_u32 v7, v3, 3, v7
    s_mul_i32 s61, {sseg}, 112
    s_lshl_b32 s62, s50, 2
    s_add_u32 s61, s61, s62
    s_lshl_b32 s62, s51, 1
    s_add_u32 s61, s61, s62
    s_lshl_b32 s61, s61, 10
    s_add_u32 s61, s61, {ACT}""")
    for j in range(4):
        for r in range(4):
            g=G+4*j+r; u=U+4*j+r
            a(f"v_fma_f32 v{g}, -v8, v{CSR+j*4+r}, v{g}")
            a(f"v_fma_f32 v{u}, -v8, v{CSR+16+j*4+r}, v{u}")
            a(f"v_mul_f32 v{g}, v{g}, v9")
            a(f"v_mul_f32 v{u}, v{u}, v9")
        for r in (0,2):
            g=G+4*j+r; u=U+4*j+r
            a(f"v_cvt_pk_bf16_f32 v12, v{g}, v{g+1}")
            a(f"v_cvt_pk_bf16_f32 v13, v{u}, v{u+1}")
            a(f"v_lshlrev_b32 v{g}, 16, v12"); a(f"v_and_b32 v{g+1}, 0xffff0000, v12")
            a(f"v_lshlrev_b32 v{u}, 16, v13"); a(f"v_and_b32 v{u+1}, 0xffff0000, v13")
            a(f"v_max_f32 v{g}, 0, v{g}"); a(f"v_max_f32 v{g+1}, 0, v{g+1}")
            a(f"v_mul_f32 v{g}, v{g}, v{u}"); a(f"v_mul_f32 v{g+1}, v{g+1}, v{u+1}")
            a(f"v_cvt_pk_bf16_f32 v{48+2*j+r//2}, v{g}, v{g+1}")
        a(f"buffer_store_dwordx2 {vr(48+2*j,2)}, v7, s[36:39], s61 offen offset:{1024*(j>>1)+512*(j&1)} sc1")
    a(f"s_lshl_b32 s46, {sseg}, 7")
    a(f"s_add_u32 s46, s46, {FLAGS+128*320}")
    signal(a,"s46")

F2_LDS=141056
def f2(a, sseg, sk):
    a(f"""v_lshlrev_b32 v4, 4, v1
    v_and_b32 v2, 31, v1
    v_lshrrev_b32 v3, 5, v1
    s_lshr_b32 s50, {sk}, 2                ; db
    s_mul_i32 s53, s50, 112
    s_mul_i32 s51, s40, 28
    s_add_u32 s53, s53, s51
    s_lshl_b32 s53, s53, 10
    s_add_u32 s53, s53, {WDT}
    s_mul_i32 s55, {sseg}, 112
    s_add_u32 s55, s55, s51
    s_lshl_b32 s55, s55, 10
    s_add_u32 s55, s55, {ACT}""")
    frag_loads(a,"s53",28,lambda i: ar(4*i,4))
    a(f"""v_lshlrev_b32 v7, 4, v2
    v_lshl_add_u32 v7, v3, 3, v7
    s_mul_i32 s58, {sseg}, 28
    s_lshl_b32 s59, s50, 1
    s_add_u32 s58, s58, s59
    s_lshr_b32 s59, s40, 1
    s_add_u32 s58, s58, s59
    s_lshl_b32 s58, s58, 10
    s_and_b32 s59, s40, 1
    s_lshl_b32 s59, s59, 9
    s_add_u32 s58, s58, s59
    s_add_u32 s58, s58, {HB}
    v_mov_b32 v8, 0""")
    a(f"s_lshl_b32 s46, {sseg}, 7")
    a(f"s_add_u32 s46, s46, {FLAGS+128*320}")
    wait_flag(a,"TK_F2_W","s46",56)
    tstamp(a,1)
    frag_loads(a,"s55",28,lambda i: vr(48+4*i,4),mods="sc1")
    a("buffer_load_dwordx2 v[44:45], v7, s[36:39], s58 offen sc1")
    G=16
    for ks in range(28):
        a(f"s_waitcnt vmcnt({1+27-ks})")
        a(f"v_mfma_f32_32x32x16_bf16 {vr(G,16)}, {ar(4*ks,4)}, {vr(48+4*ks,4)}, " + ("0" if ks==0 else vr(G,16)))
    a(f"""v_lshlrev_b32 v5, 4, v1
    s_lshl_b32 s59, s40, 12
    s_add_u32 s59, s59, {F2_LDS}
    v_add_u32 v6, s59, v5
    s_lshl_b32 s59, s40, 10
    s_add_u32 s59, s59, {F2_LDS}
    v_add_u32 v5, s59, v5
    s_nop 7
    s_nop 3""")
    for j in range(4): a(f"ds_write_b128 v6, {vr(G+4*j,4)} offset:{1024*j}")
    a("s_waitcnt lgkmcnt(0)")
    a("s_barrier")
    for w in range(4): a(f"ds_read_b128 {vr(48+4*w,4)}, v5 offset:{4096*w}")
    a("s_waitcnt lgkmcnt(0)")
    a("s_barrier")
    for r in range(4):
        a(f"v_add_f32 v{48+r}, v{48+r}, v{52+r}")
        a(f"v_add_f32 v{56+r}, v{56+r}, v{60+r}")
        a(f"v_add_f32 v{48+r}, v{48+r}, v{56+r}")
    a("""v_cvt_pk_bf16_f32 v12, v48, v49
    v_cvt_pk_bf16_f32 v13, v50, v51
    v_lshlrev_b32 v8, 16, v12
    v_and_b32 v9, 0xffff0000, v12
    v_lshlrev_b32 v10, 16, v13
    v_and_b32 v11, 0xffff0000, v13
    s_waitcnt vmcnt(0)
    v_lshlrev_b32 v48, 16, v44
    v_and_b32 v49, 0xffff0000, v44
    v_lshlrev_b32 v50, 16, v45
    v_and_b32 v51, 0xffff0000, v45""")
    for r in range(4): a(f"v_add_f32 v{8+r}, v{8+r}, v{48+r}")
    a(f"""v_cvt_pk_bf16_f32 v14, v8, v9
    v_cvt_pk_bf16_f32 v15, v10, v11
    s_mov_b32 s44, s30
    s_and_b32 s45, s31, 0xffff
    s_mov_b32 s46, {2048*896}
    s_mov_b32 s47, 0x00020000
    v_mul_u32_u24 v6, 896, v2
    v_lshl_add_u32 v6, v3, 3, v6
    s_mul_i32 s59, {sseg}, 32*896
    s_lshl_b32 s61, s50, 6
    s_add_u32 s59, s59, s61
    s_lshl_b32 s61, s40, 4
    s_add_u32 s59, s59, s61
    buffer_store_dwordx2 v[14:15], v6, s[44:47], s59 offen""")

import os
PROF=int(os.environ.get("PROF","0"))
TS2=0x1760000
def tstamp(a, slot, kb=None):
    if PROF!=3: return
    if kb is None: kb=tstamp.kb
    tstamp.kb=kb
    a(f"""s_memrealtime s[70:71]
    s_waitcnt lgkmcnt(0)
    s_mul_i32 s72, s67, 136
    s_add_u32 s72, s72, s68
    s_add_u32 s72, s72, {kb}
    s_lshl_b32 s72, s72, 4
    s_add_u32 s72, s72, {TS2}
    s_mov_b64 exec, 1
    v_mov_b32 v250, s70
    v_mov_b32 v251, 0
    buffer_store_dword v250, v251, s[36:39], s72 offen offset:{4*slot}
    s_mov_b64 exec, -1""")
NT=136
def token_tasks(a):
    a.label("W_TOK")
    a("""s_cmp_lt_u32 s66, 128
    s_cbranch_scc1 TKP_S
    s_cmp_lt_u32 s66, 184
    s_cbranch_scc1 TKP_V
    s_cmp_lt_u32 s66, 520
    s_cbranch_scc1 TKP_F1
    s_cmp_lt_u32 s66, 856
    s_cbranch_scc1 TKP_F2
    s_endpgm""")
    a.label("TKP_S")
    a("""s_lshr_b32 s67, s66, 4
    s_and_b32 s68, s66, 15
    s_mov_b32 s69, 8""")
    a.label("TKL_S")
    tstamp(a,0,0)
    t3s(a,"s67","s68")
    tstamp(a,2,0)
    a("""s_add_u32 s67, s67, s69
    s_cmp_lt_u32 s67, 64
    s_cbranch_scc1 TKL_S
    s_endpgm""")
    a.label("TKP_V")
    a("""s_sub_u32 s66, s66, 128
    s_mul_i32 s67, s66, 9363
    s_lshr_b32 s67, s67, 16
    s_mul_i32 s68, s67, 7
    s_sub_u32 s68, s66, s68
    s_mov_b32 s69, 8""")
    a.label("TKL_V")
    tstamp(a,0,16)
    t3v(a,"s67","s68")
    tstamp(a,2,16)
    a("""s_add_u32 s67, s67, s69
    s_cmp_lt_u32 s67, 64
    s_cbranch_scc1 TKL_V
    s_endpgm""")
    for nm,base,fn,kb in (("F1",184,f1,24),("F2",520,f2,80)):
        a.label("TKP_"+nm)
        a(f"""s_sub_u32 s66, s66, {base}
        s_mul_i32 s67, s66, 1171
        s_lshr_b32 s67, s67, 16
        s_mul_i32 s68, s67, 56
        s_sub_u32 s68, s66, s68
        s_mov_b32 s69, 6
        v_mov_b32 v8, 0
        s_mov_b32 s46, {FLAGS+128*122}""")
        wait_flag(a,"TKW_"+nm,"s46",203)
        a.label("TKL_"+nm)
        tstamp(a,0,kb)
        fn(a,"s67","s68")
        tstamp(a,2,kb)
        a(f"""s_add_u32 s67, s67, s69
        s_cmp_lt_u32 s67, 64
        s_cbranch_scc1 TKL_{nm}
        s_endpgm""")
```

```python
import sys
from layout import *
NAME="sequential_preLN__memory_aug_recurrent_mem_tr__glu_gated_reglu__prompt"

class Asm:
    def __init__(self): self.l=[]
    def __call__(self, s):
        for x in s.strip("\n").split("\n"): self.l.append("    "+x.strip())
    def label(self, s): self.l.append(s+":")
    def c(self, s): self.l.append("    ; "+s)
    def text(self): return "\n".join(self.l)+"\n"

def srd(a, r, p, nbytes, add=0):
    a(f"s_mov_b32 s{r}, s{p}")
    a(f"s_and_b32 s{r+1}, s{p+1}, 0xffff")
    a(f"s_mov_b32 s{r+2}, {nbytes:#x}")
    a(f"s_mov_b32 s{r+3}, 0x00020000")

def vr(b,n): return f"v[{b}:{b+n-1}]"
def ar(b,n): return f"a[{b}:{b+n-1}]"

def kernel_header(name):
    return f""".globl {name}
.p2align 8
.type {name},@function
{name}:
"""
def kernel_desc(name, vgpr, accum, sgpr=102):
    return f""".amdhsa_kernel {name}
  .amdhsa_next_free_vgpr {vgpr}
  .amdhsa_next_free_sgpr {sgpr}
  .amdhsa_accum_offset {accum}
  .amdhsa_group_segment_fixed_size 0
  .amdhsa_kernarg_size 112
  .amdhsa_user_sgpr_count 2
  .amdhsa_user_sgpr_kernarg_segment_ptr 1
  .amdhsa_system_sgpr_workgroup_id_x 1
.end_amdhsa_kernel
"""

def wave_sum(a, v):
    for m in ("row_shr:1","row_shr:2","row_shr:4","row_shr:8"):
        a("s_nop 1"); a(f"v_add_f32_dpp v{v}, v{v}, v{v} {m} row_mask:0xf bank_mask:0xf bound_ctrl:0")
    a("s_nop 1"); a(f"v_add_f32_dpp v{v}, v{v}, v{v} row_bcast:15 row_mask:0xa bank_mask:0xf")
    a("s_nop 1"); a(f"v_add_f32_dpp v{v}, v{v}, v{v} row_bcast:31 row_mask:0xc bank_mask:0xf")

def prologue(a):
    a("""s_load_dwordx16 s[8:23], s[0:1], 0
    s_load_dwordx8 s[24:31], s[0:1], 64
    s_load_dwordx4 s[32:35], s[0:1], 96
    v_lshrrev_b32 v2, 6, v0
    v_and_b32 v1, 63, v0
    s_nop 0
    v_readfirstlane_b32 s40, v2
    s_waitcnt lgkmcnt(0)""")
    srd(a, 36, 34, WS_BYTES)

N_AB=448; N_LN=129; N_TR=0; N_CS=0; N_INIT=16
K1_GRID=N_AB+N_LN+N_TR+N_CS+N_INIT
K1_LDS=36864+4*8448

def k1_ab(a, k2=True):
    a.label("K1_AB")
    a("""s_and_b32 s43, s41, 15           ; h
    s_lshr_b32 s48, s41, 4           ; isB
    v_and_b32 v2, 15, v1             ; l&15
    v_lshrrev_b32 v3, 4, v1          ; g
    s_cmp_eq_u32 s48, 0
    s_cselect_b32 s44, s12, s16
    s_cselect_b32 s45, s13, s17
    s_cselect_b32 s49, 0x3d800000, 1.0
    s_and_b32 s45, s45, 0xffff
    s_mov_b32 s46, 0x380000
    s_mov_b32 s47, 0x00020000""")
    a("""v_lshrrev_b32 v4, 5, v1
    s_lshl_b32 s50, s40, 4
    v_add_u32 v5, s50, v4
    v_lshlrev_b32 v5, 13, v5
    v_and_b32 v10, 31, v1
    v_lshl_add_u32 v5, v10, 4, v5
    s_lshl_b32 s51, s43, 9
    v_add_u32 v5, s51, v5
    s_mul_i32 s50, s40, 8448
    s_add_u32 s50, s50, 36864
    v_mul_u32_u24 v4, 528, v4
    v_lshl_add_u32 v4, v10, 4, v4
    v_add_u32 v4, s50, v4
    v_mul_u32_u24 v11, 528, v2
    v_lshl_add_u32 v11, v3, 4, v11
    v_add_u32 v11, s50, v11""")
    a("""v_lshrrev_b32 v6, 1, v3
    v_lshlrev_b32 v6, 9, v6             ; 32*(g>>1)*16
    v_lshl_add_u32 v6, v2, 4, v6
    v_and_b32 v7, 1, v3
    v_lshl_add_u32 v6, v7, 3, v6
    s_mul_i32 s52, s41, 14              ; mat*14 rt
    s_lshl_b32 s53, s42, 1
    s_add_u32 s52, s52, s53
    s_mul_i32 s52, s52, 28
    s_add_u32 s52, s52, s40             ; + w
    s_lshl_b32 s52, s52, 10
    s_add_u32 s52, s52, %d""" % WTA)
    def ld_stream(j):
        a(f"s_mov_b32 s53, {64*8192*j}")
        for i in range(8):
            a(f"buffer_load_dwordx4 {vr(192+4*i,4)}, v5, s[44:47], s53 offen" + (f" offset:0" if i==0 else ""))
            if i<7: a("s_add_u32 s53, s53, 16384")
    a("s_cmp_eq_u32 s48, 0")
    a("s_cbranch_scc0 K1_AB_RESB")
    srd(a, 56, 14, 0x380000)
    a("""v_lshrrev_b32 v10, 5, v0            ; tid>>5 (0..7)
    v_and_b32 v12, 31, v0
    s_lshl_b32 s53, s42, 6
    v_add_u32 v13, s53, v10
    v_lshlrev_b32 v13, 13, v13
    v_lshl_add_u32 v13, v12, 4, v13
    v_add_u32 v13, s51, v13
    v_mul_u32_u24 v14, 528, v10
    v_lshl_add_u32 v14, v12, 4, v14""")
    for j in range(8):
        a(f"s_mov_b32 s53, {8*8192*j}")
        a(f"buffer_load_dwordx4 {vr(64+4*j,4)}, v13, s[56:59], s53 offen")
    ld_stream(0)
    for j in range(8):
        a(f"s_waitcnt vmcnt({8+7-j})")
        a(f"ds_write_b128 v14, {vr(64+4*j,4)} offset:{8*528*j}")
    a("""s_waitcnt lgkmcnt(0)
    s_barrier""")
    a("""v_lshrrev_b32 v10, 3, v2
    v_lshlrev_b32 v10, 4, v10
    v_bfe_u32 v12, v2, 1, 2
    v_lshl_add_u32 v10, v12, 2, v10
    v_and_b32 v12, 1, v2
    v_add_u32 v10, v10, v12
    v_mul_u32_u24 v10, 528, v10
    v_lshl_add_u32 v10, v3, 4, v10""")
    for nt in range(4):
        for ks in range(8):
            a(f"ds_read_b128 {vr(64+nt*32+ks*4,4)}, v10 offset:{(32*(nt&1)+2*(nt>>1))*528+64*ks}")
        a("s_waitcnt lgkmcnt(0)")
    a("s_branch K1_AB_MAIN")
    a.label("K1_AB_RESB")
    srd(a, 56, 18, 0x380000)
    a("""v_lshrrev_b32 v10, 3, v0       ; e0 = tid>>3 (0..31)
    v_and_b32 v12, 7, v0                ; piece
    s_lshl_b32 s53, s43, 8              ; h*256
    v_add_u32 v13, s53, v10
    v_mul_u32_u24 v13, 896, v13
    v_lshl_add_u32 v13, v12, 4, v13
    s_lshl_b32 s53, s42, 7              ; 128 nb
    v_add_u32 v13, s53, v13
    v_mul_u32_u24 v14, 144, v10
    v_lshl_add_u32 v14, v12, 4, v14""")
    for j in range(8):
        a(f"s_mov_b32 s53, {32*896*j}")
        a(f"buffer_load_dwordx4 {vr(64+4*j,4)}, v13, s[56:59], s53 offen")
    ld_stream(0)
    for j in range(8):
        a(f"s_waitcnt vmcnt({8+7-j})")
        a(f"ds_write_b128 v14, {vr(64+4*j,4)} offset:{32*144*j}")
    a("""s_waitcnt lgkmcnt(0)
    s_barrier""")
    a("""v_lshrrev_b32 v10, 2, v2
    v_lshl_add_u32 v10, v3, 3, v10
    v_mul_u32_u24 v10, 144, v10
    v_and_b32 v12, 3, v2
    v_lshl_add_u32 v10, v12, 3, v10""")
    for nt in range(4):
        for ks in range(8):
            for p in range(2):
                a(f"ds_read_b64_tr_b16 {vr(64+nt*32+ks*4+2*p,2)}, v10 offset:{(32*ks+4*p)*144+32*nt}")
        a("s_waitcnt lgkmcnt(0)")
    a.label("K1_AB_MAIN")
    for j in range(7):
        a(f"s_waitcnt vmcnt(0)")
        for i in range(8): a(f"ds_write_b128 v4, {vr(192+4*i,4)} offset:{2*528*i}")
        if j<6:
            a("s_nop 1")
            ld_stream(j+1)
        for ks in range(8): a(f"ds_read_b128 {vr(224+4*ks,4)}, v11 offset:{64*ks}")
        for ks in range(8):
            a(f"s_waitcnt lgkmcnt({7-ks})")
            for nt in range(4):
                c = "0" if ks==0 else vr(32+4*nt,4)
                a(f"v_mfma_f32_16x16x32_bf16 {vr(32+4*nt,4)}, {vr(224+4*ks,4)}, {vr(64+nt*32+ks*4,4)}, {c}")
        a("s_nop 7")
        for nt in range(4):
            for r in range(4): a(f"v_mul_f32 v{32+4*nt+r}, s49, v{32+4*nt+r}")
            a(f"v_cvt_pk_bf16_f32 v{48+2*nt}, v{32+4*nt}, v{33+4*nt}")
            a(f"v_cvt_pk_bf16_f32 v{49+2*nt}, v{34+4*nt}, v{35+4*nt}")
        for k in range(8): a(f"v_accvgpr_write_b32 a{8*j+k}, v{48+k}")
    for j in range(7):
        for nt in range(4):
            a(f"s_add_u32 s53, s52, {(nt>>1)*28*1024 + 4096*j}")
            a(f"buffer_store_dwordx2 {ar(8*j+2*nt,2)}, v6, s[36:39], s53 offen offset:{256*(nt&1)} sc1")
    a.label("K1_AB_END")

def ln_rows(a, srd_in, in_off_v, nrows, outs, tag):
    pass

def k1_ln(a):
    a.label("K1_LN")
    a("v_cmp_gt_u32 vcc, 56, v1")
    a("s_and_saveexec_b64 s[60:61], vcc")
    a("""v_lshlrev_b32 v2, 4, v1            ; lane*16
    v_lshrrev_b32 v3, 3, v1
    v_lshlrev_b32 v3, 7, v3
    v_and_b32 v4, 7, v1
    v_lshl_add_u32 v3, v4, 3, v3""")
    a("s_cmp_eq_u32 s41, 256")
    a("s_cbranch_scc1 K1_MEM0")
    srd(a, 44, 8, 2048*896)
    a("""s_lshl_b32 s50, s41, 3
    s_lshl_b32 s43, s40, 1
    s_add_u32 s50, s50, s43
    s_mul_i32 s42, s50, 896""")
    R=2
    for r in range(R):
        a(f"buffer_load_dwordx4 {vr(8+4*r,4)}, v2, s[44:47], s42 offen offset:{896*r}")
    for r in range(R):
        a(f"s_waitcnt vmcnt({R-1-r})")
        b=32+8*r
        for j in range(4):
            a(f"v_lshlrev_b32 v{b+2*j}, 16, v{8+4*r+j}")
            a(f"v_and_b32 v{b+2*j+1}, 0xffff0000, v{8+4*r+j}")
        a(f"v_add_f32 v{24+r}, v{b}, v{b+1}")
        for j in range(2,8): a(f"v_add_f32 v{24+r}, v{24+r}, v{b+j}")
    a("s_mov_b64 exec, s[60:61]")
    a("v_cmp_gt_u32 vcc, 56, v1")
    for r in range(R):
        a("s_nop 1"); a(f"v_cndmask_b32 v{24+r}, 0, v{24+r}, vcc")
    for r in range(R): wave_sum(a, 24+r)
    a("s_nop 1")
    for r in range(R): a(f"v_readlane_b32 s{64+r}, v{24+r}, 63")
    a("s_mov_b32 s70, 0x3b124925")
    a("s_nop 1")
    for r in range(R):
        a(f"v_mov_b32 v{28+r}, s{64+r}")
        a(f"v_mul_f32 v{28+r}, s70, v{28+r}")
    for r in range(R):
        b=32+8*r
        a(f"v_sub_f32 v5, v{b}, v{28+r}")
        a(f"v_mul_f32 v{24+r}, v5, v5")
        for j in range(1,8):
            a(f"v_sub_f32 v5, v{b+j}, v{28+r}")
            a(f"v_fmac_f32 v{24+r}, v5, v5")
        a(f"v_cndmask_b32 v{24+r}, 0, v{24+r}, vcc")
    for r in range(R): wave_sum(a, 24+r)
    a("s_nop 1")
    for r in range(R): a(f"v_readlane_b32 s{64+r}, v{24+r}, 63")
    a("s_nop 1")
    for r in range(R):
        a(f"v_mov_b32 v{24+r}, s{64+r}")
        a(f"v_mul_f32 v{24+r}, s70, v{24+r}")
        a(f"v_cvt_pk_bf16_f32 v{28+r}, v{28+r}, v{28+r}")
        a(f"v_and_b32 v{28+r}, 0xffff0000, v{28+r}")
        a(f"v_cvt_pk_bf16_f32 v{24+r}, v{24+r}, v{24+r}")
        a(f"v_and_b32 v{24+r}, 0xffff0000, v{24+r}")
        a(f"v_add_f32 v{24+r}, 0x3727c5ac, v{24+r}")
        a(f"v_cvt_pk_bf16_f32 v{24+r}, v{24+r}, v{24+r}")
        a(f"v_and_b32 v{24+r}, 0xffff0000, v{24+r}")
        a(f"v_sqrt_f32 v{24+r}, v{24+r}")
        a("s_nop 0")
        a(f"v_cvt_pk_bf16_f32 v{24+r}, v{24+r}, v{24+r}")
        a(f"v_and_b32 v{24+r}, 0xffff0000, v{24+r}")
        a(f"v_rcp_f32 v{24+r}, v{24+r}")
        a("s_nop 0")
    a("s_and_saveexec_b64 s[60:61], vcc")
    a("""s_lshr_b32 s43, s50, 5
    s_mul_i32 s43, s43, 28*1024
    s_and_b32 s48, s50, 31
    s_lshl_b32 s48, s48, 4
    s_add_u32 s43, s43, s48
    s_add_u32 s43, s43, %d
    v_lshrrev_b32 v6, 1, v1
    v_lshlrev_b32 v6, 10, v6
    v_and_b32 v7, 1, v1
    v_lshl_add_u32 v6, v7, 9, v6        ; XN voffset
    s_lshr_b32 s48, s50, 4
    s_mul_i32 s48, s48, 14*1024
    s_and_b32 s49, s50, 15
    s_lshl_b32 s49, s49, 4
    s_add_u32 s48, s48, s49
    s_add_u32 s48, s48, %d
    v_lshrrev_b32 v3, 3, v1             ; b
    v_lshlrev_b32 v3, 11, v3            ; 2 ks32 per b -> 2048
    v_bfe_u32 v4, v1, 1, 2              ; (j&7)>>1 = oq&3
    v_lshl_add_u32 v3, v4, 8, v3
    v_lshl_add_u32 v3, v7, 3, v3""" % (XN, XNP))
    for r in range(R):
        b=32+8*r
        for j in range(0,8,2):
            a(f"v_sub_f32 v{b+j}, v{b+j}, v{28+r}")
            a(f"v_sub_f32 v{b+j+1}, v{b+j+1}, v{28+r}")
            a(f"v_cvt_pk_bf16_f32 v5, v{b+j}, v{b+j+1}")
            a(f"v_lshlrev_b32 v{b+j}, 16, v5")
            a(f"v_and_b32 v{b+j+1}, 0xffff0000, v5")
            a(f"v_mul_f32 v{b+j}, v{b+j}, v{24+r}")
            a(f"v_mul_f32 v{b+j+1}, v{b+j+1}, v{24+r}")
            a(f"v_cvt_pk_bf16_f32 v{8+4*r+j//2}, v{b+j}, v{b+j+1}")
        a(f"buffer_store_dwordx4 {vr(8+4*r,4)}, v6, s[36:39], s43 offen offset:{16*r} sc1")
        a(f"v_mov_b32 v{b}, v{8+4*r}")
        a(f"v_mov_b32 v{b+1}, v{8+4*r+2}")
        a(f"v_mov_b32 v{b+2}, v{8+4*r+1}")
        a(f"v_mov_b32 v{b+3}, v{8+4*r+3}")
        a(f"buffer_store_dwordx2 {vr(b,2)}, v3, s[36:39], s48 offen offset:{16*r} sc1")
        a(f"buffer_store_dwordx2 {vr(b+2,2)}, v3, s[36:39], s48 offen offset:{16*r+1024} sc1")
    a("s_branch K1_LN_END")
    a.label("K1_MEM0")
    srd(a, 44, 10, 8*896)
    a("s_mul_i32 s42, s40, 1792")
    a("""v_lshrrev_b32 v3, 3, v1
    v_lshlrev_b32 v3, 10, v3             ; b*1024
    v_bfe_u32 v4, v1, 1, 2               ; g
    v_lshl_add_u32 v3, v4, 8, v3
    v_and_b32 v4, 1, v1
    v_lshl_add_u32 v3, v4, 3, v3
    s_lshl_b32 s49, s40, 5               ; i0*16 = 2w*16""")
    a("s_add_u32 s43, s49, %d" % MEMN)
    a("s_add_u32 s48, s49, %d" % MEMX)
    for r in range(2):
        a(f"buffer_load_dwordx4 {vr(8+4*r,4)}, v2, s[44:47], s42 offen offset:{896*r}")
    for r in range(2):
        b=32+8*r
        a(f"s_waitcnt vmcnt({1-r if r==0 else 4})")
        a(f"v_mov_b32 v{b}, v{8+4*r}")
        a(f"v_mov_b32 v{b+1}, v{8+4*r+2}")
        a(f"v_mov_b32 v{b+2}, v{8+4*r+1}")
        a(f"v_mov_b32 v{b+3}, v{8+4*r+3}")
        for so in ("s48","s43"):
            a(f"buffer_store_dwordx2 {vr(b,2)}, v3, s[36:39], {so} offen offset:{16*r} sc1")
            a(f"buffer_store_dwordx2 {vr(b+2,2)}, v3, s[36:39], {so} offen offset:{16*r+128} sc1")
    a.label("K1_LN_END")
    a("s_mov_b64 exec, -1")

def k1_tr(a, k2=False):
    if not k2:
        a.label("K1_TR")
        a("s_sub_u32 s41, s2, %d" % (N_AB+N_LN))
    a("""s_lshl_b32 s41, s41, 2
    s_add_u32 s41, s41, s40
    s_mul_i32 s42, s41, 21400
    s_lshr_b32 s42, s42, 22
    s_mul_i32 s43, s42, 196
    s_sub_u32 s43, s41, s43            ; t in 0..195
    s_cmp_eq_u32 s42, 2
    s_cbranch_scc1 K1_TR_D""")
    a("""s_mul_i32 s48, s43, 2341
    s_lshr_b32 s48, s48, 16            ; kt = t/28
    s_mul_i32 s49, s48, 28
    s_sub_u32 s49, s43, s49            ; fb
    s_cmp_eq_u32 s42, 0
    s_cselect_b32 s44, s24, s26
    s_cselect_b32 s45, s25, s27
    s_and_b32 s45, s45, 0xffff
    s_mov_b32 s46, 0x188000
    s_mov_b32 s47, 0x00020000
    s_mov_b32 s50, 3584                ; src row stride
    s_mul_i32 s51, s48, 64*3584
    s_lshl_b32 s52, s49, 7
    s_add_u32 s51, s51, s52            ; src base offset
    s_mov_b32 s53, 28*1024             ; dst rt32 stride (KS=28)
    s_lshl_b32 s54, s49, 1
    s_add_u32 s54, s54, s42            ; 64-row block index
    s_mul_i32 s54, s54, 2*28*1024
    s_lshl_b32 s52, s48, 12            ; kt*4 ks16
    s_add_u32 s54, s54, s52
    s_add_u32 s54, s54, %d
    s_branch K1_TR_GO""" % WGU)
    a.label("K1_TR_D")
    a("""s_mul_i32 s48, s43, 9363
    s_lshr_b32 s48, s48, 16            ; ft
    s_mul_i32 s49, s48, 7
    s_sub_u32 s49, s43, s49            ; db""")
    srd(a, 44, 28, 0x188000)
    a("""s_mov_b32 s50, 896
    s_mul_i32 s51, s48, 64*896
    s_lshl_b32 s52, s49, 7
    s_add_u32 s51, s51, s52
    s_mov_b32 s53, 112*1024
    s_mul_i32 s54, s49, 2*112*1024
    s_lshl_b32 s52, s48, 12
    s_add_u32 s54, s54, s52
    s_add_u32 s54, s54, %d""" % WDT)
    a.label("K1_TR_GO")
    a("""v_lshrrev_b32 v2, 3, v1
    v_and_b32 v3, 7, v1
    v_mul_lo_u32 v4, v2, s50
    v_lshl_add_u32 v4, v3, 4, v4
    s_mul_i32 s55, s40, 64*144
    v_mul_u32_u24 v5, 144, v2
    v_lshl_add_u32 v5, v3, 4, v5
    v_add_u32 v5, s55, v5
    s_lshl_b32 s56, s50, 3""")
    for j in range(8):
        a(f"buffer_load_dwordx4 {vr(8+4*j,4)}, v4, s[44:47], s51 offen")
        if j<7: a("s_add_u32 s51, s51, s56")
    for j in range(8):
        a(f"s_waitcnt vmcnt({7-j})")
        a(f"ds_write_b128 v5, {vr(8+4*j,4)} offset:{8*144*j}")
    a("""v_and_b32 v2, 15, v1
    v_lshrrev_b32 v3, 4, v1
    v_lshrrev_b32 v6, 2, v2
    v_lshl_add_u32 v6, v3, 3, v6
    v_mul_u32_u24 v6, 144, v6
    v_and_b32 v7, 3, v2
    v_lshl_add_u32 v6, v7, 3, v6
    v_add_u32 v6, s55, v6
    v_lshrrev_b32 v7, 1, v3
    v_lshlrev_b32 v7, 10, v7               ; (g>>1) ks16
    v_and_b32 v8, 1, v3
    v_lshl_add_u32 v7, v8, 9, v7           ; 32*(g&1)*16
    v_lshl_add_u32 v7, v2, 4, v7           ; + c*16
    s_waitcnt lgkmcnt(0)""")
    for nt in range(4):
        for half in range(2):
            b=40+8*nt+4*half
            for p in range(2):
                a(f"ds_read_b64_tr_b16 {vr(b+2*p,2)}, v6 offset:{(32*half+4*p)*144+32*nt}")
    a("s_waitcnt lgkmcnt(0)")
    for nt in range(4):
        for half in range(2):
            b=40+8*nt+4*half
            a(f"buffer_store_dwordx4 {vr(b,4)}, v7, s[36:39], s54 offen offset:{2048*half+256*(nt&1)}" + (" sc1" if k2 else ""))
        if nt==1: a("s_add_u32 s54, s54, s53")
    if not k2: a("s_endpgm")

def k1_cs(a, k2=False):
    if not k2:
        a.label("K1_CS")
        a("s_sub_u32 s41, s2, %d" % (N_AB+N_LN+N_TR))
    a("""s_cmp_ge_u32 s41, 28
    s_cselect_b32 s50, 1, 0           ; khalf
    s_cselect_b32 s51, 28, 0
    s_sub_u32 s41, s41, s51
    s_cmp_ge_u32 s41, 14
    s_cselect_b32 s42, 1, 0
    s_cselect_b32 s43, 14, 0
    s_cselect_b32 s44, s26, s24
    s_cselect_b32 s45, s27, s25
    s_sub_u32 s43, s41, s43           ; fb128
    s_and_b32 s45, s45, 0xffff
    s_mov_b32 s46, 0x188000
    s_mov_b32 s47, 0x00020000
    v_lshlrev_b32 v2, 2, v1
    s_lshl_b32 s48, s50, 2
    s_add_u32 s48, s48, s40
    s_mul_i32 s48, s48, 56*3584
    s_lshl_b32 s49, s43, 8
    s_add_u32 s48, s48, s49
    v_mov_b32 v4, 0
    v_mov_b32 v5, 0""")
    for j in range(56):
        a(f"buffer_load_dword v{8+j}, v2, s[44:47], s48 offen")
        a("s_add_u32 s48, s48, 3584")
    for j in range(56):
        a(f"s_waitcnt vmcnt({55-j})")
        a(f"v_lshlrev_b32 v6, 16, v{8+j}")
        a(f"v_and_b32 v7, 0xffff0000, v{8+j}")
        a("v_add_f32 v4, v4, v6")
        a("v_add_f32 v5, v5, v7")
    a("""v_lshlrev_b32 v6, 3, v0
    ds_write_b64 v6, v[4:5]
    s_waitcnt lgkmcnt(0)
    s_barrier
    s_cmp_eq_u32 s40, 0
    s_cbranch_scc0 K1_CS_END
    ds_read_b64 v[8:9], v6 offset:512
    ds_read_b64 v[10:11], v6 offset:1024
    ds_read_b64 v[12:13], v6 offset:1536
    s_waitcnt lgkmcnt(0)
    v_add_f32 v4, v4, v8
    v_add_f32 v5, v5, v9
    v_add_f32 v4, v4, v10
    v_add_f32 v5, v5, v11
    v_add_f32 v4, v4, v12
    v_add_f32 v5, v5, v13""")
    a("""v_lshlrev_b32 v6, 1, v1          ; 2*lane (0..126)
    v_lshrrev_b32 v7, 6, v6               ; 0/1
    v_and_b32 v6, 63, v6
    v_lshl_add_u32 v6, v7, 7, v6          ; (f>>6 &1)*128 + (f&63)
    s_lshl_b32 s49, s43, 8                ; fb128*2*128
    s_lshl_b32 s51, s42, 6
    s_add_u32 s49, s49, s51
    v_add_u32 v6, s49, v6
    v_lshlrev_b32 v6, 2, v6
    s_mul_i32 s49, s50, 16384
    s_add_u32 s49, s49, %d
    buffer_store_dwordx2 v[4:5], v6, s[36:39], s49 offen sc1""" % CS)
    a.label("K1_CS_END")
    if not k2: a("s_endpgm")

def k1_init(a):
    a.label("K1_INIT")
    a("""v_mov_b32 v4, -1
    v_mov_b32 v5, -1
    v_mov_b32 v6, -1
    v_mov_b32 v7, -1
    v_lshlrev_b32 v2, 4, v0
    s_mul_i32 s42, s41, 28672
    s_add_u32 s42, s42, %d""" % (MEMX+7168))
    for j in range(7): a(f"buffer_store_dwordx4 v[4:7], v2, s[36:39], s42 offen sc1"); a("s_add_u32 s42, s42, 4096")
    a("s_mul_i32 s42, s41, 40960")
    a("s_add_u32 s42, s42, %d" % PX)
    for j in range(10): a(f"buffer_store_dwordx4 v[4:7], v2, s[36:39], s42 offen sc1"); a("s_add_u32 s42, s42, 4096")
    a("""v_mov_b32 v8, 0
    v_mov_b32 v9, 0
    v_mov_b32 v10, 0
    v_mov_b32 v11, 0
    s_lshl_b32 s42, s41, 12
    s_add_u32 s42, s42, %d
    v_add_u32 v12, s42, v2
    v_cmp_eq_u32 vcc, %d, v12
    s_nop 1
    v_cndmask_b32 v8, 0, 1, vcc
    buffer_store_dwordx4 v[8:11], v2, s[36:39], s42 offen sc1""" % (FLAGS, FLAGS+128*400))

def k1():
    a=Asm()
    a(f"s_cmp_ge_u32 s2, {K1_GRID}")
    a("s_cbranch_scc1 K1_EXIT")
    prologue(a)
    a(f"s_cmp_lt_u32 s2, {N_AB}"); a("s_cbranch_scc1 K1_AB")
    a(f"s_cmp_lt_u32 s2, {N_AB+N_LN}"); a("s_cbranch_scc1 K1_LN")
    a("s_branch K1_INIT")
    a.label("K1_EXIT"); a("s_endpgm")
    import os
    only=os.environ.get("K1ONLY","")
    for nm,fn in (("AB",k1_ab),("LN",k1_ln),("INIT",k1_init)):
        if (only and nm not in only.split(",")):
            a.label("K1_"+nm); a("s_endpgm")
        else: fn(a)
    return a.text()

def build(kernels):
    hdr = open("cdna_kernels/%s.s.ref"%NAME).read().split("\n")
    top=[]
    for line in hdr:
        if line.startswith("; @launch") or line.startswith("; Override") or line.startswith("; grid="): continue
        if not line.startswith(";"): break
        top.append(line)
    out="\n".join(top)+"\n"
    for (name,text,grid,block,lds,vg,ac) in kernels:
        out+=f"; @launch kernel={name} grid=({grid},1,1) block=({block},1,1) lds={lds}\n"
    out+='.amdgcn_target "amdgcn-amd-amdhsa--gfx950"\n.text\n'
    seen=set()
    for (name,text,grid,block,lds,vg,ac) in kernels:
        if name in seen: continue
        seen.add(name)
        out+=kernel_header(name)+text
    out+='.section .rodata,"a"\n'
    seen=set()
    for (name,text,grid,block,lds,vg,ac) in kernels:
        if name in seen: continue
        seen.add(name)
        out+=".p2align 6\n"+kernel_desc(name,vg,ac)
    return out

if __name__=="__main__":
    ks=[]
    try:
        import gen2
        ks+=gen2.kernels()
    except ImportError:
        pass
    open("cdna_kernels/%s.s"%NAME,"w").write(build(ks))
```

```python
from gen import *
import os
NSTEPS=int(os.environ.get("NSTEPS","63"))

def spin_guard(a):
    a("s_sub_u32 s99, s99, 1")
    a("s_cbranch_scc1 K2_ABORT")

def poll_mem(a, tag, soff, va, vb, d0, d1, tmp):
    a.label(tag)
    spin_guard(a)
    a(f"buffer_load_dwordx4 {vr(d0,4)}, v{va}, s[36:39], {soff} offen sc1")
    a(f"buffer_load_dwordx4 {vr(d1,4)}, v{vb}, s[36:39], {soff} offen sc1")
    a("s_waitcnt vmcnt(0)")
    a(f"v_max3_u32 v{tmp}, v{d0}, v{d0+1}, v{d0+2}")
    a(f"v_max3_u32 v{tmp}, v{tmp}, v{d0+3}, v{d1}")
    a(f"v_max3_u32 v{tmp}, v{tmp}, v{d1+1}, v{d1+2}")
    a(f"v_max_u32 v{tmp}, v{tmp}, v{d1+3}")
    a(f"v_cmp_eq_u32 vcc, -1, v{tmp}")
    a(f"s_cbranch_vccnz {tag}")

PROF=int(os.environ.get("PROF","0"))
STAMPS=0x1720000
def stamp(a,k):
    if PROF not in (1,2): return
    a(f"""s_memtime s[70:71]
    s_waitcnt lgkmcnt(0)
    s_sub_u32 s72, s70, s73
    s_add_u32 s{80+k}, s{80+k}, s72
    s_mov_b32 s73, s70""")
TSB=0x1740000
def rt(a, ev):
    if PROF!=3: return
    rt.n+=1
    a(f"""s_cmp_eq_u32 s40, 0
    s_cbranch_scc0 RT_{rt.n}
    s_memrealtime s[70:71]
    s_waitcnt lgkmcnt(0)
    s_lshl_b32 s72, s59, 4
    s_add_u32 s72, s72, s77
    s_mov_b64 s[74:75], exec
    s_mov_b64 exec, 1
    v_mov_b32 v11, s70
    v_mov_b32 v10, 0
    buffer_store_dword v11, v10, s[36:39], s72 offen offset:{4*ev}
    s_mov_b64 exec, s[74:75]""")
    a.label(f"RT_{rt.n}")
rt.n=0
def rt_init(a, base):
    if PROF!=3: return
    a(f"""s_add_u32 s77, s42, {base}
    s_lshl_b32 s77, s77, 10
    s_add_u32 s77, s77, {TSB}
    s_mov_b64 exec, 1
    v_mov_b32 v11, s78
    v_mov_b32 v10, 0
    buffer_store_dword v11, v10, s[36:39], s77 offen offset:12
    v_mov_b32 v11, s80
    buffer_store_dword v11, v10, s[36:39], s77 offen offset:28
    s_mov_b64 exec, -1""")
def stamp_init(a):
    if PROF not in (1,2): return
    for k in range(16): a(f"s_mov_b32 s{80+k}, 0")
    a("s_memtime s[70:71]"); a("s_waitcnt lgkmcnt(0)"); a("s_mov_b32 s73, s70")
def stamp_dump(a, base_add):
    if PROF not in (1,2): return
    a(f"""s_add_u32 s74, s42, {base_add}
    s_lshl_b32 s74, s74, 2
    s_add_u32 s74, s74, s40
    s_lshl_b32 s74, s74, 6
    s_add_u32 s74, s74, {STAMPS}
    s_mov_b64 exec, 1
    v_mov_b32 v2, 0""")
    for k in range(16):
        a(f"v_mov_b32 v3, s{80+k}")
        a(f"buffer_store_dword v3, v2, s[36:39], s74 offen offset:{4*k}")
    a("s_mov_b64 exec, -1")

AOP=16; IDX=44; ACC=48
def wfrag(i):
    return ar(8*i,8) if i<32 else vr(176+8*(i-32),8)
def wfrag_half(i,h):
    return ar(8*i+4*h,4) if i<32 else vr(176+8*(i-32)+4*h,4)

class LdsQ:
    def __init__(self,a): self.a=a; self.n=0; self.done=0
    def issue(self, s): self.a(s); self.n+=1; return self.n
    def wait(self, op):
        if op<=self.done: return
        k=self.n-op
        self.a(f"s_waitcnt lgkmcnt({min(k,15)})") if k<=15 else None
        assert k<=15
        self.done=op
    def wait_all(self):
        self.a("s_waitcnt lgkmcnt(0)"); self.done=self.n

def chain_common_setup(a):
    a("""v_and_b32 v2, 15, v1
    v_lshrrev_b32 v3, 4, v1
    v_lshlrev_b32 v4, 4, v1                 ; lane*16
    v_lshlrev_b32 v5, 4, v0                 ; chunk t
    v_add_u32 v6, 4096, v5
    v_cmp_gt_u32 vcc, 192, v0
    s_nop 1
    v_cndmask_b32 v6, v5, v6, vcc           ; chunk t+256 (or t)
    v_mov_b32 v%d, 0x4444
    v_mov_b32 v9, 0xeeee
    v_cmp_gt_u32 vcc, 8, v2
    s_nop 1
    v_cndmask_b32 v%d, v9, v%d, vcc""" % (IDX,IDX,IDX))

def poll_mem2(a, tag, soff, A, B, tmp, lds_base, addrs=(5,6), C=None, slp=0):
    n=len(addrs)
    sets=[A,B]+([C] if C is not None else [])
    K=len(sets)
    def issue(R):
        for k,v in enumerate(addrs): a(f"buffer_load_dwordx4 {vr(R+4*k,4)}, v{v}, s[36:39], {soff} offen sc1")
    def check(R):
        regs=[R+i for i in range(4*n)]
        a(f"v_max3_u32 v{tmp}, v{regs[0]}, v{regs[1]}, v{regs[2]}")
        i=3
        while i+1<len(regs): a(f"v_max3_u32 v{tmp}, v{tmp}, v{regs[i]}, v{regs[i+1]}"); i+=2
        if i<len(regs): a(f"v_max_u32 v{tmp}, v{tmp}, v{regs[i]}")
        a(f"v_cmp_eq_u32 vcc, -1, v{tmp}")
    np_=int(os.environ.get("PNOP","2" if K==2 else "1"))
    for i,R in enumerate(sets):
        issue(R)
        if i<K-1:
            for _ in range(np_): a("s_nop 15")
    a.label(tag)
    spin_guard(a)
    if PROF in (1,2): a("s_add_u32 s89, s89, 63")
    for i,R in enumerate(sets):
        a(f"s_waitcnt vmcnt({n*(K-1)})")
        check(R)
        a(f"s_cbranch_vccz {tag}_D{i}")
        if slp: a(f"s_sleep {slp}")
        issue(R)
    a(f"s_branch {tag}")
    for i,R in enumerate(sets):
        a.label(f"{tag}_D{i}")
        for k,v in enumerate(addrs): a(f"ds_write_b128 v{v}, {vr(R+4*k,4)} offset:{lds_base}")
        if i<K-1: a(f"s_branch {tag}_J")
    a.label(f"{tag}_J")
    a("s_waitcnt lgkmcnt(0)")
    a("s_barrier")

def load_wtile(a, soff_sreg, vlane, frags, ldsinfo=None):
    for b in range(7):
        a(f"s_add_u32 s60, {soff_sreg}, {4096*b}")
        if frags is not None:
            a(f"buffer_load_dwordx4 {wfrag_half(frags[b],0)}, v{vlane}, s[36:39], s60 offen")
            a(f"buffer_load_dwordx4 {wfrag_half(frags[b],1)}, v{vlane}, s[36:39], s60 offen offset:2048")
        else:
            va, boff, tmp = ldsinfo
            a(f"buffer_load_dwordx4 {vr(tmp+8*b,4)}, v{vlane}, s[36:39], s60 offen")
            a(f"buffer_load_dwordx4 {vr(tmp+8*b+4,4)}, v{vlane}, s[36:39], s60 offen offset:2048")
    if frags is None:
        va, boff, tmp = ldsinfo
        a("s_waitcnt vmcnt(0)")
        for b in range(7):
            a(f"ds_write_b128 v{va}, {vr(tmp+8*b,4)} offset:{boff+2048*b}")
            a(f"ds_write_b128 v{va}, {vr(tmp+8*b+4,4)} offset:{boff+2048*b+1024}")
        a("s_waitcnt lgkmcnt(0)")

TT_RS=32
S_MEM=0; S_TT=7168; S_RED=S_TT+4*3584; RED_RS=272; RED_W=16*RED_RS; S_WL=S_RED+4*RED_W+64; S_KST=S_WL+4*14336
KX=76; KM=108; TOP=124; SACC=132; WLT=144
def score(a):
    a.label("K2_SCORE")
    if PROF==3: a("s_memrealtime s[80:81]"); a("s_waitcnt lgkmcnt(0)")
    wait_ws(a,"SC_WXN",178,257)
    a.label("SC_WWT")
    spin_guard(a)
    a(f"""v_mov_b32 v8, 0
    s_lshl_b32 s74, s42, 7
    s_add_u32 s74, s74, {FLAGS+128*144}
    buffer_load_dword v9, v8, s[36:39], s74 offen sc1
    s_waitcnt vmcnt(0)
    v_readfirstlane_b32 s75, v9
    s_cmp_ge_u32 s75, 7
    s_cbranch_scc1 SC_WWT_OK
    s_sleep 2
    s_branch SC_WWT""")
    a.label("SC_WWT_OK")
    chain_common_setup(a)
    a("""s_mul_i32 s48, s40, 112
    s_and_b32 s49, s40, 1
    s_lshl_b32 s50, s49, 4
    s_add_u32 s50, s48, s50              ; qa
    s_cmp_eq_u32 s49, 0
    s_cselect_b32 s51, 96, 0
    s_add_u32 s51, s48, s51              ; qs
    s_mul_i32 s52, s42, 14*28*1024
    s_add_u32 s52, s52, %d               ; head base""" % WTA)
    a("""v_lshrrev_b32 v9, 1, v3
    v_lshlrev_b32 v9, 10, v9
    v_and_b32 v10, 1, v3
    v_lshl_add_u32 v9, v10, 9, v9
    v_lshl_add_u32 v9, v2, 4, v9
    s_mul_i32 s53, s40, 14336
    s_add_u32 s53, s53, %d
    v_add_u32 v12, s53, v4               ; WL lds addr""" % S_WL)
    for u in range(7):
        if u<6: a(f"s_add_u32 s54, s50, {16*u}")
        else: a("s_mov_b32 s54, s51")
        a("""s_lshr_b32 s55, s54, 5
        s_mul_i32 s55, s55, 28*1024
        s_and_b32 s56, s54, 31
        s_lshl_b32 s56, s56, 4
        s_add_u32 s55, s55, s56
        s_add_u32 s55, s55, s52""")
        if u<6: load_wtile(a, "s55", 9, [7*u+b for b in range(7)])
        else: load_wtile(a, "s55", 9, None, (12, 0, 48))
    a("""s_mul_i32 s53, s40, 3584
    s_add_u32 s53, s53, %d
    v_bfe_u32 v10, v2, 1, 2
    v_xor_b32 v10, v10, v3
    v_lshlrev_b32 v13, 5, v2
    v_lshl_add_u32 v13, v10, 3, v13
    v_add_u32 v13, s53, v13               ; TT write addr""" % S_TT)
    a("""v_lshrrev_b32 v10, 2, v2              ; r
    v_and_b32 v11, 3, v2                  ; cc
    v_lshl_add_u32 v14, v3, 3, v10        ; 8g + r
    v_lshlrev_b32 v14, 5, v14
    v_add_u32 v14, s53, v14
    v_lshrrev_b32 v15, 1, v10             ; r>>1
    v_xor_b32 v15, v15, v11               ; cc ^ (r>>1)          (p=0)
    v_xor_b32 v11, 2, v15                 ; cc ^ (2 + (r>>1))    (p=1)
    v_lshl_add_u32 v15, v15, 3, v14       ; addr p=0
    v_lshl_add_u32 v14, v11, 3, v14
    v_add_u32 v14, 128, v14""")
    a("""s_lshl_b32 s53, s49, 9
    v_subrev_u32 v160, s53, v15
    v_subrev_u32 v161, s53, v14
    v_lshrrev_b32 v10, 1, v3
    v_cmp_eq_u32 s[64:65], s49, v10
    s_nop 1
    v_cndmask_b32 v160, v15, v160, s[64:65]
    v_cndmask_b32 v161, v14, v161, s[64:65]
    v_cndmask_b32 v45, 0, -1, s[64:65]    ; and-mask""")
    a("""v_and_b32 v10, 7, v2
    v_lshl_add_u32 v10, v3, 4, v10
    v_lshlrev_b32 v10, 4, v10""")
    for m in range(4):
        if m<3: a(f"s_lshr_b32 s53, s50, 5\ns_add_u32 s53, s53, {m}")
        else: a("s_lshr_b32 s53, s51, 5")
        a(f"""s_lshr_b32 s54, s53, 1
        s_lshl_b32 s54, s54, 10
        s_and_b32 s55, s53, 1
        s_lshl_b32 s55, s55, 7
        s_add_u32 s54, s54, s55
        v_add_u32 v{162+m}, s54, v10""")
    a("""s_lshr_b32 s53, s50, 5
    s_lshl_b32 s53, s53, 10
    v_add_u32 v166, s53, v4
    s_lshr_b32 s53, s51, 5
    s_lshl_b32 s53, s53, 10
    v_add_u32 v167, s53, v4""")
    a("""s_mul_i32 s53, s40, %d
    s_add_u32 s53, s53, %d
    v_mul_u32_u24 v168, %d, v2
    v_lshl_add_u32 v168, v3, 4, v168
    v_add_u32 v168, s53, v168""" % (RED_W,S_RED,RED_RS))
    a("""v_add_u32 v10, 2, v2
    v_cmp_gt_u32 vcc, 2, v2
    s_nop 1
    v_cndmask_b32 v10, v10, v2, vcc
    v_min_u32 v10, 11, v10
    v_and_b32 v11, 1, v3
    s_lshl_b32 s53, s40, 1
    v_add_u32 v11, s53, v11               ; i
    v_mul_u32_u24 v169, %d, v11
    v_lshl_add_u32 v169, v10, 4, v169
    v_add_u32 v169, %d, v169              ; RED read addr
    v_subrev_u32 v10, 2, v2               ; q-2
    v_lshrrev_b32 v170, 1, v10
    v_lshlrev_b32 v170, 7, v170
    v_lshl_add_u32 v170, v11, 4, v170
    v_and_b32 v10, 1, v10
    v_lshl_add_u32 v170, v10, 3, v170     ; x part offset
    v_lshlrev_b32 v10, 6, v2
    v_lshl_add_u32 v10, v11, 3, v10
    v_add_u32 v10, 512, v10               ; mem part offset
    v_cmp_gt_u32 vcc, 2, v2
    s_nop 1
    v_cndmask_b32 v170, v170, v10, vcc
    s_mul_i32 s53, s42, 640
    v_add_u32 v170, s53, v170             ; P store voffset
    v_cmp_gt_u32 s[62:63], 10, v2
    v_cmp_gt_u32 vcc, 32, v1
    s_and_b64 s[62:63], s[62:63], vcc
    v_mov_b32 v46, 0xff7fffff
    s_mov_b32 s68, 0x3fb8aa3b""" % (RED_RS,S_RED))
    a(f"""s_lshl_b32 s76, s40, 13
    s_add_u32 s76, s76, {S_KST}
    v_add_u32 v171, s76, v4""")
    def dma_kx_list():
        out=[]
        for kt in range(2):
            for m in range(4):
                def f(kt=kt,m=m):
                    a(f"s_add_u32 m0, s76, {4096*kt+1024*m - (1024*m if m<3 else 0)}")
                    a(f"s_add_u32 s61, s56, {14*1024*kt}")
                    if m<3: a(f"buffer_load_dwordx4 v166, s[36:39], s61 offen offset:{1024*m} lds")
                    else: a(f"buffer_load_dwordx4 v167, s[36:39], s61 offen lds")
                out.append(f)
        return out
    def rd_kx():
        for kt in range(2):
            for m in range(4):
                a(f"ds_read_b128 {vr(KX+16*kt+4*m,4)}, v171 offset:{4096*kt+1024*m}")
    a(f"s_mov_b32 s56, {XNP}")
    a(f"s_mov_b32 s57, {MEMX}")
    a(f"s_mov_b32 s58, {PX}")
    a("s_mov_b32 s59, 0")
    for f in dma_kx_list(): f()
    a("s_waitcnt vmcnt(0)")
    rd_kx()
    a("s_waitcnt lgkmcnt(0)")
    a(f"s_add_u32 s56, s56, {2*14*1024}")
    for f in dma_kx_list(): f()
    a("s_barrier")
    stamp_init(a); rt_init(a,0)
    a.label("SC_LOOP")
    L=LdsQ(a)
    wl={}
    def rd_wl(k):
        buf=WLT+8*(k&1)
        L.issue(f"ds_read_b128 {vr(buf,4)}, v12 offset:{2048*k}")
        wl[k]=L.issue(f"ds_read_b128 {vr(buf+4,4)}, v12 offset:{2048*k+1024}")
    rd_wl(0); rd_wl(1)
    for r in range(28): a(f"v_mov_b32 v{ACC+r}, 0")
    poll_mem2(a, "SC_POLL", "s57", KM, KM+8, 47, S_MEM, C=(TOP if os.environ.get("K3") else None))
    L.done=L.n
    stamp(a,0); rt(a,0)
    aop={}
    for b in range(7): aop[b]=L.issue(f"ds_read_b128 {vr(AOP+4*b,4)}, v4 offset:{S_MEM+1024*b}")
    order=[(u,b) for b in range(2) for u in range(6)]+[(u,b) for u in range(6) for b in range(2,7)]
    seq=[]; k=0; nr=0
    for (u,b) in order:
        seq.append(("r",u,b)); nr+=1
        if nr%4==0 and k<7: seq.append(("l",6,k)); k+=1
    assert k==7 and len(seq)==49
    last={}
    for n,(t,u,b) in enumerate(seq): last[u]=n
    acts={}
    def at(n,f): acts.setdefault(n,[]).append(f)
    trd={}; kmr=[None]; first=[True]
    def km_read():
        a("s_waitcnt vmcnt(0)")
        for m in range(4): kmr[0]=L.issue(f"ds_read_b128 {vr(KM+4*m,4)}, v{162+m} offset:{S_MEM}")
    def cvt_write(u):
        def f():
            a(f"v_cvt_pk_bf16_f32 v{ACC+4*u}, v{ACC+4*u}, v{ACC+4*u+1}")
            a(f"v_cvt_pk_bf16_f32 v{ACC+4*u+1}, v{ACC+4*u+2}, v{ACC+4*u+3}")
            L.issue(f"ds_write_b64 v13, {vr(ACC+4*u,2)} offset:{512*u}")
        return f
    def tr_read(m):
        def f():
            t=TOP+4*(m&1) if m<3 else 172
            if m<3:
                L.issue(f"ds_read_b64_tr_b16 {vr(t,2)}, v15 offset:{1024*m}")
                trd[m]=L.issue(f"ds_read_b64_tr_b16 {vr(t+2,2)}, v14 offset:{1024*m}")
            else:
                L.issue(f"ds_read_b64_tr_b16 {vr(t,2)}, v160 offset:3072")
                trd[m]=L.issue(f"ds_read_b64_tr_b16 {vr(t+2,2)}, v161 offset:3072")
        return f
    def s_mask(m):
        def f():
            t=172
            L.wait(trd[m])
            for r in range(4): a(f"v_and_b32 v{t+r}, v45, v{t+r}")
        return f
    def s_mfma(m):
        def f():
            t=TOP+4*(m&1) if m<3 else 172
            L.wait(kmr[0]); L.wait(trd[m])
            for kt in range(3):
                A = vr(KM+4*m,4) if kt==0 else vr(KX+16*(kt-1)+4*m,4)
                c = "0" if first[0] else vr(SACC+4*kt,4)
                a(f"v_mfma_f32_16x16x32_bf16 {vr(SACC+4*kt,4)}, {A}, {vr(t,4)}, {c}")
            first[0]=False
        return f
    at(10, km_read)
    for u in range(7):
        if u!=5: at(last[u]+3, cvt_write(u))
    at(last[1]+4, tr_read(0)); at(last[1]+9, s_mfma(0))
    at(last[3]+4, tr_read(1)); at(last[3]+9, s_mfma(1))
    p6=last[6]+4
    at(p6, tr_read(3)); at(p6+6, s_mask(3)); at(p6+8, s_mfma(3))
    assert p6+8 < len(seq), (p6,len(seq))
    for n,(t,u,b) in enumerate(seq):
        if t=="r":
            L.wait(aop[b])
            a(f"v_smfmac_f32_16x16x64_bf16 {vr(ACC+4*u,4)}, {vr(AOP+4*b,4)}, {wfrag(7*u+b)}, v{IDX}")
        else:
            L.wait(wl[b])
            a(f"v_smfmac_f32_16x16x64_bf16 {vr(ACC+24,4)}, {vr(AOP+4*b,4)}, {vr(WLT+8*(b&1),8)}, v{IDX}")
            if b+2<7: rd_wl(b+2)
        for f in acts.get(n,[]): f()
    assert max(acts)<len(seq)
    stamp(a,2)
    a(f"s_add_u32 s56, s56, {2*14*1024}")
    a("s_nop 6")
    cvt_write(5)(); tr_read(2)(); s_mfma(2)()
    a("s_nop 7")
    for kt in range(3): a(f"ds_write_b128 v168, {vr(SACC+4*kt,4)} offset:{64*kt}")
    a("s_waitcnt lgkmcnt(0)")
    stamp(a,4)
    a("s_barrier")
    stamp(a,5)
    T=ACC
    q=lambda k: (T+4*k if k<7 else TOP)
    for w in range(4):
        for hf in range(2):
            a(f"ds_read_b128 {vr(q(2*w+hf),4)}, v169 offset:{RED_W*w+8*RED_RS*hf}")
    def pka(d,x,y):
        for h in (0,2): a(f"v_pk_add_f32 {vr(d+h,2)}, {vr(x+h,2)}, {vr(y+h,2)}")
    a("s_waitcnt lgkmcnt(4)")
    pka(q(0),q(0),q(1)); pka(q(2),q(2),q(3)); pka(q(0),q(0),q(2))
    a("s_waitcnt lgkmcnt(0)")
    pka(q(4),q(4),q(5)); pka(q(6),q(6),q(7)); pka(q(4),q(4),q(6)); pka(q(0),q(0),q(4))
    a(f"v_max3_f32 v{T+4}, v{T}, v{T+1}, v{T+2}")
    a(f"v_max_f32 v{T+4}, v{T+4}, v{T+3}")
    a(f"v_cndmask_b32 v{T+4}, v46, v{T+4}, s[62:63]")
    for rr in (1,2,4,8):
        a("s_nop 1"); a(f"v_max_f32_dpp v{T+4}, v{T+4}, v{T+4} row_ror:{rr} row_mask:0xf bank_mask:0xf")
    a(f"v_mul_f32 v{T+4}, s68, v{T+4}")
    for r in range(4): a(f"v_fma_f32 v{T+r}, v{T+r}, s68, -v{T+4}")
    for r in range(4): a(f"v_exp_f32 v{T+r}, v{T+r}")
    a("s_nop 0")
    a(f"v_add_f32 v{T+5}, v{T}, v{T+1}")
    a(f"v_add_f32 v{T+6}, v{T+2}, v{T+3}")
    a(f"v_add_f32 v{T+5}, v{T+5}, v{T+6}")
    a(f"v_cndmask_b32 v{T+5}, 0, v{T+5}, s[62:63]")
    for rr in (1,2,4,8):
        a("s_nop 1"); a(f"v_add_f32_dpp v{T+5}, v{T+5}, v{T+5} row_ror:{rr} row_mask:0xf bank_mask:0xf")
    a(f"v_rcp_f32 v{T+5}, v{T+5}")
    a("s_nop 0")
    for r in range(4): a(f"v_mul_f32 v{T+r}, v{T+r}, v{T+5}")
    a(f"v_cvt_pk_bf16_f32 v{T+6}, v{T}, v{T+1}")
    a(f"v_cvt_pk_bf16_f32 v{T+7}, v{T+2}, v{T+3}")
    a(f"v_min_u32 v{T+6}, 0xfffffffe, v{T+6}")
    a(f"v_min_u32 v{T+7}, 0xfffffffe, v{T+7}")
    a("s_mov_b64 exec, s[62:63]")
    a(f"buffer_store_dwordx2 {vr(T+6,2)}, v170, s[36:39], s58 offen")
    a("s_mov_b64 exec, -1")
    stamp(a,6); rt(a,1)
    a("s_waitcnt vmcnt(1)")
    rd_kx()
    a("s_waitcnt lgkmcnt(0)")
    for f in dma_kx_list(): f()
    a("""s_add_u32 s57, s57, 7168
    s_add_u32 s58, s58, 10240
    s_add_u32 s59, s59, 1
    s_cmp_lt_u32 s59, %d
    s_cbranch_scc1 SC_LOOP""" % NSTEPS)
    stamp_dump(a,0)
    a("s_endpgm")

V_MEM=0; V_P=0; V_PART=10240; PART_RS=144; PART_W=8*PART_RS; V_WL=V_PART+4*PART_W+64; V_ZST=V_WL+4*28672
ZX=80; PXR=112; PMR=128; OACC=136; VWLT=144; VT=160; ZB=144
def value(a):
    a.label("K2_VALUE")
    if PROF==3: a("s_memrealtime s[80:81]"); a("s_waitcnt lgkmcnt(0)")
    wait_ws(a,"VA_WWT",177,112)
    chain_common_setup(a)
    a("""v_lshrrev_b32 v9, 1, v3
    v_lshlrev_b32 v9, 10, v9
    v_and_b32 v10, 1, v3
    v_lshl_add_u32 v9, v10, 9, v9
    v_lshl_add_u32 v9, v2, 4, v9
    s_mul_i32 s53, s40, 28672
    s_add_u32 s53, s53, %d
    v_add_u32 v12, s53, v4              ; WL lds addr""" % V_WL)
    for hh in range(4):
        for ct in range(2):
            a(f"""s_lshl_b32 s54, s40, 2
            s_add_u32 s54, s54, {hh}
            s_mul_i32 s54, s54, 14
            s_add_u32 s54, s54, s42
            s_mul_i32 s55, s54, 28*1024
            s_add_u32 s55, s55, {WTB+256*ct}""")
            t=2*hh+ct
            if t<6: load_wtile(a,"s55",9,[7*t+b for b in range(7)])
            else: load_wtile(a,"s55",9,None,(12,14336*(t-6),48))
    a("""v_and_b32 v10, 7, v2
    s_mul_i32 s53, s40, 2560
    v_lshlrev_b32 v13, 7, v3
    v_lshl_add_u32 v13, v10, 4, v13
    v_add_u32 v13, s53, v13              ; P x part: g*128 + i*16
    v_and_b32 v11, 1, v3
    v_lshlrev_b32 v14, 6, v11
    v_lshl_add_u32 v14, v10, 3, v14
    v_add_u32 v14, s53, v14
    v_add_u32 v14, 512, v14
    v_add_u32 v7, 8192, v5
    v_cmp_gt_u32 vcc, 128, v0
    s_nop 1
    v_cndmask_b32 v7, v5, v7, vcc
    v_add_u32 v8, 4096, v5               ; P chunk t+256""")
    a("""v_and_b32 v10, 7, v2
    v_mul_u32_u24 v%d, %d, v10
    v_lshl_add_u32 v%d, v3, 4, v%d
    s_mul_i32 s53, s40, %d
    s_add_u32 s53, s53, %d
    v_add_u32 v%d, s53, v%d
    v_cmp_gt_u32 s[64:65], 8, v2""" % (VT,PART_RS,VT,VT,PART_W,V_PART,VT,VT))
    a("""v_and_b32 v10, 1, v3
    s_lshl_b32 s53, s40, 1
    v_add_u32 v10, s53, v10              ; i
    v_mul_u32_u24 v%d, %d, v10
    v_lshl_add_u32 v%d, v2, 3, v%d
    v_add_u32 v%d, %d, v%d""" % (VT+1,PART_RS,VT+1,VT+1,VT+1,V_PART,VT+1))
    a("""v_and_b32 v11, 1, v2
    v_lshl_add_u32 v%d, v11, 3, v10
    v_lshrrev_b32 v11, 3, v2
    v_lshl_add_u32 v%d, v11, 4, v%d
    v_lshlrev_b32 v%d, 4, v%d
    v_bfe_u32 v11, v2, 1, 2
    v_lshl_add_u32 v%d, v11, 2, v%d
    s_lshr_b32 s53, s42, 1
    s_lshl_b32 s53, s53, 10
    s_and_b32 s54, s42, 1
    s_lshl_b32 s54, s54, 9
    s_add_u32 s53, s53, s54
    v_add_u32 v%d, s53, v%d
    v_cmp_gt_u32 s[62:63], 32, v1""" % ((VT+2,)*9))
    a("""v_lshlrev_b32 v%d, 4, v2
    v_and_b32 v11, 1, v3
    v_lshl_add_u32 v%d, v11, 3, v%d
    v_lshrrev_b32 v11, 1, v3
    v_lshl_add_u32 v%d, v11, 2, v%d""" % ((VT+3,)*5))
    a(f"""s_mul_i32 s66, s40, 28*1024
    s_lshl_b32 s53, s42, 11
    s_add_u32 s66, s66, s53
    s_add_u32 s66, s66, {MBL}
    s_lshl_b32 s53, s40, 2
    s_mul_i32 s56, s53, 28*1024
    s_lshl_b32 s53, s42, 11
    s_add_u32 s56, s56, s53
    s_add_u32 s56, s56, {VO}
    s_mov_b32 s57, {MEMX}
    s_mov_b32 s58, {PX}
    s_mov_b32 s59, 0
    s_mov_b32 s67, {FLAGS}
    v_mov_b32 v{VT+4}, 0""")
    a(f"""s_lshl_b32 s76, s40, 13
    s_add_u32 s76, s76, {V_ZST}
    v_add_u32 v{VT+6}, s76, v4
    s_mul_i32 s53, s40, {PART_W}
    s_add_u32 s53, s53, {V_PART}
    v_add_u32 v10, s53, v{VT+3}
    v_mov_b32 v15, v10
    v_add_u32 v11, s53, v4
    v_mov_b32 v9, v11""")
    def dma_zx_list():
        out=[]
        for hh in range(4):
            for ct in range(2):
                def f(hh=hh,ct=ct):
                    a(f"s_add_u32 m0, s76, {2048*hh}")
                    a(f"s_add_u32 s61, s56, {28*1024*hh}")
                    a(f"buffer_load_dwordx4 v4, s[36:39], s61 offen offset:{1024*ct} lds")
                out.append(f)
        return out
    def rd_zx():
        for hh in range(4):
            for ct in range(2):
                a(f"ds_read_b128 {vr(ZX+8*hh+4*ct,4)}, v{VT+6} offset:{2048*hh+1024*ct}")
    def wait_vo(tag):
        a.label(tag)
        spin_guard(a)
        a(f"buffer_load_dword v{VT+7}, v{VT+4}, s[36:39], s67 offen sc1")
        a("s_waitcnt vmcnt(0)")
        a(f"v_cmp_gt_u32 vcc, 224, v{VT+7}")
        a(f"s_cbranch_vccnz {tag}")
        a("s_add_u32 s67, s67, 128")
    wait_vo("VA_WVO0")
    for f in dma_zx_list(): f()
    a("s_waitcnt vmcnt(0)")
    rd_zx()
    a("s_waitcnt lgkmcnt(0)")
    a(f"s_add_u32 s56, s56, {16*28*1024}")
    a("s_barrier")
    stamp_init(a); rt_init(a,16)
    SEL=172
    a("""v_and_b32 v10, 7, v2                   ; key
    v_lshrrev_b32 v11, 3, v2               ; hd'
    v_lshrrev_b32 v16, 2, v10              ; key>>2
    v_and_b32 v17, 1, v3
    v_cmp_eq_u32 vcc, v16, v17             ; cond
    v_and_b32 v16, 3, v10
    v_lshl_add_u32 v16, v11, 2, v16
    v_and_b32 v17, 1, v16
    v_lshlrev_b32 v17, 4, v17
    v_mov_b32 v18, 0x3f80
    v_lshlrev_b32 v18, v17, v18
    v_cndmask_b32 v18, 0, v18, vcc
    v_lshrrev_b32 v16, 1, v16""")
    for r in range(4):
        a(f"v_cmp_eq_u32 vcc, {r}, v16")
        a("s_nop 1")
        a(f"v_cndmask_b32 v{SEL+r}, 0, v18, vcc")
    a(f"""v_lshrrev_b32 v10, 1, v3
    v_lshl_add_u32 v10, v10, 4, v2
    v_lshlrev_b32 v10, 4, v10
    v_and_b32 v11, 1, v3
    v_lshl_add_u32 v{VT+3}, v11, 3, v10""")
    a.label("VA_LOOP")
    L=LdsQ(a)
    wl={}
    def rd_wl(k):
        buf=VWLT+8*(k&1)
        off=14336*(k//7)+2048*(k%7)
        L.issue(f"ds_read_b128 {vr(buf,4)}, v12 offset:{off}")
        wl[k]=L.issue(f"ds_read_b128 {vr(buf+4,4)}, v12 offset:{off+1024}")
    rd_wl(0); rd_wl(1)
    for r in range(32): a(f"v_mov_b32 v{ACC+r}, 0")
    poll_mem2(a, "VA_POLL", "s57", PXR, PXR+8, VT+7, V_MEM, C=(PMR if os.environ.get("K3") else None), slp=int(os.environ.get("VSLEEP","0")))
    L.done=L.n
    stamp(a,0); rt(a,0)
    aop={}
    for b in range(7): aop[b]=L.issue(f"ds_read_b128 {vr(AOP+4*b,4)}, v4 offset:{V_MEM+1024*b}")
    a("""s_and_b32 s60, s59, 3
    s_cmp_eq_u32 s60, 3
    s_cbranch_scc0 VA_NOW
    s_cmp_ge_u32 s59, 60
    s_cbranch_scc1 VA_NOW""")
    wait_vo("VA_WVO")
    a.label("VA_NOW")
    dz=dma_zx_list()
    k=0; nr=0
    for t in range(6):
        for b in range(7):
            L.wait(aop[b])
            a(f"v_smfmac_f32_16x16x64_bf16 {vr(ACC+4*t,4)}, {vr(AOP+4*b,4)}, {wfrag(7*t+b)}, v{IDX}")
            nr+=1
            if nr%4==2 and dz: dz.pop(0)()
            if nr%3==0:
                L.wait(wl[k])
                a(f"v_smfmac_f32_16x16x64_bf16 {vr(ACC+4*(6+k//7),4)}, {vr(AOP+4*(k%7),4)}, {vr(VWLT+8*(k&1),8)}, v{IDX}")
                if k+2<14: rd_wl(k+2)
                k+=1
    assert k==14
    a("s_nop 7")
    stamp(a,3)
    for pp in range(2):
        for ct in range(2):
            x=ACC+4*(4*pp+ct); y=ACC+4*(4*pp+2+ct)
            a(f"v_cvt_pk_bf16_f32 v{x}, v{x}, v{x+1}")
            a(f"v_cvt_pk_bf16_f32 v{x+1}, v{x+2}, v{x+3}")
            a(f"v_cvt_pk_bf16_f32 v{x+2}, v{y}, v{y+1}")
            a(f"v_cvt_pk_bf16_f32 v{x+3}, v{y+2}, v{y+3}")
    a("s_nop 1")
    for pp in range(2):
        for ct in range(2):
            x=ACC+4*(4*pp+ct); y=ACC+4*(4*pp+2+ct)
            a(f"v_mfma_f32_16x16x32_bf16 {vr(y,4)}, {vr(SEL,4)}, {vr(x,4)}, 0")
    a("s_nop 4")
    for pp in range(2):
        for ct in range(2):
            y=ACC+4*(4*pp+2+ct)
            a(f"v_cvt_pk_bf16_f32 v{y}, v{y}, v{y+1}")
            a(f"v_cvt_pk_bf16_f32 v{y+1}, v{y+2}, v{y+3}")
    a(f"s_cmp_eq_u32 s59, {NSTEPS}")
    a("s_cbranch_scc1 VA_LASTX")
    for pp in range(2):
        for ct in range(2):
            y=ACC+4*(4*pp+2+ct)
            a(f"buffer_store_dwordx2 {vr(y,2)}, v{VT+3}, s[36:39], s66 offen offset:{1024*ct+512*pp}")
    a(f"s_add_u32 s66, s66, {4*28*1024}")
    stamp(a,4)
    if PROF==2:
        a("s_waitcnt vmcnt(4)")
        stamp(a,11)
        a("s_waitcnt vmcnt(0)")
        stamp(a,12)
    a("s_barrier")
    poll_mem2(a, "VA_POLLP", "s58", PXR, AOP, VT+7, V_P, addrs=(5,8,7), C=(AOP+12 if os.environ.get("K3") else None))
    a("s_waitcnt vmcnt(3)")
    for hh in range(4):
        a(f"ds_read_b128 {vr(ZB+4*hh,4)}, v13 offset:{V_P+640*hh}")
        a(f"ds_read_b64 {vr(PMR+2*hh,2)}, v14 offset:{V_P+640*hh}")
    fst=[True,True]
    for hh in range(4):
        a(f"s_waitcnt lgkmcnt({6-2*hh})")
        for ct in range(2):
            c="0" if fst[ct] else vr(OACC+4*ct,4); fst[ct]=False
            a(f"v_mfma_f32_16x16x32_bf16 {vr(OACC+4*ct,4)}, {vr(ZX+8*hh+4*ct,4)}, {vr(ZB+4*hh,4)}, {c}")
    for pp in range(2):
        for ct in range(2):
            a(f"v_mfma_f32_16x16x32_bf16 {vr(OACC+4*ct,4)}, {vr(ACC+4*(4*pp+ct),4)}, {vr(PMR+4*pp,4)}, {vr(OACC+4*ct,4)}")
    a.label("VA_PJ")
    stamp(a,5); rt(a,1)
    a(f"""s_add_u32 s57, s57, 7168
    s_add_u32 s56, s56, {16*28*1024}
    s_add_u32 s58, s58, 10240
    s_add_u32 s59, s59, 1
    s_mov_b64 exec, s[64:65]
    s_nop 2""")
    for ct in range(2): a(f"ds_write_b128 v{VT}, {vr(OACC+4*ct,4)} offset:{64*ct}")
    a("s_mov_b64 exec, -1")
    a("s_waitcnt lgkmcnt(0)")
    a("s_barrier")
    stamp(a,6)
    T=ZX
    for w in range(4): a(f"ds_read_b64 {vr(T+2*w,2)}, v{VT+1} offset:{PART_W*w}")
    a("s_waitcnt lgkmcnt(2)")
    a(f"v_pk_add_f32 {vr(T,2)}, {vr(T,2)}, {vr(T+2,2)}")
    a("s_waitcnt lgkmcnt(0)")
    a(f"v_pk_add_f32 {vr(T+4,2)}, {vr(T+4,2)}, {vr(T+6,2)}")
    a(f"v_pk_add_f32 {vr(T,2)}, {vr(T,2)}, {vr(T+4,2)}")
    a(f"v_cvt_pk_bf16_f32 v{VT+5}, v{T}, v{T+1}")
    a(f"v_min_u32 v{VT+5}, 0xfffffffe, v{VT+5}")
    a("s_mov_b64 exec, s[62:63]")
    a(f"buffer_store_dword v{VT+5}, v{VT+2}, s[36:39], s57 offen")
    a("s_mov_b64 exec, -1")
    s59fix=True
    stamp(a,7); rt(a,2)
    a("s_waitcnt vmcnt(1)")
    rd_zx()
    stamp(a,8)
    a("s_branch VA_LOOP")
    a.label("VA_LASTX")
    a(f"s_add_u32 s66, s66, {MB-MBL}")
    for pp in range(2):
        for ct in range(2):
            y=ACC+4*(4*pp+2+ct)
            a(f"buffer_store_dwordx2 {vr(y,2)}, v{VT+3}, s[36:39], s66 offen offset:{1024*ct+512*pp} sc1")
    a(f"""s_waitcnt vmcnt(0)
    s_barrier
    s_cmp_eq_u32 s40, 0
    s_cbranch_scc0 VA_END
    s_mov_b64 exec, 1
    v_mov_b32 v10, 0
    v_mov_b32 v11, 1
    s_mov_b32 s60, {FLAGS+128*(32+63)}
    buffer_atomic_add v11, v10, s[36:39], s60 offen
    s_mov_b64 exec, -1""")
    a.label("VA_END")
    stamp_dump(a,16)
    a("s_endpgm")

def helper(a):
    a.label("K2_HELPER")
    wait_ws(a,"HE_WXN",178,257)
    a("""v_lshlrev_b32 v5, 4, v0                 ; chunk t
    v_add_u32 v6, 4096, v5
    v_cmp_gt_u32 vcc, 192, v0
    s_nop 1
    v_cndmask_b32 v6, v5, v6, vcc
    v_lshlrev_b32 v4, 4, v1
    s_mul_i32 s48, s40, 28672               ; wave's 28 KB part
    s_mul_i32 s49, s42, %d
    s_add_u32 s48, s48, s49
    s_add_u32 s56, s48, %d                  ; src
    s_add_u32 s58, s48, %d                  ; dst
    s_mul_i32 s49, s42, 7168
    s_add_u32 s57, s49, %d                  ; MEMX[s+1]
    s_mov_b32 s59, s42
    s_lshl_b32 s49, s42, 7
    s_add_u32 s67, s49, %d                  ; CH flags
    v_mov_b32 v7, 0
    v_mov_b32 v8, 1""" % (4*28*1024, MBL, MB, MEMX+7168, FLAGS+128*32))
    rt_init(a,30)
    a.label("HE_LOOP")
    a.label("HE_POLL")
    spin_guard(a)
    a("""buffer_load_dwordx4 v[16:19], v5, s[36:39], s57 offen sc1
    buffer_load_dwordx4 v[20:23], v6, s[36:39], s57 offen sc1
    s_waitcnt vmcnt(0)
    v_max3_u32 v9, v16, v17, v18
    v_max3_u32 v9, v9, v19, v20
    v_max3_u32 v9, v9, v21, v22
    v_max_u32 v9, v9, v23
    v_cmp_eq_u32 vcc, -1, v9
    s_cbranch_vccz HE_POK
    s_sleep %s
    s_branch HE_POLL""" % os.environ.get("HSLEEP","6"))
    a.label("HE_POK")
    a("s_barrier")
    a(f"s_add_u32 s61, s57, {MEMN-MEMX}")
    a("buffer_store_dwordx4 v[16:19], v5, s[36:39], s61 offen sc1")
    a("buffer_store_dwordx4 v[20:23], v6, s[36:39], s61 offen sc1")
    for j in range(28):
        a(f"s_add_u32 s60, s56, {1024*(j&~3)}")
        a(f"buffer_load_dwordx4 {vr(32+4*j,4)}, v4, s[36:39], s60 offen offset:{1024*(j&3)} sc1")
    a("s_waitcnt vmcnt(28)")
    a("""s_barrier
    s_cmp_eq_u32 s40, 0
    s_cbranch_scc0 HE_NOM
    s_mov_b64 exec, 1
    s_add_u32 s60, s67, %d
    buffer_atomic_add v8, v7, s[36:39], s60 offen
    s_mov_b64 exec, -1""" % (128*(400+1-32)))
    a.label("HE_NOM")
    for j in range(28):
        a(f"s_waitcnt vmcnt(27)")
        a(f"s_add_u32 s60, s58, {1024*(j&~3)}")
        a(f"buffer_store_dwordx4 {vr(32+4*j,4)}, v4, s[36:39], s60 offen offset:{1024*(j&3)} sc1")
    a("""s_waitcnt vmcnt(0)
    s_barrier
    s_cmp_eq_u32 s40, 0
    s_cbranch_scc0 HE_NOF
    s_mov_b64 exec, 1
    buffer_atomic_add v8, v7, s[36:39], s67 offen
    s_mov_b64 exec, -1""")
    a.label("HE_NOF")
    rt(a,0)
    a(f"""s_add_u32 s56, s56, {2*4*28*1024}
    s_add_u32 s58, s58, {2*4*28*1024}
    s_add_u32 s57, s57, {2*7168}
    s_add_u32 s67, s67, 256
    s_add_u32 s59, s59, 2
    s_cmp_lt_u32 s59, 63
    s_cbranch_scc1 HE_LOOP
    s_endpgm""")

def wait_dbg(a, tag, off, target):
    a.label(tag)
    spin_guard(a)
    a(f"""v_mov_b32 v8, {off}
    buffer_load_dword v9, v8, s[44:47], 0 offen sc1
    s_waitcnt vmcnt(0)
    v_readfirstlane_b32 s75, v9
    s_cmp_ge_u32 s75, {target}
    s_cbranch_scc1 {tag}_OK
    s_sleep 2
    s_branch {tag}""")
    a.label(tag+"_OK")

def wait_ws(a, tag, idx, target):
    a.label(tag)
    spin_guard(a)
    a(f"""v_mov_b32 v8, 0
    s_mov_b32 s74, {FLAGS+128*idx}
    buffer_load_dword v9, v8, s[36:39], s74 offen sc1
    s_waitcnt vmcnt(0)
    v_readfirstlane_b32 s75, v9
    s_cmp_ge_u32 s75, {target}
    s_cbranch_scc1 {tag}_OK
    s_sleep 2
    s_branch {tag}""")
    a.label(tag+"_OK")

def sig_ws(a, soff, inc=1):
    sig_ws.n+=1
    a(f"""s_cmp_eq_u32 s40, 0
    s_cbranch_scc0 SG_{sig_ws.n}
    s_mov_b64 exec, 1
    v_mov_b32 v8, 0
    v_mov_b32 v9, {inc}
    buffer_atomic_add v9, v8, s[36:39], {soff} offen
    s_mov_b64 exec, -1""")
    a.label(f"SG_{sig_ws.n}")
sig_ws.n=0

def chain_phase0(a):
    a.label("K2_CH0")
    a("s_mov_b32 s93, s42")
    a("""s_cmp_eq_u32 s40, 0
    s_cbranch_scc0 C0_A
    s_mov_b64 exec, 1
    s_lshr_b32 s60, s2, 5
    s_lshl_b32 s60, s60, 2
    s_add_u32 s60, s60, 64
    v_mov_b32 v8, s60
    s_and_b32 s60, s2, 31
    s_lshl_b32 s60, 1, s60
    v_mov_b32 v9, s60
    buffer_atomic_or v9, v8, s[44:47], 0 offen
    s_mov_b64 exec, -1""")
    a.label("C0_A")
    a.label("C0_LN")
    a("s_cmp_eq_u32 s93, 0")
    a("s_cbranch_scc0 C0_LNRET")
    a("s_mov_b32 s41, 256")
    a("s_mov_b32 s98, 1")
    a("s_branch K2_LN")
    a.label("C0_LNRET")
    a("s_waitcnt vmcnt(0)")
    srd(a,44,32,256)
    wait_dbg(a,"C0_WI",36,16)
    a("s_barrier")
    a("s_cmp_eq_u32 s93, 0")
    a("s_cselect_b32 s61, 2, 1")
    a(f"""s_cmp_eq_u32 s40, 0
    s_cbranch_scc0 C0_B
    s_mov_b64 exec, 1
    v_mov_b32 v8, 0
    v_mov_b32 v9, s61
    s_mov_b32 s60, {FLAGS+128*178}
    buffer_atomic_add v9, v8, s[36:39], s60 offen
    s_mov_b64 exec, -1""")
    a.label("C0_B")
    a("s_mov_b32 s42, s93")

def k2():
    a=Asm()
    a("s_cmp_ge_u32 s2, 256"); a("s_cbranch_scc1 K2_EXIT")
    if PROF==3: a("s_memrealtime s[78:79]")
    prologue(a)
    srd(a,44,32,256)
    a("s_mov_b32 s99, 3000000")
    a("s_cmp_lt_u32 s2, 16")
    a("s_cbranch_scc0 K2_NOINIT")
    a("s_mov_b32 s41, s2")
    k1_init(a)
    a("""s_waitcnt vmcnt(0)
    s_barrier
    s_cmp_eq_u32 s40, 0
    s_cbranch_scc0 K2_NOINIT
    s_mov_b64 exec, 1
    v_mov_b32 v8, 36
    v_mov_b32 v9, 1
    buffer_atomic_add v9, v8, s[44:47], 0 offen
    s_mov_b64 exec, -1""")
    a.label("K2_NOINIT")
    a("s_mov_b32 s41, s2")
    a("s_mov_b32 s98, 0")
    a.label("K2_LN")
    k1_ln(a)
    a("s_cmp_eq_u32 s98, 0")
    a("s_cbranch_scc0 C0_LNRET")
    srd(a,44,32,256)
    a("""s_getreg_b32 s41, hwreg(HW_REG_XCC_ID)
    s_and_b32 s41, s41, 7
    s_cmp_eq_u32 s40, 0
    s_cbranch_scc0 K2_WAITROLE
    s_mov_b64 exec, 1
    v_mov_b32 v2, s41
    v_lshlrev_b32 v2, 2, v2
    v_mov_b32 v3, 1
    buffer_atomic_add v3, v2, s[44:47], 0 offen sc0
    s_waitcnt vmcnt(0)
    v_cmp_eq_u32 vcc, 31, v3
    s_cbranch_vccz K2_POLLCH
    v_mov_b32 v4, s41
    v_add_u32 v4, 1, v4
    v_mov_b32 v5, 0
    v_mov_b32 v2, 32
    buffer_atomic_cmpswap v[4:5], v2, s[44:47], 0 offen
    s_waitcnt vmcnt(0)""")
    a.label("K2_POLLCH")
    spin_guard(a)
    a("""v_mov_b32 v2, 32
    buffer_load_dword v4, v2, s[44:47], 0 offen sc1
    s_waitcnt vmcnt(0)
    v_cmp_eq_u32 vcc, 0, v4
    s_cbranch_vccnz K2_POLLCH
    v_mov_b32 v2, 0
    v_mov_b32 v6, v3
    v_mov_b32 v7, v4
    ds_write_b64 v2, v[6:7]
    s_waitcnt lgkmcnt(0)
    s_mov_b64 exec, -1""")
    a.label("K2_WAITROLE")
    a("""s_barrier
    v_mov_b32 v2, 0
    ds_read_b64 v[4:5], v2
    s_waitcnt lgkmcnt(0)
    v_readfirstlane_b32 s42, v4
    v_readfirstlane_b32 s43, v5
    s_barrier
    s_sub_u32 s43, s43, 1
    s_cmp_eq_u32 s41, s43
    s_cbranch_scc0 K2_WORKER
    s_cmp_lt_u32 s42, 32
    s_cbranch_scc0 K2_WORKER""")
    chain_phase0(a)
    a("""s_cmp_lt_u32 s42, 16
    s_cbranch_scc1 K2_SCORE
    s_cmp_lt_u32 s42, 30
    s_cbranch_scc0 K2_H0
    s_sub_u32 s42, s42, 16
    s_branch K2_VALUE""")
    a.label("K2_H0")
    a("""s_sub_u32 s42, s42, 30
    s_branch K2_HELPER""")
    a.label("K2_EXIT"); a("s_endpgm")
    a.label("K2_ABORT")
    srd(a,44,32,256)
    a("""s_mov_b64 exec, 1
    v_mov_b32 v2, 60
    v_mov_b32 v3, 1
    buffer_atomic_add v3, v2, s[44:47], 0 offen
    s_endpgm""")
    score(a); value(a); helper(a)
    a.label("K2_WORKER")
    import gen3
    gen3.worker(a)
    return a.text()

def kernels():
    ks=[("k2_kernel",k2(),256,256,V_ZST+32768,512,256)]
    try:
        import gen3
        ks+=gen3.kernels()
    except ImportError: pass
    return ks
```

```python
from gen import *
import os

def gemm_wave(a, MI, NI, KS, sA, strideA, sB, strideB, vlane, bufA, bufB, modsB="", modsA="", CH=4):
    nch=KS//CH
    assert KS%CH==0
    tmp="s60"
    def ldA(mi,c):
        for k in range(CH):
            off=(c*CH+k)*1024
            a(f"s_add_u32 {tmp}, {sA}, {mi*strideA+(off//4096)*4096}")
            a(f"buffer_load_dwordx4 {vr(bufA+(mi*CH+k)*4,4)}, v{vlane}, s[36:39], {tmp} offen offset:{off%4096} {modsA}")
    def ldB(ni,c):
        for k in range(CH):
            off=(c*CH+k)*1024
            a(f"s_add_u32 {tmp}, {sB}, {ni*strideB+(off//4096)*4096}")
            a(f"buffer_load_dwordx4 {vr(bufB+((c&1)*NI*CH+ni*CH+k)*4,4)}, v{vlane}, s[36:39], {tmp} offen offset:{off%4096} {modsB}")
    q=[]
    def issue(tag,n): q.extend([tag]*n)
    def wait(tag):
        idx=max(i for i,t in enumerate(q) if t==tag)
        n=len(q)-1-idx
        a(f"s_waitcnt vmcnt({min(n,63)})")
    for ni in range(NI): ldB(ni,0); issue(("B",0),CH)
    for mi in range(MI): ldA(mi,0); issue(("A",mi,0),CH)
    for c in range(nch):
        if c+1<nch:
            pass
        for mi in range(MI):
            if mi==0: wait(("B",c))
            wait(("A",mi,c))
            for k in range(CH):
                for ni in range(NI):
                    acc=ar(16*(mi*NI+ni),16)
                    cc="0" if (c==0 and k==0) else acc
                    a(f"v_mfma_f32_32x32x16_bf16 {acc}, {vr(bufA+(mi*CH+k)*4,4)}, {vr(bufB+((c&1)*NI*CH+ni*CH+k)*4,4)}, {cc}")
            if c+1<nch:
                per=-(-NI//min(MI,2))
                for ni in range(mi*per, min(NI,(mi+1)*per)):
                    ldB(ni,c+1); issue(("B",c+1),CH)
                ldA(mi,c+1); issue(("A",mi,c+1),CH)

def gemm_wg(a, KS, sA, strideA, sB, strideB, modsA="", modsB="", tag="G", lds0=0, MI=4, NI=4):
    CH=4; nch=KS//CH; assert KS%CH==0
    ABY=2*MI*CH*1024; BBY=2*NI*CH*1024; STG=ABY+BBY
    nA=(2*MI)//4; nB=(2*NI)//4
    a(f"""s_mul_i32 s62, s40, {nA*strideA}
    s_add_u32 s62, s62, {sA}
    s_mul_i32 s63, s40, {nB*strideB}
    s_add_u32 s63, s63, {sB}
    s_mul_i32 s64, s40, {nA*CH*1024}
    s_add_u32 s64, s64, {lds0}
    s_mul_i32 s65, s40, {nB*CH*1024}
    s_add_u32 s65, s65, {lds0+ABY}
    s_lshr_b32 s60, s40, 1
    s_mul_i32 s60, s60, {MI*CH*1024}
    s_add_u32 s60, s60, {lds0}
    v_add_u32 v12, s60, v4
    s_and_b32 s60, s40, 1
    s_mul_i32 s60, s60, {NI*CH*1024}
    s_add_u32 s60, s60, {lds0+ABY}
    v_add_u32 v13, s60, v4
    v_add_u32 v14, {STG}, v12
    v_add_u32 v15, {STG}, v13""")
    def dma(c):
        st=(c&1)*STG
        for r in range(nA):
            a(f"s_add_u32 m0, s64, {st+r*CH*1024}")
            a(f"s_add_u32 s60, s62, {r*strideA+c*CH*1024}")
            for k in range(CH): a(f"buffer_load_dwordx4 v4, s[36:39], s60 offen offset:{1024*k} lds {modsA}")
        for r in range(nB):
            a(f"s_add_u32 m0, s65, {st+r*CH*1024}")
            a(f"s_add_u32 s60, s63, {r*strideB+c*CH*1024}")
            for k in range(CH): a(f"buffer_load_dwordx4 v4, s[36:39], s60 offen offset:{1024*k} lds {modsB}")
    FA=16; FB=FA+2*MI*4
    def rd(c,k,set_):
        va,vb=(12,13) if (c&1)==0 else (14,15)
        for mi in range(MI): a(f"ds_read_b128 {vr(FA+(set_*MI+mi)*4,4)}, v{va} offset:{(mi*CH+k)*1024}")
        for ni in range(NI): a(f"ds_read_b128 {vr(FB+(set_*NI+ni)*4,4)}, v{vb} offset:{(ni*CH+k)*1024}")
    a("s_barrier")
    dma(0)
    for c in range(nch):
        a("s_waitcnt vmcnt(0)")
        a("s_barrier")
        rd(c,0,0)
        if c+1<nch: dma(c+1)
        for k in range(CH):
            if k+1<CH:
                rd(c,k+1,(k+1)&1)
                a(f"s_waitcnt lgkmcnt({MI+NI})")
            else:
                a("s_waitcnt lgkmcnt(0)")
            for mi in range(MI):
                for ni in range(NI):
                    acc=ar(16*(mi*NI+ni),16)
                    cc="0" if (c==0 and k==0) else acc
                    if os.environ.get("NOMFMA") and not (c==0 and k==0): continue
                    a(f"v_mfma_f32_32x32x16_bf16 {acc}, {vr(FA+((k&1)*MI+mi)*4,4)}, {vr(FB+((k&1)*NI+ni)*4,4)}, {cc}")

def acc_read(a, dst, mi, ni, NI, n=16):
    for r in range(n): a(f"v_accvgpr_read_b32 v{dst+r}, a{16*(mi*NI+ni)+r}")

def vo_epilogue(a, MI, NI, srb, sct, inc):
    a("v_lshl_add_u32 v7, v5, 10, v6")
    a("s_nop 7"); a("s_nop 7")
    for ni in range(NI):
        a(f"""s_mul_i32 s58, {sct}, {NI}
        s_add_u32 s58, s58, {ni}
        s_mul_i32 s59, s58, 4682
        s_lshr_b32 s59, s59, 16            ; h = R/14
        s_mul_i32 s61, s59, 14
        s_sub_u32 s61, s58, s61            ; dt32
        s_mul_i32 s59, s59, 28
        s_lshl_b32 s61, s61, 1
        s_add_u32 s59, s59, s61
        s_mul_i32 s61, {srb}, {MI*16*28}
        s_add_u32 s59, s59, s61
        s_lshl_b32 s59, s59, 10
        s_add_u32 s59, s59, {VO}""")
        for mi in range(MI):
            acc_read(a, 16, mi, ni, NI)
            for j in range(4):
                a(f"v_cvt_pk_bf16_f32 v{32+2*j}, v{16+4*j}, v{17+4*j}")
                a(f"v_cvt_pk_bf16_f32 v{33+2*j}, v{18+4*j}, v{19+4*j}")
            a(f"s_add_u32 s61, s59, {mi*16*28*1024}")
            for j in range(0 if os.environ.get('NOST') else 4):
                a(f"buffer_store_dwordx2 {vr(32+2*j,2)}, v7, s[36:39], s61 offen offset:{256*j} sc1")
    a(f"""s_waitcnt vmcnt(0)
    s_mul_i32 s58, {srb}, {MI}
    s_lshr_b32 s58, s58, 2
    s_lshl_b32 s58, s58, 7
    s_add_u32 s58, s58, {FLAGS}
    s_mov_b64 exec, 1
    v_mov_b32 v8, 0
    v_mov_b32 v9, {inc}
    buffer_atomic_add v9, v8, s[36:39], s58 offen
    s_mov_b64 exec, -1""")

NQ=7
W_BCAST=140000
def wait_flag(a, tag, sidx_expr_reg, target):
    a.label(tag)
    a("s_sub_u32 s99, s99, 1"); a("s_cbranch_scc1 K2_ABORT")
    a(f"buffer_load_dword v9, v8, s[36:39], {sidx_expr_reg} offen sc1")
    a("s_waitcnt vmcnt(0)")
    a("v_readfirstlane_b32 s47, v9")
    a(f"s_cmp_ge_u32 s47, {target}")
    a(f"s_cbranch_scc1 {tag}_OK")
    a("s_sleep 8")
    a(f"s_branch {tag}")
    a.label(tag+"_OK")

def signal(a, soff):
    a(f"""s_waitcnt vmcnt(0)
    s_mov_b64 exec, 1
    v_mov_b32 v8, 0
    v_mov_b32 v9, 1
    buffer_atomic_add v9, v8, s[36:39], {soff} offen
    s_mov_b64 exec, -1""")

def token_tasks(a):
    import gen4
    a.label("W_TOK")
    a.label("TK_LOOP")
    a(f"""s_cmp_ge_u32 s66, {64*65}
    s_cbranch_scc1 TK_END
    s_mul_i32 s67, s66, 64528
    s_lshr_b32 s67, s67, 22            ; seg = G/65
    s_mul_i32 s68, s67, 65
    s_sub_u32 s68, s66, s68            ; k
    v_mov_b32 v8, 0
    s_lshl_b32 s69, s67, 7             ; seg*128
    s_cmp_lt_u32 s68, 16
    s_cbranch_scc1 TK_S
    s_cmp_lt_u32 s68, 23
    s_cbranch_scc1 TK_V
    s_cmp_lt_u32 s68, 51
    s_cbranch_scc1 TK_F1
    s_branch TK_F2""")
    a.label("TK_S")
    a(f"s_add_u32 s46, s69, {FLAGS+128*400}")
    wait_flag(a,"TK_S_W1","s46",1)
    a(f"""s_lshr_b32 s46, s67, 2
    s_lshl_b32 s46, s46, 7
    s_add_u32 s46, s46, {FLAGS+128*128}""")
    wait_flag(a,"TK_S_W2","s46",56)
    gen4.t3s_body(a,"s67","s68","TK")
    a(f"s_add_u32 s46, s69, {FLAGS+128*192}")
    signal(a,"s46")
    a("s_branch TK_NEXT")
    a.label("TK_V")
    a("s_sub_u32 s68, s68, 16")
    a(f"s_add_u32 s46, s69, {FLAGS+128*192}")
    wait_flag(a,"TK_V_W1","s46",16)
    a(f"""s_lshr_b32 s46, s67, 2
    s_lshl_b32 s46, s46, 7
    s_add_u32 s46, s46, {FLAGS}""")
    wait_flag(a,"TK_V_W2","s46",224)
    a(f"s_add_u32 s46, s69, {FLAGS+128*32}")
    wait_flag(a,"TK_V_W3","s46",1)
    gen4.t3v_body(a,"s67","s68")
    a(f"s_add_u32 s46, s69, {FLAGS+128*256}")
    signal(a,"s46")
    a("s_branch TK_NEXT")
    a.label("TK_F1")
    a("s_sub_u32 s68, s68, 23")
    a(f"s_add_u32 s46, s69, {FLAGS+128*256}")
    wait_flag(a,"TK_F1_W","s46",7)
    gen4.f1_body(a,"s67","s68",1)
    a(f"s_add_u32 s46, s69, {FLAGS+128*320}")
    signal(a,"s46")
    a("s_branch TK_NEXT")
    a.label("TK_F2")
    a("s_sub_u32 s68, s68, 51")
    a(f"s_add_u32 s46, s69, {FLAGS+128*320}")
    wait_flag(a,"TK_F2_W","s46",28)
    gen4.f2_body(a,"s67","s68",1,1)
    a.label("TK_NEXT")
    a("""s_add_u32 s66, s66, 896
    s_branch TK_LOOP""")
    a.label("TK_END")
    a("s_endpgm")

def worker(a):
    import gen2
    a("s_mov_b32 s97, s43")
    a.label("W_BM")
    a("s_sub_u32 s99, s99, 1"); a("s_cbranch_scc1 K2_ABORT")
    a("""v_mov_b32 v8, 64
    buffer_load_dwordx4 v[16:19], v8, s[44:47], 0 offen sc1
    buffer_load_dwordx4 v[20:23], v8, s[44:47], 0 offen offset:16 sc1
    s_waitcnt vmcnt(0)""")
    for k in range(8): a(f"v_readfirstlane_b32 s{50+k}, v{16+k}")
    a("s_mov_b32 s60, 0")
    for k in range(8):
        a(f"s_bcnt1_i32_b32 s61, s{50+k}"); a("s_add_u32 s60, s60, s61")
    a("""s_cmp_ge_u32 s60, 32
    s_cbranch_scc1 W_BMOK
    s_sleep 1
    s_branch W_BM""")
    a.label("W_BMOK")
    a("""s_lshr_b32 s62, s2, 5
    s_and_b32 s63, s2, 31
    s_lshl_b32 s63, 1, s63
    s_sub_u32 s63, s63, 1
    s_mov_b32 s60, 0""")
    for k in range(8):
        a(f"""s_cmp_lt_u32 {k}, s62
        s_cselect_b32 s61, -1, 0
        s_cmp_eq_u32 {k}, s62
        s_cselect_b32 s61, s63, s61
        s_and_b32 s61, s61, s{50+k}
        s_bcnt1_i32_b32 s61, s61
        s_add_u32 s60, s60, s61""")
    a("""s_sub_u32 s95, s2, s60          ; wid 0..223
    s_lshl_b32 s66, s95, 2
    s_add_u32 s66, s66, s40
    s_mov_b32 s92, 0""")
    a("""s_mul_i32 s60, s95, 9363
    s_lshr_b32 s60, s60, 16            ; wid/7
    s_mul_i32 s61, s60, 7
    s_sub_u32 s61, s95, s61            ; wid%7
    s_lshl_b32 s61, s61, 5
    s_add_u32 s61, s61, s60            ; L
    s_mul_i32 s41, s61, 9363
    s_lshr_b32 s41, s41, 16            ; mat
    s_mul_i32 s60, s41, 7
    s_sub_u32 s42, s61, s60            ; nb
    s_mov_b32 s96, s41
    s_barrier""")
    k1_ab(a)
    a("s_waitcnt vmcnt(0)")
    srd(a,44,32,256)
    gen2.wait_dbg(a,"W_WI",36,16)
    a("s_barrier")
    a(f"""s_lshl_b32 s60, s96, 7
    s_add_u32 s60, s60, {FLAGS+128*144}""")
    gen2.sig_ws(a,"s60")
    a(f"""s_cmp_ge_u32 s96, 16
    s_cselect_b32 s60, 128, 0
    s_add_u32 s60, s60, {FLAGS+128*176}""")
    gen2.sig_ws(a,"s60")
    a(f"s_mov_b32 s60, {FLAGS+128*178}")
    gen2.sig_ws(a,"s60")
    gen2.wait_ws(a,"W_WB",177,112)
    gen2.wait_ws(a,"W_WX",178,257)
    a("s_getreg_b32 s41, hwreg(HW_REG_XCC_ID)")
    a("s_and_b32 s41, s41, 7")
    a("""s_cmp_gt_u32 s41, s97
    s_cselect_b32 s90, 1, 0
    s_sub_u32 s90, s41, s90
    s_min_u32 s90, s90, 6
    s_mov_b32 s91, 0
    v_lshlrev_b32 v4, 4, v1            ; lane*16
    v_and_b32 v2, 31, v1
    v_lshrrev_b32 v3, 5, v1            ; hi""")
    a("""v_lshrrev_b32 v5, 4, v2
    v_and_b32 v6, 15, v2
    v_lshlrev_b32 v6, 4, v6
    v_lshl_add_u32 v6, v3, 3, v6""")
    a.label("W_NEXT")
    a("""v_lshlrev_b32 v4, 4, v1
    v_and_b32 v2, 31, v1
    v_lshrrev_b32 v3, 5, v1
    v_lshrrev_b32 v5, 4, v2
    v_and_b32 v6, 15, v2
    v_lshlrev_b32 v6, 4, v6
    v_lshl_add_u32 v6, v3, 3, v6""")
    a("s_cmp_eq_u32 s40, 0")
    a("s_cbranch_scc0 W_BC")
    a(f"""s_mov_b64 exec, 1
    s_lshl_b32 s50, s90, 7
    s_add_u32 s50, s50, {FLAGS+128*100}
    v_mov_b32 v8, 0
    v_mov_b32 v9, 117
    s_cmp_eq_u32 s91, 0
    s_cbranch_scc1 W_ATOM
    buffer_load_dword v9, v8, s[36:39], s50 offen sc1
    s_waitcnt vmcnt(0)
    v_readfirstlane_b32 s51, v9
    s_cmp_lt_u32 s51, 117
    s_cbranch_scc0 W_WR""")
    a.label("W_ATOM")
    a("""v_mov_b32 v9, 1
    buffer_atomic_add v9, v8, s[36:39], s50 offen sc0
    s_waitcnt vmcnt(0)""")
    a.label("W_WR")
    a(f"""v_mov_b32 v8, {W_BCAST}
    ds_write_b32 v8, v9
    s_waitcnt lgkmcnt(0)
    s_mov_b64 exec, -1""")
    a.label("W_BC")
    a(f"""s_barrier
    v_mov_b32 v8, {W_BCAST}
    ds_read_b32 v9, v8
    s_waitcnt lgkmcnt(0)
    v_readfirstlane_b32 s51, v9
    s_barrier
    s_cmp_lt_u32 s51, 117
    s_cbranch_scc1 W_GOT
    s_add_u32 s90, s90, 1
    s_cmp_ge_u32 s90, 7
    s_cselect_b32 s90, 0, s90
    s_add_u32 s91, s91, 1
    s_cmp_lt_u32 s91, 7
    s_cbranch_scc1 W_NEXT
    s_branch W_TOK""")
    a.label("W_GOT")
    a("s_cmp_lt_u32 s51, 32")
    a("s_cbranch_scc1 W_VS")
    a("s_cmp_lt_u32 s51, 61")
    a("s_cbranch_scc1 W_PREP")
    a("s_sub_u32 s51, s51, 29")
    a("""s_sub_u32 s53, s51, 24
    s_mov_b32 s52, 0
    s_cmp_lt_u32 s51, 56
    s_cbranch_scc1 W_DEC
    s_sub_u32 s53, s51, 56
    s_mov_b32 s52, 1""")
    a.label("W_DEC")
    a("""s_lshr_b32 s54, s53, 2             ; rb256
    s_and_b32 s53, s53, 3
    s_lshl_b32 s55, s90, 2
    s_add_u32 s55, s55, s53            ; ct256 (0..27)
    s_mul_i32 s56, s54, 8*28*1024      ; XN offset
    s_add_u32 s56, s56, %d
    s_mul_i32 s57, s55, 8*28*1024      ; W rows
    s_cmp_eq_u32 s52, 0
    s_cbranch_scc0 W_T""" % XN)
    a(f"s_add_u32 s57, s57, {WTB}")
    gemm_wg(a,28,"s56",28*1024,"s57",28*1024)
    a("""s_lshl_b32 s54, s54, 1
    s_lshr_b32 s58, s40, 1
    s_add_u32 s54, s54, s58
    s_lshl_b32 s55, s55, 1
    s_and_b32 s58, s40, 1
    s_add_u32 s55, s55, s58""")
    vo_epilogue(a,4,4,"s54","s55",4)
    a("s_branch W_NEXT")
    a.label("W_PREP")
    a("""s_sub_u32 s51, s51, 32
    s_cmp_lt_u32 s51, 21
    s_cbranch_scc0 W_PCS
    s_mul_i32 s41, s90, 21
    s_add_u32 s41, s41, s51""")
    a("s_barrier")
    k1_tr(a, k2=True)
    a("s_branch W_PDONE")
    a.label("W_PCS")
    a("""s_sub_u32 s51, s51, 21
    s_lshl_b32 s41, s90, 3
    s_add_u32 s41, s41, s51""")
    a("s_barrier")
    k1_cs(a, k2=True)
    a.label("W_PDONE")
    a(f"""s_waitcnt vmcnt(0)
    s_barrier
    s_cmp_eq_u32 s40, 0
    s_cbranch_scc0 W_NEXT
    s_mov_b64 exec, 1
    s_mov_b32 s58, {FLAGS+128*122}
    v_mov_b32 v8, 0
    v_mov_b32 v9, 1
    buffer_atomic_add v9, v8, s[36:39], s58 offen
    s_mov_b64 exec, -1
    s_branch W_NEXT""")
    a.label("W_VS")
    a("""s_lshr_b32 s54, s51, 3             ; rb128
    s_and_b32 s53, s51, 7
    s_lshl_b32 s55, s90, 3
    s_add_u32 s55, s55, s53            ; ct128
    s_mul_i32 s56, s54, 4*28*1024
    s_add_u32 s56, s56, %d
    s_mul_i32 s57, s55, 4*28*1024
    s_add_u32 s57, s57, %d""" % (XN, WTB))
    gemm_wg(a,28,"s56",28*1024,"s57",28*1024,MI=2,NI=2)
    a("""s_lshr_b32 s59, s54, 0
    s_lshl_b32 s54, s54, 1
    s_lshr_b32 s58, s40, 1
    s_add_u32 s54, s54, s58
    s_lshl_b32 s55, s55, 1
    s_and_b32 s58, s40, 1
    s_add_u32 s55, s55, s58""")
    vo_epilogue(a,2,2,"s54","s55",1)
    a("s_branch W_NEXT")
    a.label("W_T")
    gen2.wait_ws(a,"W_WA",176,112)
    a(f"s_add_u32 s57, s57, {WTA}")
    gemm_wg(a,28,"s57",28*1024,"s56",28*1024)
    a("""s_lshl_b32 s54, s54, 1
    s_and_b32 s58, s40, 1
    s_add_u32 s54, s54, s58
    s_lshl_b32 s55, s55, 1
    s_lshr_b32 s58, s40, 1
    s_add_u32 s55, s55, s58""")
    a("""v_mul_u32_u24 v7, 16*14*1024, v5
    v_add_u32 v7, v7, v6""")
    a("s_nop 7"); a("s_nop 7")
    for mi in range(4):
        a(f"""s_lshl_b32 s58, s55, 2
        s_add_u32 s58, s58, {mi}
        s_mul_i32 s59, s58, 4682
        s_lshr_b32 s59, s59, 16            ; h
        s_mul_i32 s61, s59, 14
        s_sub_u32 s61, s58, s61            ; ks32
        s_mul_i32 s59, s59, 14
        s_add_u32 s59, s59, s61
        s_lshl_b32 s61, s54, 3
        s_mul_i32 s61, s61, 16*14
        s_add_u32 s59, s59, s61
        s_lshl_b32 s59, s59, 10
        s_add_u32 s59, s59, {TX}""")
        for ni in range(4):
            acc_read(a, 16, mi, ni, 4)
            for j in range(4):
                a(f"v_cvt_pk_bf16_f32 v{32+2*j}, v{16+4*j}, v{17+4*j}")
                a(f"v_cvt_pk_bf16_f32 v{33+2*j}, v{18+4*j}, v{19+4*j}")
            a(f"s_add_u32 s61, s59, {ni*2*16*14*1024}")
            for j in range(0 if os.environ.get('NOST') else 4):
                a(f"buffer_store_dwordx2 {vr(32+2*j,2)}, v7, s[36:39], s61 offen offset:{256*j} sc1")
    a(f"""s_waitcnt vmcnt(0)
    s_lshl_b32 s58, s54, 7
    s_add_u32 s58, s58, {FLAGS+128*128}
    s_mov_b64 exec, 1
    v_mov_b32 v8, 0
    v_mov_b32 v9, 1
    buffer_atomic_add v9, v8, s[36:39], s58 offen
    s_mov_b64 exec, -1
    s_branch W_NEXT""")
    import gen5
    gen5.token_tasks(a)

def kernels():
    try:
        import gen4
        return gen4.kernels()
    except ImportError:
        return []
```

```python
from gen import *
import os

def gemm_wave(a, MI, NI, KS, sA, strideA, sB, strideB, vlane, bufA, bufB, modsB="", modsA="", CH=4):
    nch=KS//CH
    assert KS%CH==0
    tmp="s60"
    def ldA(mi,c):
        for k in range(CH):
            off=(c*CH+k)*1024
            a(f"s_add_u32 {tmp}, {sA}, {mi*strideA+(off//4096)*4096}")
            a(f"buffer_load_dwordx4 {vr(bufA+(mi*CH+k)*4,4)}, v{vlane}, s[36:39], {tmp} offen offset:{off%4096} {modsA}")
    def ldB(ni,c):
        for k in range(CH):
            off=(c*CH+k)*1024
            a(f"s_add_u32 {tmp}, {sB}, {ni*strideB+(off//4096)*4096}")
            a(f"buffer_load_dwordx4 {vr(bufB+((c&1)*NI*CH+ni*CH+k)*4,4)}, v{vlane}, s[36:39], {tmp} offen offset:{off%4096} {modsB}")
    q=[]
    def issue(tag,n): q.extend([tag]*n)
    def wait(tag):
        idx=max(i for i,t in enumerate(q) if t==tag)
        n=len(q)-1-idx
        a(f"s_waitcnt vmcnt({min(n,63)})")
    for ni in range(NI): ldB(ni,0); issue(("B",0),CH)
    for mi in range(MI): ldA(mi,0); issue(("A",mi,0),CH)
    for c in range(nch):
        if c+1<nch:
            pass
        for mi in range(MI):
            if mi==0: wait(("B",c))
            wait(("A",mi,c))
            for k in range(CH):
                for ni in range(NI):
                    acc=ar(16*(mi*NI+ni),16)
                    cc="0" if (c==0 and k==0) else acc
                    a(f"v_mfma_f32_32x32x16_bf16 {acc}, {vr(bufA+(mi*CH+k)*4,4)}, {vr(bufB+((c&1)*NI*CH+ni*CH+k)*4,4)}, {cc}")
            if c+1<nch:
                per=-(-NI//min(MI,2))
                for ni in range(mi*per, min(NI,(mi+1)*per)):
                    ldB(ni,c+1); issue(("B",c+1),CH)
                ldA(mi,c+1); issue(("A",mi,c+1),CH)

def gemm_wg(a, KS, sA, strideA, sB, strideB, modsA="", modsB="", tag="G", lds0=0, MI=4, NI=4):
    CH=4; nch=KS//CH; assert KS%CH==0
    ABY=2*MI*CH*1024; BBY=2*NI*CH*1024; STG=ABY+BBY
    nA=(2*MI)//4; nB=(2*NI)//4
    a(f"""s_mul_i32 s62, s40, {nA*strideA}
    s_add_u32 s62, s62, {sA}
    s_mul_i32 s63, s40, {nB*strideB}
    s_add_u32 s63, s63, {sB}
    s_mul_i32 s64, s40, {nA*CH*1024}
    s_add_u32 s64, s64, {lds0}
    s_mul_i32 s65, s40, {nB*CH*1024}
    s_add_u32 s65, s65, {lds0+ABY}
    s_lshr_b32 s60, s40, 1
    s_mul_i32 s60, s60, {MI*CH*1024}
    s_add_u32 s60, s60, {lds0}
    v_add_u32 v12, s60, v4
    s_and_b32 s60, s40, 1
    s_mul_i32 s60, s60, {NI*CH*1024}
    s_add_u32 s60, s60, {lds0+ABY}
    v_add_u32 v13, s60, v4
    v_add_u32 v14, {STG}, v12
    v_add_u32 v15, {STG}, v13""")
    def dma(c):
        st=(c&1)*STG
        for r in range(nA):
            a(f"s_add_u32 m0, s64, {st+r*CH*1024}")
            a(f"s_add_u32 s60, s62, {r*strideA+c*CH*1024}")
            for k in range(CH): a(f"buffer_load_dwordx4 v4, s[36:39], s60 offen offset:{1024*k} lds {modsA}")
        for r in range(nB):
            a(f"s_add_u32 m0, s65, {st+r*CH*1024}")
            a(f"s_add_u32 s60, s63, {r*strideB+c*CH*1024}")
            for k in range(CH): a(f"buffer_load_dwordx4 v4, s[36:39], s60 offen offset:{1024*k} lds {modsB}")
    FA=16; FB=FA+2*MI*4
    def rd(c,k,set_):
        va,vb=(12,13) if (c&1)==0 else (14,15)
        for mi in range(MI): a(f"ds_read_b128 {vr(FA+(set_*MI+mi)*4,4)}, v{va} offset:{(mi*CH+k)*1024}")
        for ni in range(NI): a(f"ds_read_b128 {vr(FB+(set_*NI+ni)*4,4)}, v{vb} offset:{(ni*CH+k)*1024}")
    a("s_barrier")
    dma(0)
    for c in range(nch):
        a("s_waitcnt vmcnt(0)")
        a("s_barrier")
        rd(c,0,0)
        if c+1<nch: dma(c+1)
        for k in range(CH):
            if k+1<CH:
                rd(c,k+1,(k+1)&1)
                a(f"s_waitcnt lgkmcnt({MI+NI})")
            else:
                a("s_waitcnt lgkmcnt(0)")
            for mi in range(MI):
                for ni in range(NI):
                    acc=ar(16*(mi*NI+ni),16)
                    cc="0" if (c==0 and k==0) else acc
                    if os.environ.get("NOMFMA") and not (c==0 and k==0): continue
                    a(f"v_mfma_f32_32x32x16_bf16 {acc}, {vr(FA+((k&1)*MI+mi)*4,4)}, {vr(FB+((k&1)*NI+ni)*4,4)}, {cc}")

def acc_read(a, dst, mi, ni, NI, n=16):
    for r in range(n): a(f"v_accvgpr_read_b32 v{dst+r}, a{16*(mi*NI+ni)+r}")

def vo_epilogue(a, MI, NI, srb, sct, inc):
    a("""v_and_b32 v7, 15, v2
    v_lshl_add_u32 v7, v3, 4, v7
    v_lshlrev_b32 v7, 4, v7
    v_lshl_add_u32 v7, v5, 10, v7""")
    a("s_nop 7"); a("s_nop 7")
    for ni in range(NI):
        a(f"""s_mul_i32 s58, {sct}, {NI}
        s_add_u32 s58, s58, {ni}
        s_mul_i32 s59, s58, 4682
        s_lshr_b32 s59, s59, 16            ; h = R/14
        s_mul_i32 s61, s59, 14
        s_sub_u32 s61, s58, s61            ; dt32
        s_mul_i32 s59, s59, 28
        s_lshl_b32 s61, s61, 1
        s_add_u32 s59, s59, s61
        s_mul_i32 s61, {srb}, {MI*16*28}
        s_add_u32 s59, s59, s61
        s_lshl_b32 s59, s59, 10
        s_add_u32 s59, s59, {VO}""")
        for mi in range(MI):
            acc_read(a, 16, mi, ni, NI)
            for j in range(4):
                a(f"v_cvt_pk_bf16_f32 v{32+2*j}, v{16+4*j}, v{17+4*j}")
                a(f"v_cvt_pk_bf16_f32 v{33+2*j}, v{18+4*j}, v{19+4*j}")
            a(f"s_add_u32 s61, s59, {mi*16*28*1024}")
            a("s_nop 0")
            for j in (0,2):
                a(f"v_permlane32_swap_b32 v{32+2*j}, v{34+2*j}")
                a(f"v_permlane32_swap_b32 v{33+2*j}, v{35+2*j}")
            for j in (0,2):
                a(f"buffer_store_dwordx4 {vr(32+2*j,4)}, v7, s[36:39], s61 offen offset:{256*j} sc1")
            a("s_nop 1")
    a(f"""s_waitcnt vmcnt(0)
    s_mul_i32 s58, {srb}, {MI}
    s_lshr_b32 s58, s58, 2
    s_lshl_b32 s58, s58, 7
    s_add_u32 s58, s58, {FLAGS}
    s_mov_b64 exec, 1
    v_mov_b32 v8, 0
    v_mov_b32 v9, {inc}
    buffer_atomic_add v9, v8, s[36:39], s58 offen
    s_mov_b64 exec, -1""")

NQ=7
W_BCAST=140000
def wait_flag(a, tag, sidx_expr_reg, target):
    a.label(tag)
    a("s_sub_u32 s99, s99, 1"); a("s_cbranch_scc1 K2_ABORT")
    a(f"buffer_load_dword v9, v8, s[36:39], {sidx_expr_reg} offen sc1")
    a("s_waitcnt vmcnt(0)")
    a("v_readfirstlane_b32 s47, v9")
    a(f"s_cmp_ge_u32 s47, {target}")
    a(f"s_cbranch_scc1 {tag}_OK")
    a("s_sleep 8")
    a(f"s_branch {tag}")
    a.label(tag+"_OK")

def signal(a, soff):
    a(f"""s_waitcnt vmcnt(0)
    s_mov_b64 exec, 1
    v_mov_b32 v8, 0
    v_mov_b32 v9, 1
    buffer_atomic_add v9, v8, s[36:39], {soff} offen
    s_mov_b64 exec, -1""")

def token_tasks(a):
    import gen4
    a.label("W_TOK")
    a.label("TK_LOOP")
    a(f"""s_cmp_ge_u32 s66, {64*65}
    s_cbranch_scc1 TK_END
    s_mul_i32 s67, s66, 64528
    s_lshr_b32 s67, s67, 22            ; seg = G/65
    s_mul_i32 s68, s67, 65
    s_sub_u32 s68, s66, s68            ; k
    v_mov_b32 v8, 0
    s_lshl_b32 s69, s67, 7             ; seg*128
    s_cmp_lt_u32 s68, 16
    s_cbranch_scc1 TK_S
    s_cmp_lt_u32 s68, 23
    s_cbranch_scc1 TK_V
    s_cmp_lt_u32 s68, 51
    s_cbranch_scc1 TK_F1
    s_branch TK_F2""")
    a.label("TK_S")
    a(f"s_add_u32 s46, s69, {FLAGS+128*400}")
    wait_flag(a,"TK_S_W1","s46",1)
    a(f"""s_lshr_b32 s46, s67, 2
    s_lshl_b32 s46, s46, 7
    s_add_u32 s46, s46, {FLAGS+128*128}""")
    wait_flag(a,"TK_S_W2","s46",56)
    gen4.t3s_body(a,"s67","s68","TK")
    a(f"s_add_u32 s46, s69, {FLAGS+128*192}")
    signal(a,"s46")
    a("s_branch TK_NEXT")
    a.label("TK_V")
    a("s_sub_u32 s68, s68, 16")
    a(f"s_add_u32 s46, s69, {FLAGS+128*192}")
    wait_flag(a,"TK_V_W1","s46",16)
    a(f"""s_lshr_b32 s46, s67, 2
    s_lshl_b32 s46, s46, 7
    s_add_u32 s46, s46, {FLAGS}""")
    wait_flag(a,"TK_V_W2","s46",224)
    a(f"s_add_u32 s46, s69, {FLAGS+128*32}")
    wait_flag(a,"TK_V_W3","s46",1)
    gen4.t3v_body(a,"s67","s68")
    a(f"s_add_u32 s46, s69, {FLAGS+128*256}")
    signal(a,"s46")
    a("s_branch TK_NEXT")
    a.label("TK_F1")
    a("s_sub_u32 s68, s68, 23")
    a(f"s_add_u32 s46, s69, {FLAGS+128*256}")
    wait_flag(a,"TK_F1_W","s46",7)
    gen4.f1_body(a,"s67","s68",1)
    a(f"s_add_u32 s46, s69, {FLAGS+128*320}")
    signal(a,"s46")
    a("s_branch TK_NEXT")
    a.label("TK_F2")
    a("s_sub_u32 s68, s68, 51")
    a(f"s_add_u32 s46, s69, {FLAGS+128*320}")
    wait_flag(a,"TK_F2_W","s46",28)
    gen4.f2_body(a,"s67","s68",1,1)
    a.label("TK_NEXT")
    a("""s_add_u32 s66, s66, 896
    s_branch TK_LOOP""")
    a.label("TK_END")
    a("s_endpgm")

def worker(a):
    a("s_cmp_eq_u32 s40, 0")
    a("s_cbranch_scc0 W_TB")
    a(f"""s_mov_b64 exec, 1
    s_mov_b32 s50, {FLAGS+128*121}
    v_mov_b32 v8, 0
    v_mov_b32 v9, 1
    buffer_atomic_add v9, v8, s[36:39], s50 offen sc0
    s_waitcnt vmcnt(0)
    v_mov_b32 v8, {W_BCAST+16}
    ds_write_b32 v8, v9
    s_waitcnt lgkmcnt(0)
    s_mov_b64 exec, -1""")
    a.label("W_TB")
    a(f"""s_barrier
    v_mov_b32 v8, {W_BCAST+16}
    ds_read_b32 v9, v8
    s_waitcnt lgkmcnt(0)
    v_readfirstlane_b32 s66, v9
    s_lshl_b32 s66, s66, 2
    s_add_u32 s66, s66, s40""")
    a("""s_cmp_gt_u32 s41, s43
    s_cselect_b32 s90, 1, 0
    s_sub_u32 s90, s41, s90
    s_min_u32 s90, s90, 6
    s_mov_b32 s91, 0
    v_lshlrev_b32 v4, 4, v1            ; lane*16
    v_and_b32 v2, 31, v1
    v_lshrrev_b32 v3, 5, v1            ; hi""")
    a("""v_lshrrev_b32 v5, 4, v2
    v_and_b32 v6, 15, v2
    v_lshlrev_b32 v6, 4, v6
    v_lshl_add_u32 v6, v3, 3, v6""")
    a.label("W_NEXT")
    a("""v_lshlrev_b32 v4, 4, v1
    v_and_b32 v2, 31, v1
    v_lshrrev_b32 v3, 5, v1
    v_lshrrev_b32 v5, 4, v2
    v_and_b32 v6, 15, v2
    v_lshlrev_b32 v6, 4, v6
    v_lshl_add_u32 v6, v3, 3, v6""")
    a("s_cmp_eq_u32 s40, 0")
    a("s_cbranch_scc0 W_BC")
    a(f"""s_mov_b64 exec, 1
    s_lshl_b32 s50, s90, 7
    s_add_u32 s50, s50, {FLAGS+128*100}
    v_mov_b32 v8, 0
    v_mov_b32 v9, 117
    s_cmp_eq_u32 s91, 0
    s_cbranch_scc1 W_ATOM
    buffer_load_dword v9, v8, s[36:39], s50 offen sc1
    s_waitcnt vmcnt(0)
    v_readfirstlane_b32 s51, v9
    s_cmp_lt_u32 s51, 117
    s_cbranch_scc0 W_WR""")
    a.label("W_ATOM")
    a("""v_mov_b32 v9, 1
    buffer_atomic_add v9, v8, s[36:39], s50 offen sc0
    s_waitcnt vmcnt(0)""")
    a.label("W_WR")
    a(f"""v_mov_b32 v8, {W_BCAST}
    ds_write_b32 v8, v9
    s_waitcnt lgkmcnt(0)
    s_mov_b64 exec, -1""")
    a.label("W_BC")
    a(f"""s_barrier
    v_mov_b32 v8, {W_BCAST}
    ds_read_b32 v9, v8
    s_waitcnt lgkmcnt(0)
    v_readfirstlane_b32 s51, v9
    s_barrier
    s_cmp_lt_u32 s51, 117
    s_cbranch_scc1 W_GOT
    s_add_u32 s90, s90, 1
    s_cmp_ge_u32 s90, 7
    s_cselect_b32 s90, 0, s90
    s_add_u32 s91, s91, 1
    s_cmp_lt_u32 s91, 7
    s_cbranch_scc1 W_NEXT
    s_branch W_TOK""")
    a.label("W_GOT")
    a("s_cmp_lt_u32 s51, 32")
    a("s_cbranch_scc1 W_VS")
    a("s_cmp_lt_u32 s51, 61")
    a("s_cbranch_scc1 W_PREP")
    a("s_sub_u32 s51, s51, 29")
    a("""s_sub_u32 s53, s51, 24
    s_mov_b32 s52, 0
    s_cmp_lt_u32 s51, 56
    s_cbranch_scc1 W_DEC
    s_sub_u32 s53, s51, 56
    s_mov_b32 s52, 1""")
    a.label("W_DEC")
    a("""s_lshr_b32 s54, s53, 2             ; rb256
    s_and_b32 s53, s53, 3
    s_lshl_b32 s55, s90, 2
    s_add_u32 s55, s55, s53            ; ct256 (0..27)
    s_mul_i32 s56, s54, 8*28*1024      ; XN offset
    s_add_u32 s56, s56, %d
    s_mul_i32 s57, s55, 8*28*1024      ; W rows
    s_cmp_eq_u32 s52, 0
    s_cbranch_scc0 W_T""" % XN)
    a(f"s_add_u32 s57, s57, {WTB}")
    gemm_wg(a,28,"s56",28*1024,"s57",28*1024)
    a("""s_lshl_b32 s54, s54, 1
    s_lshr_b32 s58, s40, 1
    s_add_u32 s54, s54, s58
    s_lshl_b32 s55, s55, 1
    s_and_b32 s58, s40, 1
    s_add_u32 s55, s55, s58""")
    vo_epilogue(a,4,4,"s54","s55",4)
    a("s_branch W_NEXT")
    a.label("W_PREP")
    a("""s_sub_u32 s51, s51, 32
    s_cmp_lt_u32 s51, 21
    s_cbranch_scc0 W_PCS
    s_mul_i32 s41, s90, 21
    s_add_u32 s41, s41, s51""")
    a("s_barrier")
    k1_tr(a, k2=True)
    a("s_branch W_PDONE")
    a.label("W_PCS")
    a("""s_sub_u32 s51, s51, 21
    s_lshl_b32 s41, s90, 3
    s_add_u32 s41, s41, s51""")
    a("s_barrier")
    k1_cs(a, k2=True)
    a.label("W_PDONE")
    a(f"""s_waitcnt vmcnt(0)
    s_barrier
    s_cmp_eq_u32 s40, 0
    s_cbranch_scc0 W_NEXT
    s_mov_b64 exec, 1
    s_mov_b32 s58, {FLAGS+128*122}
    v_mov_b32 v8, 0
    v_mov_b32 v9, 1
    buffer_atomic_add v9, v8, s[36:39], s58 offen
    s_mov_b64 exec, -1
    s_branch W_NEXT""")
    a.label("W_VS")
    a("""s_lshr_b32 s54, s51, 3             ; rb128
    s_and_b32 s53, s51, 7
    s_lshl_b32 s55, s90, 3
    s_add_u32 s55, s55, s53            ; ct128
    s_mul_i32 s56, s54, 4*28*1024
    s_add_u32 s56, s56, %d
    s_mul_i32 s57, s55, 4*28*1024
    s_add_u32 s57, s57, %d""" % (XN, WTB))
    gemm_wg(a,28,"s56",28*1024,"s57",28*1024,MI=2,NI=2)
    a("""s_lshr_b32 s59, s54, 0
    s_lshl_b32 s54, s54, 1
    s_lshr_b32 s58, s40, 1
    s_add_u32 s54, s54, s58
    s_lshl_b32 s55, s55, 1
    s_and_b32 s58, s40, 1
    s_add_u32 s55, s55, s58""")
    vo_epilogue(a,2,2,"s54","s55",1)
    a("s_branch W_NEXT")
    a.label("W_T")
    a(f"s_add_u32 s57, s57, {WTA}")
    gemm_wg(a,28,"s57",28*1024,"s56",28*1024)
    a("""s_lshl_b32 s54, s54, 1
    s_and_b32 s58, s40, 1
    s_add_u32 s54, s54, s58
    s_lshl_b32 s55, s55, 1
    s_lshr_b32 s58, s40, 1
    s_add_u32 s55, s55, s58""")
    a("""v_and_b32 v6, 15, v2
    v_lshl_add_u32 v6, v3, 4, v6
    v_lshlrev_b32 v6, 4, v6
    v_mul_u32_u24 v7, 16*14*1024, v5
    v_add_u32 v7, v7, v6""")
    a("s_nop 7"); a("s_nop 7")
    for mi in range(4):
        a(f"""s_lshl_b32 s58, s55, 2
        s_add_u32 s58, s58, {mi}
        s_mul_i32 s59, s58, 4682
        s_lshr_b32 s59, s59, 16            ; h
        s_mul_i32 s61, s59, 14
        s_sub_u32 s61, s58, s61            ; ks32
        s_mul_i32 s59, s59, 14
        s_add_u32 s59, s59, s61
        s_lshl_b32 s61, s54, 3
        s_mul_i32 s61, s61, 16*14
        s_add_u32 s59, s59, s61
        s_lshl_b32 s59, s59, 10
        s_add_u32 s59, s59, {TX}""")
        for ni in range(4):
            acc_read(a, 16, mi, ni, 4)
            for j in range(4):
                a(f"v_cvt_pk_bf16_f32 v{32+2*j}, v{16+4*j}, v{17+4*j}")
                a(f"v_cvt_pk_bf16_f32 v{33+2*j}, v{18+4*j}, v{19+4*j}")
            a(f"s_add_u32 s61, s59, {ni*2*16*14*1024}")
            a("s_nop 0")
            for j in (0,2):
                a(f"v_permlane32_swap_b32 v{32+2*j}, v{34+2*j}")
                a(f"v_permlane32_swap_b32 v{33+2*j}, v{35+2*j}")
            for j in (0,2):
                a(f"buffer_store_dwordx4 {vr(32+2*j,4)}, v7, s[36:39], s61 offen offset:{256*j} sc1")
            a("s_nop 1")
    a(f"""s_waitcnt vmcnt(0)
    s_lshl_b32 s58, s54, 7
    s_add_u32 s58, s58, {FLAGS+128*128}
    s_mov_b64 exec, 1
    v_mov_b32 v8, 0
    v_mov_b32 v9, 1
    buffer_atomic_add v9, v8, s[36:39], s58 offen
    s_mov_b64 exec, -1
    s_branch W_NEXT""")
    import gen5
    gen5.token_tasks(a)

def kernels():
    try:
        import gen4
        return gen4.kernels()
    except ImportError:
        return []
```

```python
from gen import *
import os
NSTEPS=int(os.environ.get("NSTEPS","63"))

def spin_guard(a):
    a("s_sub_u32 s99, s99, 1")
    a("s_cbranch_scc1 K2_ABORT")

def poll_mem(a, tag, soff, va, vb, d0, d1, tmp):
    a.label(tag)
    spin_guard(a)
    a(f"buffer_load_dwordx4 {vr(d0,4)}, v{va}, s[36:39], {soff} offen sc1")
    a(f"buffer_load_dwordx4 {vr(d1,4)}, v{vb}, s[36:39], {soff} offen sc1")
    a("s_waitcnt vmcnt(0)")
    a(f"v_max3_u32 v{tmp}, v{d0}, v{d0+1}, v{d0+2}")
    a(f"v_max3_u32 v{tmp}, v{tmp}, v{d0+3}, v{d1}")
    a(f"v_max3_u32 v{tmp}, v{tmp}, v{d1+1}, v{d1+2}")
    a(f"v_max_u32 v{tmp}, v{tmp}, v{d1+3}")
    a(f"v_cmp_eq_u32 vcc, -1, v{tmp}")
    a(f"s_cbranch_vccnz {tag}")

PROF=int(os.environ.get("PROF","0"))
STAMPS=0x1720000
def stamp(a,k):
    if PROF not in (1,2): return
    a(f"""s_memtime s[70:71]
    s_waitcnt lgkmcnt(0)
    s_sub_u32 s72, s70, s73
    s_add_u32 s{80+k}, s{80+k}, s72
    s_mov_b32 s73, s70""")
TSB=0x1740000
def rt(a, ev):
    if PROF!=3: return
    rt.n+=1
    a(f"""s_cmp_eq_u32 s40, 0
    s_cbranch_scc0 RT_{rt.n}
    s_memrealtime s[70:71]
    s_waitcnt lgkmcnt(0)
    s_lshl_b32 s72, s59, 4
    s_add_u32 s72, s72, s77
    s_mov_b64 s[74:75], exec
    s_mov_b64 exec, 1
    v_mov_b32 v11, s70
    v_mov_b32 v10, 0
    buffer_store_dword v11, v10, s[36:39], s72 offen offset:{4*ev}
    s_mov_b64 exec, s[74:75]""")
    a.label(f"RT_{rt.n}")
rt.n=0
def rt_init(a, base):
    if PROF!=3: return
    a(f"""s_add_u32 s77, s42, {base}
    s_lshl_b32 s77, s77, 10
    s_add_u32 s77, s77, {TSB}
    s_mov_b64 exec, 1
    v_mov_b32 v11, s78
    v_mov_b32 v10, 0
    buffer_store_dword v11, v10, s[36:39], s77 offen offset:12
    v_mov_b32 v11, s80
    buffer_store_dword v11, v10, s[36:39], s77 offen offset:28
    s_mov_b64 exec, -1""")
def stamp_init(a):
    if PROF not in (1,2): return
    for k in range(16): a(f"s_mov_b32 s{80+k}, 0")
    a("s_memtime s[70:71]"); a("s_waitcnt lgkmcnt(0)"); a("s_mov_b32 s73, s70")
def stamp_dump(a, base_add):
    if PROF not in (1,2): return
    a(f"""s_add_u32 s74, s42, {base_add}
    s_lshl_b32 s74, s74, 2
    s_add_u32 s74, s74, s40
    s_lshl_b32 s74, s74, 6
    s_add_u32 s74, s74, {STAMPS}
    s_mov_b64 exec, 1
    v_mov_b32 v2, 0""")
    for k in range(16):
        a(f"v_mov_b32 v3, s{80+k}")
        a(f"buffer_store_dword v3, v2, s[36:39], s74 offen offset:{4*k}")
    a("s_mov_b64 exec, -1")

AOP=16; IDX=44; ACC=48
def wfrag(i):
    return ar(8*i,8) if i<32 else vr(176+8*(i-32),8)
def wfrag_half(i,h):
    return ar(8*i+4*h,4) if i<32 else vr(176+8*(i-32)+4*h,4)

class LdsQ:
    def __init__(self,a): self.a=a; self.n=0; self.done=0
    def issue(self, s): self.a(s); self.n+=1; return self.n
    def wait(self, op):
        if op<=self.done: return
        k=self.n-op
        self.a(f"s_waitcnt lgkmcnt({min(k,15)})") if k<=15 else None
        assert k<=15
        self.done=op
    def wait_all(self):
        self.a("s_waitcnt lgkmcnt(0)"); self.done=self.n

def chain_common_setup(a):
    a("""v_and_b32 v2, 15, v1
    v_lshrrev_b32 v3, 4, v1
    v_lshlrev_b32 v4, 4, v1                 ; lane*16
    v_lshlrev_b32 v5, 4, v0                 ; chunk t
    v_add_u32 v6, 4096, v5
    v_cmp_gt_u32 vcc, 192, v0
    s_nop 1
    v_cndmask_b32 v6, v5, v6, vcc           ; chunk t+256 (or t)
    v_mov_b32 v%d, 0x4444
    v_mov_b32 v9, 0xeeee
    v_cmp_gt_u32 vcc, 8, v2
    s_nop 1
    v_cndmask_b32 v%d, v9, v%d, vcc""" % (IDX,IDX,IDX))

def poll_mem2(a, tag, soff, A, B, tmp, lds_base, addrs=(5,6), C=None, slp=0):
    n=len(addrs)
    sets=[A,B]+([C] if C is not None else [])
    K=len(sets)
    def issue(R):
        for k,v in enumerate(addrs): a(f"buffer_load_dwordx4 {vr(R+4*k,4)}, v{v}, s[36:39], {soff} offen sc1")
    def check(R):
        regs=[R+i for i in range(4*n)]
        a(f"v_max3_u32 v{tmp}, v{regs[0]}, v{regs[1]}, v{regs[2]}")
        i=3
        while i+1<len(regs): a(f"v_max3_u32 v{tmp}, v{tmp}, v{regs[i]}, v{regs[i+1]}"); i+=2
        if i<len(regs): a(f"v_max_u32 v{tmp}, v{tmp}, v{regs[i]}")
        a(f"v_cmp_eq_u32 vcc, -1, v{tmp}")
    np_=int(os.environ.get("PNOP","2" if K==2 else "1"))
    for i,R in enumerate(sets):
        issue(R)
        if i<K-1:
            for _ in range(np_): a("s_nop 15")
    a.label(tag)
    spin_guard(a)
    if PROF in (1,2): a("s_add_u32 s89, s89, 63")
    for i,R in enumerate(sets):
        a(f"s_waitcnt vmcnt({n*(K-1)})")
        check(R)
        a(f"s_cbranch_vccz {tag}_D{i}")
        if slp: a(f"s_sleep {slp}")
        issue(R)
    a(f"s_branch {tag}")
    for i,R in enumerate(sets):
        a.label(f"{tag}_D{i}")
        for k,v in enumerate(addrs): a(f"ds_write_b128 v{v}, {vr(R+4*k,4)} offset:{lds_base}")
        if i<K-1: a(f"s_branch {tag}_J")
    a.label(f"{tag}_J")
    a("s_waitcnt lgkmcnt(0)")
    a("s_barrier")

def load_wtile(a, soff_sreg, vlane, frags, ldsinfo=None):
    for b in range(7):
        a(f"s_add_u32 s60, {soff_sreg}, {4096*b}")
        if frags is not None:
            a(f"buffer_load_dwordx4 {wfrag_half(frags[b],0)}, v{vlane}, s[36:39], s60 offen")
            a(f"buffer_load_dwordx4 {wfrag_half(frags[b],1)}, v{vlane}, s[36:39], s60 offen offset:2048")
        else:
            va, boff, tmp = ldsinfo
            a(f"buffer_load_dwordx4 {vr(tmp+8*b,4)}, v{vlane}, s[36:39], s60 offen")
            a(f"buffer_load_dwordx4 {vr(tmp+8*b+4,4)}, v{vlane}, s[36:39], s60 offen offset:2048")
    if frags is None:
        va, boff, tmp = ldsinfo
        a("s_waitcnt vmcnt(0)")
        for b in range(7):
            a(f"ds_write_b128 v{va}, {vr(tmp+8*b,4)} offset:{boff+2048*b}")
            a(f"ds_write_b128 v{va}, {vr(tmp+8*b+4,4)} offset:{boff+2048*b+1024}")
        a("s_waitcnt lgkmcnt(0)")

TT_RS=32
S_MEM=0; S_TT=7168; S_RED=S_TT+4*3584; RED_RS=272; RED_W=16*RED_RS; S_WL=S_RED+4*RED_W+64; S_KST=S_WL+4*14336
KX=76; KM=108; TOP=124; SACC=132; WLT=144
def score(a):
    a.label("K2_SCORE")
    if PROF==3: a("s_memrealtime s[80:81]"); a("s_waitcnt lgkmcnt(0)")
    chain_common_setup(a)
    a("""s_mul_i32 s48, s40, 112
    s_and_b32 s49, s40, 1
    s_lshl_b32 s50, s49, 4
    s_add_u32 s50, s48, s50              ; qa
    s_cmp_eq_u32 s49, 0
    s_cselect_b32 s51, 96, 0
    s_add_u32 s51, s48, s51              ; qs
    s_mul_i32 s52, s42, 14*28*1024
    s_add_u32 s52, s52, %d               ; head base""" % WTA)
    a("""v_lshrrev_b32 v9, 1, v3
    v_lshlrev_b32 v9, 10, v9
    v_and_b32 v10, 1, v3
    v_lshl_add_u32 v9, v10, 9, v9
    v_lshl_add_u32 v9, v2, 4, v9
    s_mul_i32 s53, s40, 14336
    s_add_u32 s53, s53, %d
    v_add_u32 v12, s53, v4               ; WL lds addr""" % S_WL)
    for u in range(7):
        if u<6: a(f"s_add_u32 s54, s50, {16*u}")
        else: a("s_mov_b32 s54, s51")
        a("""s_lshr_b32 s55, s54, 5
        s_mul_i32 s55, s55, 28*1024
        s_and_b32 s56, s54, 31
        s_lshl_b32 s56, s56, 4
        s_add_u32 s55, s55, s56
        s_add_u32 s55, s55, s52""")
        if u<6: load_wtile(a, "s55", 9, [7*u+b for b in range(7)])
        else: load_wtile(a, "s55", 9, None, (12, 0, 48))
    a("""s_mul_i32 s53, s40, 3584
    s_add_u32 s53, s53, %d
    v_and_b32 v10, 1, v3
    v_lshlrev_b32 v10, 1, v10
    v_lshrrev_b32 v11, 1, v3
    v_add_u32 v10, v10, v11
    v_lshlrev_b32 v13, 4, v2
    v_lshl_add_u32 v13, v10, 2, v13
    v_add_u32 v13, s53, v13               ; TT write addr""" % S_TT)
    a("""v_lshrrev_b32 v10, 2, v2              ; r
    v_and_b32 v11, 1, v2                  ; cc&1
    v_lshl_add_u32 v15, v3, 3, v10        ; 8g + r
    v_lshlrev_b32 v15, 4, v15
    v_lshl_add_u32 v15, v11, 3, v15
    v_add_u32 v15, s53, v15               ; addr p=0
    v_add_u32 v14, 64, v15""")
    a("""s_lshl_b32 s53, s49, 8
    v_subrev_u32 v160, s53, v15
    v_subrev_u32 v161, s53, v14
    v_lshrrev_b32 v10, 1, v3
    v_cmp_eq_u32 s[64:65], s49, v10
    s_nop 1
    v_cndmask_b32 v160, v15, v160, s[64:65]
    v_cndmask_b32 v161, v14, v161, s[64:65]
    v_cndmask_b32 v45, 0, -1, s[64:65]    ; and-mask""")
    a("""v_and_b32 v10, 7, v2
    v_lshl_add_u32 v10, v3, 4, v10
    v_lshlrev_b32 v10, 4, v10""")
    for m in range(4):
        if m<3: a(f"s_lshr_b32 s53, s50, 5\ns_add_u32 s53, s53, {m}")
        else: a("s_lshr_b32 s53, s51, 5")
        a(f"""s_lshr_b32 s54, s53, 1
        s_lshl_b32 s54, s54, 10
        s_and_b32 s55, s53, 1
        s_lshl_b32 s55, s55, 7
        s_add_u32 s54, s54, s55
        v_add_u32 v{162+m}, s54, v10""")
    a("""s_lshr_b32 s53, s50, 5
    s_lshl_b32 s53, s53, 10
    v_add_u32 v166, s53, v4
    s_lshr_b32 s53, s51, 5
    s_lshl_b32 s53, s53, 10
    v_add_u32 v167, s53, v4""")
    a("""s_mul_i32 s53, s40, %d
    s_add_u32 s53, s53, %d
    v_mul_u32_u24 v168, %d, v2
    v_lshl_add_u32 v168, v3, 4, v168
    v_add_u32 v168, s53, v168""" % (RED_W,S_RED,RED_RS))
    a("""v_add_u32 v10, 2, v2
    v_cmp_gt_u32 vcc, 2, v2
    s_nop 1
    v_cndmask_b32 v10, v10, v2, vcc
    v_min_u32 v10, 11, v10
    v_and_b32 v11, 1, v3
    s_lshl_b32 s53, s40, 1
    v_add_u32 v11, s53, v11               ; i
    v_mul_u32_u24 v169, %d, v11
    v_lshl_add_u32 v169, v10, 4, v169
    v_add_u32 v169, %d, v169              ; RED read addr
    v_subrev_u32 v10, 2, v2               ; q-2
    v_lshrrev_b32 v170, 1, v10
    v_lshlrev_b32 v170, 7, v170
    v_lshl_add_u32 v170, v11, 4, v170
    v_and_b32 v10, 1, v10
    v_lshl_add_u32 v170, v10, 3, v170     ; x part offset
    v_lshlrev_b32 v10, 6, v2
    v_lshl_add_u32 v10, v11, 3, v10
    v_add_u32 v10, 512, v10               ; mem part offset
    v_cmp_gt_u32 vcc, 2, v2
    s_nop 1
    v_cndmask_b32 v170, v170, v10, vcc
    s_mul_i32 s53, s42, 640
    v_add_u32 v170, s53, v170             ; P store voffset
    v_cmp_gt_u32 s[62:63], 10, v2
    v_cmp_gt_u32 vcc, 32, v1
    s_and_b64 s[62:63], s[62:63], vcc
    v_mov_b32 v46, 0xff7fffff
    s_mov_b32 s68, 0x3fb8aa3b""" % (RED_RS,S_RED))
    a(f"""s_lshl_b32 s76, s40, 13
    s_add_u32 s76, s76, {S_KST}
    v_add_u32 v171, s76, v4""")
    def dma_kx_list():
        out=[]
        for kt in range(2):
            for m in range(4):
                def f(kt=kt,m=m):
                    a(f"s_add_u32 m0, s76, {4096*kt+1024*m - (1024*m if m<3 else 0)}")
                    a(f"s_add_u32 s61, s56, {14*1024*kt}")
                    if m<3: a(f"buffer_load_dwordx4 v166, s[36:39], s61 offen offset:{1024*m} lds")
                    else: a(f"buffer_load_dwordx4 v167, s[36:39], s61 offen lds")
                out.append(f)
        return out
    def rd_kx():
        for kt in range(2):
            for m in range(4):
                a(f"ds_read_b128 {vr(KX+16*kt+4*m,4)}, v171 offset:{4096*kt+1024*m}")
    a(f"s_mov_b32 s56, {XNP}")
    a(f"s_mov_b32 s57, {MEMX}")
    a(f"s_mov_b32 s58, {PX}")
    a("s_mov_b32 s59, 0")
    for f in dma_kx_list(): f()
    a("s_waitcnt vmcnt(0)")
    rd_kx()
    a("s_waitcnt lgkmcnt(0)")
    a(f"s_add_u32 s56, s56, {2*14*1024}")
    for f in dma_kx_list(): f()
    a("s_barrier")
    stamp_init(a); rt_init(a,0)
    a.label("SC_LOOP")
    L=LdsQ(a)
    wl={}
    def rd_wl(k):
        buf=WLT+8*(k&1)
        L.issue(f"ds_read_b128 {vr(buf,4)}, v12 offset:{2048*k}")
        wl[k]=L.issue(f"ds_read_b128 {vr(buf+4,4)}, v12 offset:{2048*k+1024}")
    rd_wl(0); rd_wl(1)
    for r in range(28): a(f"v_mov_b32 v{ACC+r}, 0")
    poll_mem2(a, "SC_POLL", "s57", KM, KM+8, 47, S_MEM, C=(TOP if os.environ.get("K3") else None))
    L.done=L.n
    stamp(a,0); rt(a,0)
    aop={}
    for b in range(7): aop[b]=L.issue(f"ds_read_b128 {vr(AOP+4*b,4)}, v4 offset:{S_MEM+1024*b}")
    order=[(u,b) for b in range(2) for u in range(6)]+[(u,b) for u in range(6) for b in range(2,7)]
    seq=[]; k=0; nr=0
    for (u,b) in order:
        seq.append(("r",u,b)); nr+=1
        if nr%4==0 and k<7: seq.append(("l",6,k)); k+=1
    assert k==7 and len(seq)==49
    last={}
    for n,(t,u,b) in enumerate(seq): last[u]=n
    acts={}
    def at(n,f): acts.setdefault(n,[]).append(f)
    trd={}; kmr=[None]; first=[True]
    def km_read():
        a("s_waitcnt vmcnt(0)")
        for m in range(4): kmr[0]=L.issue(f"ds_read_b128 {vr(KM+4*m,4)}, v{162+m} offset:{S_MEM}")
    def cvt_write(u):
        def f():
            x=ACC+4*u
            a(f"v_permlane32_swap_b32 v{x}, v{x+2}")
            a(f"v_permlane32_swap_b32 v{x+1}, v{x+3}")
            a("s_nop 0")
            a(f"v_add_f32 v{x}, v{x}, v{x+2}")
            a(f"v_add_f32 v{x+1}, v{x+1}, v{x+3}")
            a(f"v_cvt_pk_bf16_f32 v{x}, v{x}, v{x+1}")
            L.issue(f"ds_write_b32 v13, v{x} offset:{256*u}")
        return f
    def tr_read(m):
        def f():
            t=TOP+4*(m&1) if m<3 else 172
            if m<3:
                L.issue(f"ds_read_b64_tr_b16 {vr(t,2)}, v15 offset:{512*m}")
                trd[m]=L.issue(f"ds_read_b64_tr_b16 {vr(t+2,2)}, v14 offset:{512*m}")
            else:
                L.issue(f"ds_read_b64_tr_b16 {vr(t,2)}, v160 offset:1536")
                trd[m]=L.issue(f"ds_read_b64_tr_b16 {vr(t+2,2)}, v161 offset:1536")
        return f
    def s_mask(m):
        def f():
            t=172
            L.wait(trd[m])
            for r in range(4): a(f"v_and_b32 v{t+r}, v45, v{t+r}")
        return f
    def s_mfma(m):
        def f():
            t=TOP+4*(m&1) if m<3 else 172
            L.wait(kmr[0]); L.wait(trd[m])
            for kt in range(3):
                A = vr(KM+4*m,4) if kt==0 else vr(KX+16*(kt-1)+4*m,4)
                c = "0" if first[0] else vr(SACC+4*kt,4)
                a(f"v_mfma_f32_16x16x32_bf16 {vr(SACC+4*kt,4)}, {A}, {vr(t,4)}, {c}")
            first[0]=False
        return f
    at(10, km_read)
    for u in range(7):
        if u!=5: at(last[u]+3, cvt_write(u))
    at(last[1]+4, tr_read(0)); at(last[1]+9, s_mfma(0))
    at(last[3]+4, tr_read(1)); at(last[3]+9, s_mfma(1))
    p6=last[6]+4
    at(p6, tr_read(3)); at(p6+6, s_mask(3)); at(p6+8, s_mfma(3))
    assert p6+8 < len(seq), (p6,len(seq))
    for n,(t,u,b) in enumerate(seq):
        if t=="r":
            L.wait(aop[b])
            a(f"v_smfmac_f32_16x16x64_bf16 {vr(ACC+4*u,4)}, {vr(AOP+4*b,4)}, {wfrag(7*u+b)}, v{IDX}")
        else:
            L.wait(wl[b])
            a(f"v_smfmac_f32_16x16x64_bf16 {vr(ACC+24,4)}, {vr(AOP+4*b,4)}, {vr(WLT+8*(b&1),8)}, v{IDX}")
            if b+2<7: rd_wl(b+2)
        for f in acts.get(n,[]): f()
    assert max(acts)<len(seq)
    stamp(a,2)
    a(f"s_add_u32 s56, s56, {2*14*1024}")
    a("s_nop 6")
    cvt_write(5)(); tr_read(2)(); s_mfma(2)()
    a("s_nop 7")
    for kt in range(3): a(f"ds_write_b128 v168, {vr(SACC+4*kt,4)} offset:{64*kt}")
    a("s_waitcnt lgkmcnt(0)")
    stamp(a,4)
    a("s_barrier")
    stamp(a,5)
    T=ACC
    q=lambda k: (T+4*k if k<7 else TOP)
    for w in range(4):
        a(f"ds_read_b128 {vr(q(w),4)}, v169 offset:{RED_W*w}")
    def pka(d,x,y):
        for h in (0,2): a(f"v_pk_add_f32 {vr(d+h,2)}, {vr(x+h,2)}, {vr(y+h,2)}")
    a("s_waitcnt lgkmcnt(2)")
    pka(q(0),q(0),q(1))
    a("s_waitcnt lgkmcnt(0)")
    pka(q(2),q(2),q(3)); pka(q(0),q(0),q(2))
    a(f"v_max3_f32 v{T+4}, v{T}, v{T+1}, v{T+2}")
    a(f"v_max_f32 v{T+4}, v{T+4}, v{T+3}")
    a(f"v_cndmask_b32 v{T+4}, v46, v{T+4}, s[62:63]")
    for rr in (1,2,4,8):
        a("s_nop 1"); a(f"v_max_f32_dpp v{T+4}, v{T+4}, v{T+4} row_ror:{rr} row_mask:0xf bank_mask:0xf")
    a(f"v_mul_f32 v{T+4}, s68, v{T+4}")
    for r in range(4): a(f"v_fma_f32 v{T+r}, v{T+r}, s68, -v{T+4}")
    for r in range(4): a(f"v_exp_f32 v{T+r}, v{T+r}")
    a("s_nop 0")
    a(f"v_add_f32 v{T+5}, v{T}, v{T+1}")
    a(f"v_add_f32 v{T+6}, v{T+2}, v{T+3}")
    a(f"v_add_f32 v{T+5}, v{T+5}, v{T+6}")
    a(f"v_cndmask_b32 v{T+5}, 0, v{T+5}, s[62:63]")
    for rr in (1,2,4,8):
        a("s_nop 1"); a(f"v_add_f32_dpp v{T+5}, v{T+5}, v{T+5} row_ror:{rr} row_mask:0xf bank_mask:0xf")
    a(f"v_rcp_f32 v{T+5}, v{T+5}")
    a("s_nop 0")
    for r in range(4): a(f"v_mul_f32 v{T+r}, v{T+r}, v{T+5}")
    a(f"v_cvt_pk_bf16_f32 v{T+6}, v{T}, v{T+1}")
    a(f"v_cvt_pk_bf16_f32 v{T+7}, v{T+2}, v{T+3}")
    a(f"v_min_u32 v{T+6}, 0xfffffffe, v{T+6}")
    a(f"v_min_u32 v{T+7}, 0xfffffffe, v{T+7}")
    a("s_mov_b64 exec, s[62:63]")
    a(f"buffer_store_dwordx2 {vr(T+6,2)}, v170, s[36:39], s58 offen")
    a("s_mov_b64 exec, -1")
    stamp(a,6); rt(a,1)
    a("s_waitcnt vmcnt(1)")
    rd_kx()
    a("s_waitcnt lgkmcnt(0)")
    for f in dma_kx_list(): f()
    a("""s_add_u32 s57, s57, 7168
    s_add_u32 s58, s58, 10240
    s_add_u32 s59, s59, 1
    s_cmp_lt_u32 s59, %d
    s_cbranch_scc1 SC_LOOP""" % NSTEPS)
    stamp_dump(a,0)
    a("s_endpgm")

V_MEM=0; V_P=0; V_PART=10240; PART_RS=144; PART_W=8*PART_RS; V_WL=V_PART+4*PART_W+64; V_ZST=V_WL+4*28672
ZX=80; PXR=112; PMR=128; OACC=136; VWLT=144; VT=160; ZB=144
def value(a):
    a.label("K2_VALUE")
    if PROF==3: a("s_memrealtime s[80:81]"); a("s_waitcnt lgkmcnt(0)")
    chain_common_setup(a)
    a("""v_lshrrev_b32 v9, 1, v3
    v_lshlrev_b32 v9, 10, v9
    v_and_b32 v10, 1, v3
    v_lshl_add_u32 v9, v10, 9, v9
    v_lshl_add_u32 v9, v2, 4, v9
    s_mul_i32 s53, s40, 28672
    s_add_u32 s53, s53, %d
    v_add_u32 v12, s53, v4              ; WL lds addr""" % V_WL)
    for hh in range(4):
        for ct in range(2):
            a(f"""s_lshl_b32 s54, s40, 2
            s_add_u32 s54, s54, {hh}
            s_mul_i32 s54, s54, 14
            s_add_u32 s54, s54, s42
            s_mul_i32 s55, s54, 28*1024
            s_add_u32 s55, s55, {WTB+256*ct}""")
            t=2*hh+ct
            if t<6: load_wtile(a,"s55",9,[7*t+b for b in range(7)])
            else: load_wtile(a,"s55",9,None,(12,14336*(t-6),48))
    a("""v_and_b32 v10, 7, v2
    s_mul_i32 s53, s40, 2560
    v_lshlrev_b32 v13, 7, v3
    v_lshl_add_u32 v13, v10, 4, v13
    v_add_u32 v13, s53, v13              ; P x part: g*128 + i*16
    v_and_b32 v11, 1, v3
    v_lshlrev_b32 v14, 6, v11
    v_lshl_add_u32 v14, v10, 3, v14
    v_add_u32 v14, s53, v14
    v_add_u32 v14, 512, v14
    v_add_u32 v7, 8192, v5
    v_cmp_gt_u32 vcc, 128, v0
    s_nop 1
    v_cndmask_b32 v7, v5, v7, vcc
    v_add_u32 v8, 4096, v5               ; P chunk t+256""")
    a("""v_and_b32 v10, 7, v2
    v_mul_u32_u24 v%d, %d, v10
    v_lshl_add_u32 v%d, v3, 4, v%d
    s_mul_i32 s53, s40, %d
    s_add_u32 s53, s53, %d
    v_add_u32 v%d, s53, v%d
    v_cmp_gt_u32 s[64:65], 8, v2""" % (VT,PART_RS,VT,VT,PART_W,V_PART,VT,VT))
    a("""v_and_b32 v10, 1, v3
    s_lshl_b32 s53, s40, 1
    v_add_u32 v10, s53, v10              ; i
    v_mul_u32_u24 v%d, %d, v10
    v_lshl_add_u32 v%d, v2, 3, v%d
    v_add_u32 v%d, %d, v%d""" % (VT+1,PART_RS,VT+1,VT+1,VT+1,V_PART,VT+1))
    a("""v_and_b32 v11, 1, v2
    v_lshl_add_u32 v%d, v11, 3, v10
    v_lshrrev_b32 v11, 3, v2
    v_lshl_add_u32 v%d, v11, 4, v%d
    v_lshlrev_b32 v%d, 4, v%d
    v_bfe_u32 v11, v2, 1, 2
    v_lshl_add_u32 v%d, v11, 2, v%d
    s_lshr_b32 s53, s42, 1
    s_lshl_b32 s53, s53, 10
    s_and_b32 s54, s42, 1
    s_lshl_b32 s54, s54, 9
    s_add_u32 s53, s53, s54
    v_add_u32 v%d, s53, v%d
    v_cmp_gt_u32 s[62:63], 32, v1""" % ((VT+2,)*9))
    a("""v_lshlrev_b32 v%d, 4, v2
    v_and_b32 v11, 1, v3
    v_lshl_add_u32 v%d, v11, 3, v%d
    v_lshrrev_b32 v11, 1, v3
    v_lshl_add_u32 v%d, v11, 2, v%d""" % ((VT+3,)*5))
    a(f"""s_mul_i32 s66, s40, 28*1024
    s_lshl_b32 s53, s42, 11
    s_add_u32 s66, s66, s53
    s_add_u32 s66, s66, {MBL}
    s_lshl_b32 s53, s40, 2
    s_mul_i32 s56, s53, 28*1024
    s_lshl_b32 s53, s42, 11
    s_add_u32 s56, s56, s53
    s_add_u32 s56, s56, {VO}
    s_mov_b32 s57, {MEMX}
    s_mov_b32 s58, {PX}
    s_mov_b32 s59, 0
    s_mov_b32 s67, {FLAGS}
    v_mov_b32 v{VT+4}, 0""")
    a(f"""s_lshl_b32 s76, s40, 13
    s_add_u32 s76, s76, {V_ZST}
    v_add_u32 v{VT+6}, s76, v4
    s_mul_i32 s53, s40, {PART_W}
    s_add_u32 s53, s53, {V_PART}
    v_add_u32 v10, s53, v{VT+3}
    v_mov_b32 v15, v10
    v_add_u32 v11, s53, v4
    v_mov_b32 v9, v11""")
    def dma_zx_list():
        out=[]
        for hh in range(4):
            for ct in range(2):
                def f(hh=hh,ct=ct):
                    a(f"s_add_u32 m0, s76, {2048*hh}")
                    a(f"s_add_u32 s61, s56, {28*1024*hh}")
                    a(f"buffer_load_dwordx4 v4, s[36:39], s61 offen offset:{1024*ct} lds")
                out.append(f)
        return out
    def rd_zx():
        for hh in range(4):
            for ct in range(2):
                a(f"ds_read_b128 {vr(ZX+8*hh+4*ct,4)}, v{VT+6} offset:{2048*hh+1024*ct}")
    def wait_vo(tag):
        a.label(tag)
        spin_guard(a)
        a(f"buffer_load_dword v{VT+7}, v{VT+4}, s[36:39], s67 offen sc1")
        a("s_waitcnt vmcnt(0)")
        a(f"v_cmp_gt_u32 vcc, 224, v{VT+7}")
        a(f"s_cbranch_vccnz {tag}")
        a("s_add_u32 s67, s67, 128")
    wait_vo("VA_WVO0")
    for f in dma_zx_list(): f()
    a("s_waitcnt vmcnt(0)")
    rd_zx()
    a("s_waitcnt lgkmcnt(0)")
    a(f"s_add_u32 s56, s56, {16*28*1024}")
    a("s_barrier")
    stamp_init(a); rt_init(a,16)
    SEL=172
    a("""v_and_b32 v10, 7, v2                   ; key
    v_lshrrev_b32 v11, 3, v2               ; hd'
    v_lshrrev_b32 v16, 2, v10              ; key>>2
    v_and_b32 v17, 1, v3
    v_cmp_eq_u32 vcc, v16, v17             ; cond
    v_and_b32 v16, 3, v10
    v_lshl_add_u32 v16, v11, 2, v16
    v_and_b32 v17, 1, v16
    v_lshlrev_b32 v17, 4, v17
    v_mov_b32 v18, 0x3f80
    v_lshlrev_b32 v18, v17, v18
    v_cndmask_b32 v18, 0, v18, vcc
    v_lshrrev_b32 v16, 1, v16""")
    for r in range(4):
        a(f"v_cmp_eq_u32 vcc, {r}, v16")
        a("s_nop 1")
        a(f"v_cndmask_b32 v{SEL+r}, 0, v18, vcc")
    a(f"""v_lshrrev_b32 v10, 1, v3
    v_lshl_add_u32 v10, v10, 4, v2
    v_lshlrev_b32 v10, 4, v10
    v_and_b32 v11, 1, v3
    v_lshl_add_u32 v{VT+3}, v11, 3, v10""")
    a.label("VA_LOOP")
    L=LdsQ(a)
    wl={}
    def rd_wl(k):
        buf=VWLT+8*(k&1)
        off=14336*(k//7)+2048*(k%7)
        L.issue(f"ds_read_b128 {vr(buf,4)}, v12 offset:{off}")
        wl[k]=L.issue(f"ds_read_b128 {vr(buf+4,4)}, v12 offset:{off+1024}")
    rd_wl(0); rd_wl(1)
    for r in range(32): a(f"v_mov_b32 v{ACC+r}, 0")
    poll_mem2(a, "VA_POLL", "s57", PXR, PXR+8, VT+7, V_MEM, C=(PMR if os.environ.get("K3") else None), slp=int(os.environ.get("VSLEEP","0")))
    L.done=L.n
    stamp(a,0); rt(a,0)
    aop={}
    for b in range(7): aop[b]=L.issue(f"ds_read_b128 {vr(AOP+4*b,4)}, v4 offset:{V_MEM+1024*b}")
    a("""s_and_b32 s60, s59, 3
    s_cmp_eq_u32 s60, 3
    s_cbranch_scc0 VA_NOW
    s_cmp_ge_u32 s59, 60
    s_cbranch_scc1 VA_NOW""")
    wait_vo("VA_WVO")
    a.label("VA_NOW")
    dz=dma_zx_list()
    k=0; nr=0
    for t in range(6):
        for b in range(7):
            L.wait(aop[b])
            a(f"v_smfmac_f32_16x16x64_bf16 {vr(ACC+4*t,4)}, {vr(AOP+4*b,4)}, {wfrag(7*t+b)}, v{IDX}")
            nr+=1
            if nr%4==2 and dz: dz.pop(0)()
            if nr%3==0:
                L.wait(wl[k])
                a(f"v_smfmac_f32_16x16x64_bf16 {vr(ACC+4*(6+k//7),4)}, {vr(AOP+4*(k%7),4)}, {vr(VWLT+8*(k&1),8)}, v{IDX}")
                if k+2<14: rd_wl(k+2)
                k+=1
    assert k==14
    a("s_nop 7")
    stamp(a,3)
    for pp in range(2):
        for ct in range(2):
            x=ACC+4*(4*pp+ct); y=ACC+4*(4*pp+2+ct)
            a(f"v_cvt_pk_bf16_f32 v{x}, v{x}, v{x+1}")
            a(f"v_cvt_pk_bf16_f32 v{x+1}, v{x+2}, v{x+3}")
            a(f"v_cvt_pk_bf16_f32 v{x+2}, v{y}, v{y+1}")
            a(f"v_cvt_pk_bf16_f32 v{x+3}, v{y+2}, v{y+3}")
    a("s_nop 1")
    for pp in range(2):
        for ct in range(2):
            x=ACC+4*(4*pp+ct); y=ACC+4*(4*pp+2+ct)
            a(f"v_mfma_f32_16x16x32_bf16 {vr(y,4)}, {vr(SEL,4)}, {vr(x,4)}, 0")
    a("s_nop 4")
    for pp in range(2):
        for ct in range(2):
            y=ACC+4*(4*pp+2+ct)
            a(f"v_cvt_pk_bf16_f32 v{y}, v{y}, v{y+1}")
            a(f"v_cvt_pk_bf16_f32 v{y+1}, v{y+2}, v{y+3}")
    a(f"s_cmp_eq_u32 s59, {NSTEPS}")
    a("s_cbranch_scc1 VA_LASTX")
    for pp in range(2):
        for ct in range(2):
            y=ACC+4*(4*pp+2+ct)
            a(f"buffer_store_dwordx2 {vr(y,2)}, v{VT+3}, s[36:39], s66 offen offset:{1024*ct+512*pp}")
    a(f"s_add_u32 s66, s66, {4*28*1024}")
    stamp(a,4)
    if PROF==2:
        a("s_waitcnt vmcnt(4)")
        stamp(a,11)
        a("s_waitcnt vmcnt(0)")
        stamp(a,12)
    a("s_barrier")
    poll_mem2(a, "VA_POLLP", "s58", PXR, AOP, VT+7, V_P, addrs=(5,8,7), C=(AOP+12 if os.environ.get("K3") else None))
    a("s_waitcnt vmcnt(3)")
    for hh in range(4):
        a(f"ds_read_b128 {vr(ZB+4*hh,4)}, v13 offset:{V_P+640*hh}")
        a(f"ds_read_b64 {vr(PMR+2*hh,2)}, v14 offset:{V_P+640*hh}")
    fst=[True,True]
    for hh in range(4):
        a(f"s_waitcnt lgkmcnt({6-2*hh})")
        for ct in range(2):
            c="0" if fst[ct] else vr(OACC+4*ct,4); fst[ct]=False
            a(f"v_mfma_f32_16x16x32_bf16 {vr(OACC+4*ct,4)}, {vr(ZX+8*hh+4*ct,4)}, {vr(ZB+4*hh,4)}, {c}")
    for pp in range(2):
        for ct in range(2):
            a(f"v_mfma_f32_16x16x32_bf16 {vr(OACC+4*ct,4)}, {vr(ACC+4*(4*pp+ct),4)}, {vr(PMR+4*pp,4)}, {vr(OACC+4*ct,4)}")
    a.label("VA_PJ")
    stamp(a,5); rt(a,1)
    a(f"""s_add_u32 s57, s57, 7168
    s_add_u32 s56, s56, {16*28*1024}
    s_add_u32 s58, s58, 10240
    s_add_u32 s59, s59, 1
    s_mov_b64 exec, s[64:65]
    s_nop 2""")
    for ct in range(2): a(f"ds_write_b128 v{VT}, {vr(OACC+4*ct,4)} offset:{64*ct}")
    a("s_mov_b64 exec, -1")
    a("s_waitcnt lgkmcnt(0)")
    a("s_barrier")
    stamp(a,6)
    T=ZX
    for w in range(4): a(f"ds_read_b64 {vr(T+2*w,2)}, v{VT+1} offset:{PART_W*w}")
    a("s_waitcnt lgkmcnt(2)")
    a(f"v_pk_add_f32 {vr(T,2)}, {vr(T,2)}, {vr(T+2,2)}")
    a("s_waitcnt lgkmcnt(0)")
    a(f"v_pk_add_f32 {vr(T+4,2)}, {vr(T+4,2)}, {vr(T+6,2)}")
    a(f"v_pk_add_f32 {vr(T,2)}, {vr(T,2)}, {vr(T+4,2)}")
    a(f"v_cvt_pk_bf16_f32 v{VT+5}, v{T}, v{T+1}")
    a(f"v_min_u32 v{VT+5}, 0xfffffffe, v{VT+5}")
    a("s_mov_b64 exec, s[62:63]")
    a(f"buffer_store_dword v{VT+5}, v{VT+2}, s[36:39], s57 offen")
    a("s_mov_b64 exec, -1")
    s59fix=True
    stamp(a,7); rt(a,2)
    a("s_waitcnt vmcnt(1)")
    rd_zx()
    stamp(a,8)
    a("s_branch VA_LOOP")
    a.label("VA_LASTX")
    a(f"s_add_u32 s66, s66, {MB-MBL}")
    for pp in range(2):
        for ct in range(2):
            y=ACC+4*(4*pp+2+ct)
            a(f"buffer_store_dwordx2 {vr(y,2)}, v{VT+3}, s[36:39], s66 offen offset:{1024*ct+512*pp} sc1")
    a(f"""s_waitcnt vmcnt(0)
    s_barrier
    s_cmp_eq_u32 s40, 0
    s_cbranch_scc0 VA_END
    s_mov_b64 exec, 1
    v_mov_b32 v10, 0
    v_mov_b32 v11, 1
    s_mov_b32 s60, {FLAGS+128*(32+63)}
    buffer_atomic_add v11, v10, s[36:39], s60 offen
    s_mov_b64 exec, -1""")
    a.label("VA_END")
    stamp_dump(a,16)
    a("s_endpgm")

def helper(a):
    a.label("K2_HELPER")
    a("""v_lshlrev_b32 v5, 4, v0                 ; chunk t
    v_add_u32 v6, 4096, v5
    v_cmp_gt_u32 vcc, 192, v0
    s_nop 1
    v_cndmask_b32 v6, v5, v6, vcc
    v_lshlrev_b32 v4, 4, v1
    s_mul_i32 s48, s40, 28672               ; wave's 28 KB part
    s_mul_i32 s49, s42, %d
    s_add_u32 s48, s48, s49
    s_add_u32 s56, s48, %d                  ; src
    s_add_u32 s58, s48, %d                  ; dst
    s_mul_i32 s49, s42, 7168
    s_add_u32 s57, s49, %d                  ; MEMX[s+1]
    s_mov_b32 s59, s42
    s_lshl_b32 s49, s42, 7
    s_add_u32 s67, s49, %d                  ; CH flags
    v_mov_b32 v7, 0
    v_mov_b32 v8, 1""" % (4*28*1024, MBL, MB, MEMX+7168, FLAGS+128*32))
    rt_init(a,30)
    a.label("HE_LOOP")
    a.label("HE_POLL")
    spin_guard(a)
    a("""buffer_load_dwordx4 v[16:19], v5, s[36:39], s57 offen sc1
    buffer_load_dwordx4 v[20:23], v6, s[36:39], s57 offen sc1
    s_waitcnt vmcnt(0)
    v_max3_u32 v9, v16, v17, v18
    v_max3_u32 v9, v9, v19, v20
    v_max3_u32 v9, v9, v21, v22
    v_max_u32 v9, v9, v23
    v_cmp_eq_u32 vcc, -1, v9
    s_cbranch_vccz HE_POK
    s_sleep %s
    s_branch HE_POLL""" % os.environ.get("HSLEEP","6"))
    a.label("HE_POK")
    a("s_barrier")
    a(f"s_add_u32 s61, s57, {MEMN-MEMX}")
    a("buffer_store_dwordx4 v[16:19], v5, s[36:39], s61 offen sc1")
    a("buffer_store_dwordx4 v[20:23], v6, s[36:39], s61 offen sc1")
    for j in range(28):
        a(f"s_add_u32 s60, s56, {1024*(j&~3)}")
        a(f"buffer_load_dwordx4 {vr(32+4*j,4)}, v4, s[36:39], s60 offen offset:{1024*(j&3)} sc1")
    a("s_waitcnt vmcnt(28)")
    a("""s_barrier
    s_cmp_eq_u32 s40, 0
    s_cbranch_scc0 HE_NOM
    s_mov_b64 exec, 1
    s_add_u32 s60, s67, %d
    buffer_atomic_add v8, v7, s[36:39], s60 offen
    s_mov_b64 exec, -1""" % (128*(400+1-32)))
    a.label("HE_NOM")
    for j in range(28):
        a(f"s_waitcnt vmcnt(27)")
        a(f"s_add_u32 s60, s58, {1024*(j&~3)}")
        a(f"buffer_store_dwordx4 {vr(32+4*j,4)}, v4, s[36:39], s60 offen offset:{1024*(j&3)} sc1")
    a("""s_waitcnt vmcnt(0)
    s_barrier
    s_cmp_eq_u32 s40, 0
    s_cbranch_scc0 HE_NOF
    s_mov_b64 exec, 1
    buffer_atomic_add v8, v7, s[36:39], s67 offen
    s_mov_b64 exec, -1""")
    a.label("HE_NOF")
    rt(a,0)
    a(f"""s_add_u32 s56, s56, {2*4*28*1024}
    s_add_u32 s58, s58, {2*4*28*1024}
    s_add_u32 s57, s57, {2*7168}
    s_add_u32 s67, s67, 256
    s_add_u32 s59, s59, 2
    s_cmp_lt_u32 s59, 63
    s_cbranch_scc1 HE_LOOP
    s_endpgm""")

def k2():
    a=Asm()
    a("s_cmp_ge_u32 s2, 256"); a("s_cbranch_scc1 K2_EXIT")
    if PROF==3: a("s_memrealtime s[78:79]")
    prologue(a)
    srd(a,44,32,256)
    a("s_mov_b32 s99, 3000000")
    a("""s_getreg_b32 s41, hwreg(HW_REG_XCC_ID)
    s_and_b32 s41, s41, 7
    s_cmp_eq_u32 s40, 0
    s_cbranch_scc0 K2_WAITROLE
    s_mov_b64 exec, 1
    s_lshl_b32 s48, s41, 7
    s_add_u32 s48, s48, 24196864
    s_mov_b32 s49, 24198144
    v_mov_b32 v2, 0
    v_mov_b32 v3, 1
    buffer_atomic_add v3, v2, s[36:39], s48 offen sc0
    s_waitcnt vmcnt(0)
    v_cmp_eq_u32 vcc, 31, v3
    s_cbranch_vccz K2_POLLCH
    v_mov_b32 v4, s41
    v_add_u32 v4, 1, v4
    v_mov_b32 v5, 0
    buffer_atomic_cmpswap v[4:5], v2, s[36:39], s49 offen
    s_waitcnt vmcnt(0)""")
    a.label("K2_POLLCH")
    spin_guard(a)
    a("""buffer_load_dword v4, v2, s[36:39], s49 offen sc1
    s_waitcnt vmcnt(0)
    v_cmp_eq_u32 vcc, 0, v4
    s_cbranch_vccnz K2_POLLCH
    v_mov_b32 v2, 0
    v_mov_b32 v6, v3
    v_mov_b32 v7, v4
    ds_write_b64 v2, v[6:7]
    s_waitcnt lgkmcnt(0)
    s_mov_b64 exec, -1""")
    a.label("K2_WAITROLE")
    a("""s_barrier
    v_mov_b32 v2, 0
    ds_read_b64 v[4:5], v2
    s_waitcnt lgkmcnt(0)
    v_readfirstlane_b32 s42, v4
    v_readfirstlane_b32 s43, v5
    s_barrier
    s_sub_u32 s43, s43, 1
    s_cmp_eq_u32 s41, s43
    s_cbranch_scc0 K2_WORKER
    s_cmp_lt_u32 s42, 16
    s_cbranch_scc1 K2_SCORE
    s_cmp_lt_u32 s42, 30
    s_cbranch_scc0 K2_H0
    s_sub_u32 s42, s42, 16
    s_branch K2_VALUE""")
    a.label("K2_H0")
    a("""s_cmp_lt_u32 s42, 32
    s_cbranch_scc0 K2_WORKER
    s_sub_u32 s42, s42, 30
    s_branch K2_HELPER""")
    a.label("K2_EXIT"); a("s_endpgm")
    a.label("K2_ABORT")
    srd(a,44,32,256)
    a("""s_mov_b64 exec, 1
    v_mov_b32 v2, 60
    v_mov_b32 v3, 1
    buffer_atomic_add v3, v2, s[44:47], 0 offen
    s_endpgm""")
    if os.environ.get("NOCHAIN"):
        for nm in ("K2_SCORE","K2_VALUE","K2_HELPER"): a.label(nm); a("s_endpgm")
    else:
        score(a); value(a); helper(a)
    a.label("K2_WORKER")
    try:
        import gen3
        gen3.worker(a)
    except ImportError:
        a("s_endpgm")
    return a.text()

def kernels():
    ks=[("k2_kernel",k2(),256,256,V_ZST+32768,512,256)]
    try:
        import gen3
        ks+=gen3.kernels()
    except ImportError: pass
    return ks
```
